```python
import torch

def _softmax(x, axis=-1):
    return torch.softmax(x, dim=axis)
def _gelu(x):
    return torch.nn.functional.gelu(x, approximate="tanh")
def _silu(x):
    return torch.nn.functional.silu(x)
def _sigmoid(x):
    return torch.sigmoid(x)
def _layernorm(x, axis=-1, eps=1e-5):
    m = x.mean(dim=axis, keepdim=True)
    v = x.var(dim=axis, keepdim=True, unbiased=False)
    return (x - m) / torch.sqrt(v + eps)
def _scatter_add(tgt, idx, src, axis=0):
    return tgt.clone().index_add_(axis, idx, src)
def _segment_sum(src, seg, n):
    out = torch.zeros((n,) + src.shape[1:], dtype=src.dtype)
    return out.index_add_(0, seg, src)
def _pad(x, pw):
    flat = tuple(v for pair in reversed(pw) for v in pair)
    return torch.nn.functional.pad(x, flat)

kernel_name = 'recurrent_scan__mha_block__moe_arch_mod__prompt'

def setup_inputs():

    _w = (lambda a: (lambda t: t.to(torch.bfloat16) if t.is_floating_point() else t)(torch.as_tensor(a)))
    def _A_setup():
        B, S, D, H = 1, 2048, 640, 32
        return {
            "x": _w((lambda *s: torch.randn(*s, dtype=torch.bfloat16) * 0.05)(B, S, D)),
            "wqkv": _w((lambda *s: torch.randn(*s, dtype=torch.bfloat16) * 0.05)(D, 3 * D)),
            "wo": _w((lambda *s: torch.randn(*s, dtype=torch.bfloat16) * 0.05)(D, D)),
        }
    _A_in = _A_setup()

    def _B_setup():
        B, S, D, F, C = 1, 2048, 640, 1536, 8
        return {
            "x": _w((lambda *s: torch.randn(*s, dtype=torch.bfloat16) * 0.05)(B, S, D)),
            "w_r": _w((lambda *s: torch.randn(*s, dtype=torch.bfloat16) * 0.05)(D)),
            "w_gate": _w((lambda *s: torch.randn(*s, dtype=torch.bfloat16) * 0.05)(D, F)),
            "w_up": _w((lambda *s: torch.randn(*s, dtype=torch.bfloat16) * 0.05)(D, F)),
            "w_down": _w((lambda *s: torch.randn(*s, dtype=torch.bfloat16) * 0.05)(F, D)),
        }
    _B_in = _B_setup()

    return {
        "A_x": _A_in["x"],
        "A_wqkv": _A_in["wqkv"],
        "A_wo": _A_in["wo"],
        "B_x": _B_in["x"],
        "B_w_r": _B_in["w_r"],
        "B_w_gate": _B_in["w_gate"],
        "B_w_up": _B_in["w_up"],
        "B_w_down": _B_in["w_down"],
    }

def reference(A_x, A_wqkv, A_wo, B_x, B_w_r, B_w_gate, B_w_up, B_w_down):
    def _A_ref(x, wqkv, wo):
        B, S, D = x.shape
        H = 32
        Dh = D // H
        qkv = (lambda x, *d: x.permute(*d))((x @ wqkv).reshape(B, S, 3, H, Dh), 2, 0, 3, 1, 4)
        q, k, v = qkv[0], qkv[1], qkv[2]
        scores = torch.einsum("bhqd,bhkd->bhqk", q, k) * (Dh ** -0.5)
        p = _softmax(scores, axis=-1)
        o = torch.einsum("bhqk,bhkd->bhqd", p, v)
        return (lambda x, *d: x.permute(*d))(o, 0, 2, 1, 3).reshape(B, S, D) @ wo

    def _B_ref(x, w_r, w_gate, w_up, w_down):
        B, S, D = x.shape
        C = 8
        r = x @ w_r
        idx = torch.argsort(-r, axis=-1)[:, :C]
        idx_e = (lambda x, n, axis: torch.repeat_interleave(x, n, dim=axis))(idx.reshape(B, C, 1), D, axis=2)
        x_sel = (lambda x, i, axis: torch.take_along_dim(x, i, dim=axis))(x, idx_e, axis=1)
        g = _silu(x_sel @ w_gate)
        u = x_sel @ w_up
        y = (g * u) @ w_down
        r_sel = _sigmoid((lambda x, i, axis: torch.take_along_dim(x, i, dim=axis))(r, idx, axis=1))
        y = y * r_sel.reshape(B, C, 1)
        b_off = (torch.arange(B) * S).reshape(B, 1)
        flat_idx = (idx + b_off).reshape(B * C)
        zero = (x * 0.0).reshape(B * S, D)
        upd = _scatter_add(zero, flat_idx, y.reshape(B * C, D), axis=0)
        return x + upd.reshape(B, S, D)

    x = A_x
    xn = _layernorm(x, axis=-1)
    s = _A_ref(xn, A_wqkv, A_wo)
    g = _silu(_B_ref(xn, B_w_r, B_w_gate, B_w_up, B_w_down))
    return x + s * g
```

```python
import math, struct

class Asm:
    def __init__(self):
        self.lines = []
    def __call__(self, s):
        for l in s.strip("\n").split("\n"):
            self.lines.append("    " + l.strip())
    def label(self, l):
        self.lines.append(l + ":")
    def raw(self, s):
        self.lines.append(s)
    def text(self):
        return "\n".join(self.lines) + "\n"

def f32(x):
    return "0x%08x" % struct.unpack("<I", struct.pack("<f", x))[0]

def vr(a, n):
    return f"v[{a}:{a+n-1}]"
def sr(a, n):
    return f"s[{a}:{a+n-1}]"

S, D, H, DH, F = 2048, 640, 32, 20, 1536
X_BYTES = S * D * 2
WQKV_BYTES = D * 3 * D * 2
WO_BYTES = D * D * 2
WR_BYTES = D * 2
WG_BYTES = D * F * 2
TILE_B = 122880
IMG_OFF = 0
O_OFF = IMG_OFF + 64 * TILE_B
ST_OFF = O_OFF + X_BYTES
CAND_OFF = ST_OFF + 16384
SEL_OFF = CAND_OFF + 1024
H_OFF = SEL_OFF + 1024
UPD_OFF = H_OFF + 32768
XS_OFF = UPD_OFF + 16384
WS_USED = XS_OFF + 128 * 1280
QSCALE = math.log2(math.e) / math.sqrt(DH)

def srd(a, base, ptr, nbytes):
    a(f"s_mov_b32 s{base}, s{ptr}")
    a(f"s_mov_b32 s{base+1}, s{ptr+1}")
    a(f"s_mov_b32 s{base+2}, {nbytes}")
    a(f"s_mov_b32 s{base+3}, 0x20000")

def desc(name, vgpr, sgpr):
    acc = (vgpr + 3) // 4 * 4
    return f""".p2align 6
.amdhsa_kernel {name}
  .amdhsa_next_free_vgpr {vgpr}
  .amdhsa_next_free_sgpr {sgpr}
  .amdhsa_accum_offset {acc}
  .amdhsa_group_segment_fixed_size 0
  .amdhsa_kernarg_size 88
  .amdhsa_user_sgpr_count 2
  .amdhsa_user_sgpr_kernarg_segment_ptr 1
  .amdhsa_system_sgpr_workgroup_id_x 1
.end_amdhsa_kernel
"""

def top8_rounds(a, k0, k1, tmp, sdst, per_round=None):
    a(f"v_max_u32 v{tmp}, v{k0}, v{k1}")
    for dpp in ("row_ror:8 row_mask:0xf bank_mask:0xf", "row_ror:4 row_mask:0xf bank_mask:0xf",
                "row_ror:2 row_mask:0xf bank_mask:0xf", "row_ror:1 row_mask:0xf bank_mask:0xf",
                "row_bcast:15 row_mask:0xa bank_mask:0xf", "row_bcast:31 row_mask:0xc bank_mask:0xf"):
        a("s_nop 1")
        a(f"v_max_u32_dpp v{tmp}, v{tmp}, v{tmp} {dpp}")
    a("s_nop 1")
    a(f"v_readlane_b32 s{sdst}, v{tmp}, 63")

def norm_pair(a, d, negm, rstd, t):
    a(f"v_lshlrev_b32 v{t}, 16, v{d}")
    a(f"v_and_b32 v{t+1}, 0xffff0000, v{d}")
    a(f"v_pk_add_f32 {vr(t,2)}, {vr(t,2)}, {vr(negm,2)} op_sel_hi:[1,0]")
    a(f"v_cvt_pk_bf16_f32 v{d}, v{t}, v{t+1}")
    a(f"v_lshlrev_b32 v{t}, 16, v{d}")
    a(f"v_and_b32 v{t+1}, 0xffff0000, v{d}")
    a(f"v_pk_mul_f32 {vr(t,2)}, {vr(t,2)}, {vr(rstd,2)} op_sel_hi:[1,0]")
    a(f"v_cvt_pk_bf16_f32 v{d}, v{t}, v{t+1}")
```

```python
from common import *

NAME = "qkv_kernel"
LDS = 163840

def dma_stage(a):
    a("s_mov_b32 m0, s30")
    a("s_add_u32 s31, s28, 10240")
    a("buffer_load_dwordx4 v2, s[12:15], s28 offen lds")
    a("s_addk_i32 m0, 0x400")
    a("s_addk_i32 s28, 128")
    a("buffer_load_dwordx4 v3, s[12:15], s31 offen lds")
    a("s_addk_i32 m0, 0x400")
    a("s_addk_i32 s31, 10240")
    a("buffer_load_dwordx4 v2, s[12:15], s31 offen lds")
    a("s_addk_i32 m0, 0x400")
    a("s_addk_i32 s31, 10240")
    a("buffer_load_dwordx4 v3, s[12:15], s31 offen lds")
    a(f"s_addk_i32 m0, {16384-3072}")
    a("s_add_u32 s31, s29, 15360")
    a("buffer_load_dwordx4 v4, s[16:19], s29 offen lds")
    a("s_addk_i32 m0, 0x400")
    a("s_add_u32 s29, s29, 245760")
    a("buffer_load_dwordx4 v4, s[16:19], s31 offen lds")
    a("s_addk_i32 m0, 0x400")
    a("s_addk_i32 s31, 15360")
    a("buffer_load_dwordx4 v4, s[16:19], s31 offen lds")
    a("s_addk_i32 m0, 0x400")
    a("s_addk_i32 s31, 15360")
    a("buffer_load_dwordx4 v4, s[16:19], s31 offen lds")
    a("s_add_u32 s30, s30, 0x8000")

def reads(a, st, ks):
    b = 32 + 16 * st
    a(f"ds_read_b128 {vr(b,4)}, v{5+ks}")
    a(f"ds_read_b64_tr_b16 {vr(b+8,2)}, v13 offset:{ks*4096}")
    a(f"ds_read_b64_tr_b16 {vr(b+10,2)}, v13 offset:{ks*4096+1024}")
    a(f"ds_read_b64_tr_b16 {vr(b+12,2)}, v14 offset:{ks*4096}")
    a(f"ds_read_b64_tr_b16 {vr(b+14,2)}, v14 offset:{ks*4096+1024}")
    a(f"ds_read_b128 {vr(b+4,4)}, v{9+ks}")

def acc(i, j):
    return 64 + (2 * i + j) * 16

def mm(a, st, vmode, extra=None):
    b = 32 + 16 * st
    n = 0
    for i in range(2):
        for j in range(2):
            X = vr(b + 4 * i, 4); W = vr(b + 8 + 4 * j, 4); C = vr(acc(i, j), 16)
            if vmode: a(f"v_mfma_f32_32x32x16_bf16 {C}, {X}, {W}, {C}")
            else:     a(f"v_mfma_f32_32x32x16_bf16 {C}, {W}, {X}, {C}")
            a(f"v_dot2c_f32_bf16 v15, s34, v{b+n}")
            a(f"v_dot2c_f32_bf16 v16, v{b+n}, v{b+n}")
            a(f"v_dot2c_f32_bf16 v17, s34, v{b+8+n}")
            if extra:
                for e in extra[n]: a(e)
            n += 1

def stats_math(a, vsum, vsq, vmp, vsd, t0):
    a(f"v_mul_f32 v{vsum}, {f32(1.0/640)}, v{vsum}")
    a(f"v_mul_f32 v{vsq}, {f32(1.0/640)}, v{vsq}")
    a(f"v_fma_f32 v{vsq}, -v{vsum}, v{vsum}, v{vsq}")
    a(f"v_max_f32 v{vsq}, 0, v{vsq}")
    a(f"v_cvt_pk_bf16_f32 v{vmp}, v{vsum}, v{vsum}")
    a(f"v_cvt_pk_bf16_f32 v{t0}, v{vsq}, v{vsq}")
    a(f"v_and_b32 v{t0}, 0xffff0000, v{t0}")
    a(f"v_add_f32 v{t0}, {f32(1e-5)}, v{t0}")
    a(f"v_cvt_pk_bf16_f32 v{t0}, v{t0}, v{t0}")
    a(f"v_and_b32 v{t0}, 0xffff0000, v{t0}")
    a(f"v_sqrt_f32 v{t0}, v{t0}")
    a("s_nop 0")
    a(f"v_cvt_pk_bf16_f32 v{t0}, v{t0}, v{t0}")
    a(f"v_and_b32 v{vsd}, 0xffff0000, v{t0}")

def gemm_body(a, vmode):
    L = "k1v" if vmode else "k1q"
    a("s_waitcnt vmcnt(32)")
    a("s_barrier")
    reads(a, 0, 0)
    a("s_waitcnt lgkmcnt(0)")
    a.label(f"{L}_loop")
    reads(a, 1, 1)
    mm(a, 0, vmode)
    a("s_waitcnt lgkmcnt(0)")
    reads(a, 0, 2)
    mm(a, 1, vmode)
    a("s_waitcnt lgkmcnt(0)")
    reads(a, 1, 3)
    a("s_cmp_eq_u32 s32, 4")
    a("s_cselect_b32 s33, s35, s36")
    a("s_cselect_b32 s32, -1, s32")
    a("s_add_u32 s32, s32, 1")
    adds = [f"v_add_u32 v{r}, s33, v{r}" for r in range(5, 15)]
    mm(a, 0, vmode, extra=[adds[0:3], adds[3:6], adds[6:8], adds[8:10]])
    a("s_cmp_gt_u32 s27, 5")
    a(f"s_cbranch_scc1 {L}_w0")
    a("s_waitcnt vmcnt(24) lgkmcnt(0)")
    a.label(f"{L}_bar")
    a("s_barrier")
    reads(a, 0, 0)
    a("s_cmp_gt_u32 s27, 4")
    a(f"s_cbranch_scc1 {L}_nodma")
    dma_stage(a)
    a.label(f"{L}_nodma")
    mm(a, 1, vmode)
    a("s_add_u32 s27, s27, 1")
    a("s_cmp_lt_u32 s27, 10")
    a("s_waitcnt lgkmcnt(0)")
    a(f"s_cbranch_scc1 {L}_loop")
    a("s_nop 1")
    a("v_mov_b32 v18, v15")
    a("v_mov_b32 v19, v16")
    a("v_mov_b32 v20, v17")
    a("s_nop 0")
    a("v_permlane32_swap_b32 v15, v18")
    a("v_permlane32_swap_b32 v16, v19")
    a("v_permlane32_swap_b32 v17, v20")
    a("v_add_f32 v15, v15, v18")
    a("v_add_f32 v16, v16, v19")
    a("v_add_f32 v17, v17, v20")
    stats_math(a, 15, 16, 22, 18, 19)
    a("v_rcp_f32 v30, v18")
    a("v_cvt_pk_bf16_f32 v19, v17, v17")
    a("v_and_b32 v19, 0xffff0000, v19")
    a("v_sub_f32 v17, v17, v19")
    a("v_cvt_pk_bf16_f32 v26, -v19, -v17")
    if not vmode:
        a("v_mul_f32 v30, s37, v30")
    a("v_and_b32 v18, 31, v1")
    a("v_lshlrev_b32 v18, 2, v18")
    a("s_lshl_b32 s31, s24, 7")
    a("v_add_u32 v19, s31, v18")
    a("ds_write_b32 v19, v22")
    a("ds_write_b32 v19, v30 offset:512")
    a("s_lshl_b32 s31, s38, 7")
    a("v_add_u32 v21, s31, v18")
    a("ds_write_b32 v21, v26 offset:1024")
    a("v_xor_b32 v19, 128, v19")
    a("v_xor_b32 v21, 128, v21")
    a("v_mov_b32 v23, 0")
    a("v_mov_b32 v25, 0")
    a("v_mov_b32 v27, 0")
    a("v_mov_b32 v29, 0")
    a("s_waitcnt lgkmcnt(0)")
    a("s_barrier")
    a("ds_read_b32 v24, v19")
    a("ds_read_b32 v28, v21 offset:1024")
    if not vmode:
        a("ds_read_b32 v20, v19 offset:512")
    else:
        a("v_lshrrev_b32 v18, 5, v1")
        a("v_lshlrev_b32 v18, 4, v18")
        a("s_lshl_b32 s31, s24, 7")
        a("v_add_u32 v18, s31, v18")
        a("v_xor_b32 v19, 128, v18")
        for g in range(4):
            a(f"ds_read_b128 {vr(32+4*g,4)}, v18 offset:{512+32*g}")
        for g in range(4):
            a(f"ds_read_b128 {vr(48+4*g,4)}, v19 offset:{512+32*g}")
    a("s_mov_b32 s40, -1")
    a("s_mov_b32 s41, 0")
    a("s_waitcnt lgkmcnt(0)")
    a("v_cndmask_b32 v26, 0, v26, s[40:41]")
    a("v_cndmask_b32 v28, 0, v28, s[40:41]")
    if not vmode:
        a("v_lshrrev_b32 v18, 5, v1")
        a("v_lshlrev_b32 v18, 8, v18")
        a("v_and_b32 v19, 31, v1")
        a("v_lshl_add_u32 v18, v19, 3, v18")
    else:
        a("v_lshrrev_b32 v18, 5, v1")
        a("v_mul_u32_u24 v18, 10240, v18")
        a("v_and_b32 v19, 31, v1")
        a("v_lshl_add_u32 v18, v19, 4, v18")
    for i in range(2):
        for j in range(2):
            M = vr(22 + 2 * i, 2); CS = vr(26 + 2 * j, 2); C = vr(acc(i, j), 16)
            if vmode: a(f"v_mfma_f32_32x32x8_bf16 {C}, {M}, {CS}, {C}")
            else:     a(f"v_mfma_f32_32x32x8_bf16 {C}, {CS}, {M}, {C}")
    a("s_lshl_b32 s42, s25, 2")
    a("s_add_u32 s42, s42, s24")
    a("s_xor_b32 s43, s42, 1")
    a(f"s_mul_i32 s42, s42, {TILE_B}")
    a(f"s_mul_i32 s43, s43, {TILE_B}")
    a("s_lshl_b32 s44, s26, 2")
    a("s_add_u32 s44, s44, s38")
    a("s_xor_b32 s45, s44, 1")
    if not vmode:
        a("s_lshl_b32 s44, s44, 11")
        a("s_lshl_b32 s45, s45, 11")
    else:
        a("s_lshl_b32 s44, s44, 9")
        a("s_lshl_b32 s45, s45, 9")
        a(f"s_add_u32 s44, s44, {81920 - 40*512}")
        a(f"s_add_u32 s45, s45, {81920 - 40*512}")
    a("s_nop 4")
    for i in range(2):
        for j in range(2):
            c = acc(i, j)
            a(f"s_add_u32 s46, s{42+i}, s{44+j}")
            if vmode: a("s_add_u32 s47, s46, 20480")
            for p in range(8):
                if vmode:
                    a(f"v_pk_mul_f32 {vr(c+2*p,2)}, {vr(c+2*p,2)}, {vr(32+16*i+2*p,2)}")
                else:
                    rs = 30 if i == 0 else 20
                    a(f"v_pk_mul_f32 {vr(c+2*p,2)}, {vr(c+2*p,2)}, {vr(rs,2)} op_sel_hi:[1,0]")
            for p in range(8):
                a(f"v_cvt_pk_bf16_f32 v{c+p}, v{c+2*p}, v{c+2*p+1}")
            if vmode:
                a(f"buffer_store_dwordx4 {vr(c,4)}, v18, s[20:23], s46 offen")
                a(f"buffer_store_dwordx4 {vr(c+4,4)}, v18, s[20:23], s47 offen")
            else:
                for g in range(4):
                    a(f"buffer_store_dwordx2 {vr(c+2*g,2)}, v18, s[20:23], s46 offen offset:{g*512}")
    a("s_endpgm")
    a.label(f"{L}_w0")
    a("s_waitcnt vmcnt(0) lgkmcnt(0)")
    a(f"s_branch {L}_bar")

def router(a):
    a.label("k1_router")
    a("v_lshlrev_b32 v2, 4, v1")
    a("v_and_b32 v3, 15, v1")
    a("v_lshlrev_b32 v4, 4, v3")
    a("s_lshl_b32 s28, s25, 2")
    a("s_add_u32 s28, s28, s24")
    a("s_mul_i32 s28, s28, 40960")
    a("s_mul_i32 s30, s24, 40960")
    a("s_waitcnt lgkmcnt(0)")
    srd(a, 12, 4, X_BYTES)
    srd(a, 16, 8, WR_BYTES)
    srd(a, 20, 10, WS_USED)
    a("s_mov_b32 m0, s30")
    a("s_mov_b32 s27, 0")
    for i in range(5):
        a(f"buffer_load_dwordx4 {vr(32+4*i,4)}, v4, s[16:19], 0 offen offset:{i*256}")
    a.label("k1r_ld")
    a("buffer_load_dwordx4 v2, s[12:15], s28 offen lds")
    a("s_addk_i32 m0, 0x400")
    a("s_addk_i32 s28, 0x400")
    a("s_add_u32 s27, s27, 1")
    a("s_cmp_lt_u32 s27, 40")
    a("s_cbranch_scc1 k1r_ld")
    a("v_lshrrev_b32 v5, 4, v1")
    a("v_mul_u32_u24 v5, 1280, v5")
    a("v_add3_u32 v5, v5, v4, s30")
    a("s_mov_b32 s34, 0x3f803f80")
    a("s_mov_b32 s40, 0x00010001")
    a("s_mov_b32 s41, 0x00010001")
    a("v_mov_b32 v9, 0")
    a("v_mov_b32 v10, 0")
    a("v_mov_b32 v11, 0")
    a("v_mov_b32 v12, 0")
    a("s_waitcnt vmcnt(40)")
    for r in range(20):
        a(f"v_dot2c_f32_bf16 v9, s34, v{32+r}")
    a("s_mov_b32 s27, 0")
    a("s_nop 1")
    for sh in (8, 4, 2, 1):
        a("s_nop 1")
        a(f"v_add_f32_dpp v9, v9, v9 row_ror:{sh} row_mask:0xf bank_mask:0xf")
    a("s_waitcnt vmcnt(0)")
    a.label("k1r_loop")
    for i in range(5):
        a(f"ds_read_b128 {vr(52+4*i,4)}, v5 offset:{i*256}")
    a("v_mov_b32 v6, 0")
    a("v_mov_b32 v7, 0")
    a("v_mov_b32 v8, 0")
    a("v_add_u32 v5, 5120, v5")
    a("s_waitcnt lgkmcnt(0)")
    for r in range(20):
        a(f"v_dot2c_f32_bf16 v6, s34, v{52+r}")
        a(f"v_dot2c_f32_bf16 v7, v{52+r}, v{52+r}")
        a(f"v_dot2c_f32_bf16 v8, v{32+r}, v{52+r}")
    a("s_nop 2")
    for sh in (8, 4, 2, 1):
        for r in (6, 7, 8):
            a(f"v_add_f32_dpp v{r}, v{r}, v{r} row_ror:{sh} row_mask:0xf bank_mask:0xf")
    a("v_cndmask_b32 v10, v10, v6, s[40:41]")
    a("v_cndmask_b32 v11, v11, v7, s[40:41]")
    a("v_cndmask_b32 v12, v12, v8, s[40:41]")
    a("s_lshl_b64 s[40:41], s[40:41], 1")
    a("s_add_u32 s27, s27, 1")
    a("s_cmp_lt_u32 s27, 8")
    a("s_cbranch_scc1 k1r_loop")
    stats_math(a, 10, 11, 14, 15, 16)
    a("v_and_b32 v14, 0xffff0000, v14")
    a("v_rcp_f32 v16, v15")
    a("v_fma_f32 v12, -v14, v9, v12")
    a("v_mul_f32 v12, v12, v16")
    a("v_cvt_pk_bf16_f32 v12, v12, v12")
    a("v_ashrrev_i32 v13, 31, v12")
    a("v_or_b32 v13, 0x80000000, v13")
    a("v_xor_b32 v12, v12, v13")
    a("v_and_b32 v12, 0xffff0000, v12")
    a("v_lshrrev_b32 v17, 4, v1")
    a("v_lshl_add_u32 v17, v3, 2, v17")
    a("s_lshl_b32 s31, s24, 5")
    a("v_add_u32 v17, s31, v17")
    a("s_lshl_b32 s31, s25, 7")
    a("v_add_u32 v18, s31, v17")
    a("v_sub_u32 v19, 2047, v18")
    a("v_lshl_or_b32 v12, v19, 3, v12")
    a("v_lshlrev_b32 v18, 3, v18")
    a("v_lshlrev_b32 v19, 2, v17")
    a("v_lshlrev_b32 v20, 3, v17")
    a("s_barrier")
    a("s_mov_b32 s40, 0x00ff00ff")
    a("s_mov_b32 s41, 0x00ff00ff")
    a("s_mov_b64 exec, s[40:41]")
    a(f"s_mov_b32 s31, {ST_OFF}")
    a("buffer_store_dwordx2 v[14:15], v18, s[20:23], s31 offen")
    a("ds_write_b32 v19, v12")
    a("ds_write_b64 v20, v[14:15] offset:512")
    a("s_mov_b64 exec, -1")
    a("v_lshlrev_b32 v2, 3, v1")
    a("s_waitcnt lgkmcnt(0)")
    a("s_barrier")
    a("ds_read_b64 v[6:7], v2")
    a("v_mov_b32 v9, 0")
    a("s_mov_b32 s27, 0")
    a("s_waitcnt lgkmcnt(0)")
    a.label("k1r_top")
    top8_rounds(a, 6, 7, 8, 31)
    a("s_or_b32 s33, s31, s27")
    a("s_mov_b32 m0, s27")
    a("v_cmp_ne_u32 s[40:41], s31, v6")
    a("v_cmp_ne_u32 s[42:43], s31, v7")
    a("v_writelane_b32 v9, s33, m0")
    a("s_add_u32 s27, s27, 1")
    a("v_cndmask_b32 v6, 0, v6, s[40:41]")
    a("v_cndmask_b32 v7, 0, v7, s[42:43]")
    a("s_cmp_lt_u32 s27, 8")
    a("s_cbranch_scc1 k1r_top")
    a("s_lshl_b32 s31, s24, 1")
    a("s_add_u32 s33, s31, 1")
    a("v_lshlrev_b32 v2, 2, v1")
    a("v_readlane_b32 s36, v9, s31")
    a("v_readlane_b32 s37, v9, s33")
    a("s_lshl_b32 s35, s25, 5")
    a(f"s_add_u32 s35, s35, {CAND_OFF}")
    a("s_mov_b64 exec, 0xff")
    a("buffer_store_dword v9, v2, s[20:23], s35 offen")
    a("s_mov_b64 exec, -1")
    a("s_mov_b32 s40, -1")
    a("s_mov_b32 s41, 0")
    a("v_mov_b32 v3, s37")
    a("v_mov_b32 v4, s36")
    a("v_cndmask_b32 v3, v3, v4, s[40:41]")
    a("v_bfe_u32 v3, v3, 3, 11")
    a("v_sub_u32 v3, 2047, v3")
    a("v_and_b32 v4, 127, v3")
    a("v_lshlrev_b32 v4, 3, v4")
    a("ds_read_b64 v[14:15], v4 offset:512")
    a("v_mul_u32_u24 v3, 1280, v3")
    a("v_and_b32 v5, 31, v1")
    a("v_lshl_add_u32 v6, v5, 4, v3")
    a("v_lshl_add_u32 v7, v5, 3, v3")
    a("buffer_load_dwordx4 v[32:35], v6, s[12:15], 0 offen")
    a("buffer_load_dwordx4 v[36:39], v6, s[12:15], 0 offen offset:512")
    a("buffer_load_dwordx2 v[40:41], v7, s[12:15], 0 offen offset:1024")
    a("v_lshrrev_b32 v3, 5, v1")
    a("v_mul_u32_u24 v3, 1280, v3")
    a("v_lshl_add_u32 v6, v5, 4, v3")
    a("v_lshl_add_u32 v7, v5, 3, v3")
    a("s_lshl_b32 s35, s25, 3")
    a("s_add_u32 s35, s35, s31")
    a("s_mul_i32 s35, s35, 1280")
    a(f"s_add_u32 s35, s35, {XS_OFF}")
    a("s_waitcnt lgkmcnt(0)")
    a("v_rcp_f32 v16, v15")
    a("v_sub_f32 v14, 0, v14")
    a("s_waitcnt vmcnt(0)")
    for r in range(10):
        norm_pair(a, 32 + r, 14, 16, 18)
    a("buffer_store_dwordx4 v[32:35], v6, s[20:23], s35 offen")
    a("buffer_store_dwordx4 v[36:39], v6, s[20:23], s35 offen offset:512")
    a("buffer_store_dwordx2 v[40:41], v7, s[20:23], s35 offen offset:1024")
    a("s_endpgm")

def gen():
    a = Asm()
    a.raw(f".globl {NAME}\n.p2align 8\n.type {NAME},@function")
    a.label(NAME)
    a("s_cmp_ge_u32 s2, 256")
    a("s_cbranch_scc1 k1_exit")
    a("s_load_dwordx4 s[4:7], s[0:1], 0")
    a("s_load_dwordx2 s[8:9], s[0:1], 32")
    a("s_load_dwordx2 s[10:11], s[0:1], 80")
    a("v_lshrrev_b32 v2, 6, v0")
    a("v_and_b32 v1, 63, v0")
    a("s_and_b32 s28, s2, 7")
    a("v_readfirstlane_b32 s24, v2")
    a("s_lshr_b32 s29, s2, 3")
    a("s_lshr_b32 s30, s28, 1")
    a("s_and_b32 s28, s28, 1")
    a("s_lshl_b32 s30, s30, 2")
    a("s_cmp_ge_u32 s29, 30")
    a("s_cbranch_scc0 k1_gemm")
    a("s_lshl_b32 s28, s28, 1")
    a("s_add_u32 s25, s30, s28")
    a("s_add_u32 s25, s25, s29")
    a("s_sub_u32 s25, s25, 30")
    a("s_branch k1_router")
    a.label("k1_exit")
    a("s_endpgm")
    a.label("k1_gemm")
    a("s_mul_i32 s28, s28, 30")
    a("s_add_u32 s28, s28, s29")
    a("s_lshr_b32 s26, s28, 2")
    a("s_and_b32 s28, s28, 3")
    a("s_add_u32 s25, s30, s28")
    a("v_lshrrev_b32 v5, 3, v1")
    a("v_mul_u32_u24 v5, 1280, v5")
    a("v_lshrrev_b32 v6, 4, v1")
    a("v_and_b32 v7, 7, v1")
    a("v_xor_b32 v7, v7, v6")
    a("v_lshl_add_u32 v2, v7, 4, v5")
    a("v_xor_b32 v3, 64, v2")
    a("v_mul_u32_u24 v5, 3840, v6")
    a("v_lshlrev_b32 v7, 2, v6")
    a("v_and_b32 v8, 15, v1")
    a("v_xor_b32 v7, v7, v8")
    a("v_lshl_add_u32 v4, v7, 4, v5")
    a("s_lshl_b32 s28, s25, 2")
    a("s_add_u32 s28, s28, s24")
    a("s_mul_i32 s28, s28, 40960")
    a("s_mul_i32 s29, s24, 61440")
    a("s_lshl_b32 s31, s26, 8")
    a("s_add_u32 s29, s29, s31")
    a("s_lshl_b32 s30, s24, 12")
    a("s_mov_b32 s27, 0")
    a("s_waitcnt lgkmcnt(0)")
    srd(a, 12, 4, X_BYTES)
    srd(a, 16, 6, WQKV_BYTES)
    a.label("k1_pro")
    dma_stage(a)
    a("s_add_u32 s27, s27, 1")
    a("s_cmp_lt_u32 s27, 5")
    a("s_cbranch_scc1 k1_pro")
    srd(a, 20, 10, WS_USED)
    a("s_lshl_b32 s30, s24, 12")
    a("s_mov_b32 s27, 0")
    a("s_mov_b32 s32, 0")
    a("s_mov_b32 s34, 0x3f803f80")
    a("s_mov_b32 s35, 0xfffe0000")
    a("s_mov_b32 s36, 0x8000")
    a("s_and_b32 s38, s24, 1")
    a("s_lshl_b32 s38, s38, 1")
    a("s_lshr_b32 s31, s24, 1")
    a("s_add_u32 s38, s38, s31")
    a("v_and_b32 v18, 31, v1")
    a("v_lshlrev_b32 v18, 7, v18")
    a("v_lshrrev_b32 v19, 5, v1")
    a("v_bfe_u32 v20, v1, 1, 3")
    a("v_xor_b32 v20, v20, v19")
    a("v_lshl_add_u32 v18, v20, 4, v18")
    a("v_add_u32 v5, s30, v18")
    for ks in range(1, 4):
        a(f"v_xor_b32 v{5+ks}, {ks<<5}, v5")
    for ks in range(4):
        a(f"v_xor_b32 v{9+ks}, 0x1000, v{5+ks}")
    a("v_bfe_u32 v20, v1, 2, 2")
    a("v_lshl_add_u32 v21, v19, 3, v20")
    a("v_lshlrev_b32 v21, 8, v21")
    a("v_xor_b32 v20, s38, v20")
    a("v_lshl_add_u32 v21, v20, 6, v21")
    a("v_bfe_u32 v20, v1, 4, 1")
    a("v_lshl_add_u32 v21, v20, 5, v21")
    a("v_and_b32 v20, 3, v1")
    a("v_lshl_add_u32 v21, v20, 3, v21")
    a("v_add_u32 v13, 0x4000, v21")
    a("v_xor_b32 v14, 64, v13")
    for r in (15, 16, 17):
        a(f"v_mov_b32 v{r}, 0")
    for r in range(64, 128):
        a(f"v_mov_b32 v{r}, 0")
    a("s_cmp_lt_u32 s26, 5")
    a(f"s_cselect_b32 s37, {f32(QSCALE)}, 1.0")
    a("s_cmp_ge_u32 s26, 10")
    a("s_cbranch_scc1 k1_vbody")
    gemm_body(a, False)
    a.label("k1_vbody")
    gemm_body(a, True)
    router(a)
    return a
```

```python
from common import *

NAME = "attn_kernel"
LDS = 61440
NPROD, NCONS = 96, 40
GRID = 256 + NPROD + NCONS
CH = 20480
QLO, QHI = 8, 12
KLO = (16, 24); KHI = (20, 28)
V0, V1 = 32, 36
P = 40
C = 48
SS = (64, 80)
O = 96

def dma_chunk(a, lab):
    a("s_mov_b32 m0, s30")
    a("s_nop 0")
    a("buffer_load_dwordx4 v2, s[20:23], s28 offen lds")
    a("s_addk_i32 m0, 10240")
    a("s_cmp_ge_u32 s24, 4")
    a("buffer_load_dwordx4 v3, s[20:23], s28 offen lds")
    a(f"s_cbranch_scc1 {lab}")
    a("s_add_u32 m0, s30, s39")
    a("s_nop 0")
    a("buffer_load_dwordx4 v4, s[20:23], s28 offen lds")
    a.label(lab)
    a(f"s_add_u32 s28, s28, {8*TILE_B}")

def piece_addr(a, dst, p, js, base, t0, t1):
    a(f"v_mul_u32_u24 v{t0}, 3277, v{p}")
    a(f"v_lshrrev_b32 v{t0}, 16, v{t0}")
    a(f"v_mul_u32_u24 v{t1}, 20, v{t0}")
    a(f"v_sub_u32 v{t1}, v{p}, v{t1}")
    a(f"v_lshl_add_u32 v{dst}, v{t1}, 4, s{base}")
    a(f"v_and_b32 v{t1}, 3, v{t0}")
    a(f"v_mad_u32_u24 v{dst}, v{t1}, s{js}, v{dst}")
    a(f"v_lshrrev_b32 v{t0}, 2, v{t0}")
    a(f"v_mad_u32_u24 v{dst}, v{t0}, s44, v{dst}")

def kread(a, st, off):
    a(f"ds_read_b64 {vr(KLO[st],2)}, v5 offset:{off}")
    a(f"ds_read_b64 {vr(KLO[st]+2,2)}, v5 offset:{off+256}")
    a(f"ds_read_b64 {vr(KHI[st],2)}, v5 offset:{off+1024}")

def tile(a, t):
    cur = SS[t % 2]; nxt = SS[(t + 1) % 2]; ks = (t + 1) % 2
    def grp(g, mf, pre=(), post=()):
        b = cur + 4 * g
        a(f"v_exp_f32 v{b}, v{b}")
        a(f"v_exp_f32 v{b+1}, v{b+1}")
        for s in pre: a(s)
        a(mf)
        for s in post:
            if callable(s): s()
            else: a(s)
        a(f"v_exp_f32 v{b+2}, v{b+2}")
        a(f"v_exp_f32 v{b+3}, v{b+3}")
        a(f"v_cvt_pk_bf16_f32 v{P+2*g}, v{b}, v{b+1}")
        a(f"v_cvt_pk_bf16_f32 v{P+2*g+1}, v{b+2}, v{b+3}")
    koff = ((t + 2) % 8) * 1280
    post0 = ["s_mov_b64 exec, s[40:41]",
             f"ds_read_b128 {vr(V0,4)}, v6 offset:{t*1280}",
             f"ds_read_b128 {vr(V1,4)}, v6 offset:{t*1280+640}",
             "s_mov_b64 exec, -1",
             lambda: kread(a, t % 2, koff)]
    grp(0, f"v_mfma_f32_32x32x16_bf16 {vr(O,16)}, {vr(V1,4)}, {vr(P+4,4)}, {vr(O,16)}", post=post0)
    post1 = []
    if t == 5:
        def sync():
            a("s_waitcnt vmcnt(0)")
            a("s_barrier")
            a("s_cmp_ge_u32 s27, 6")
            a("s_cbranch_scc1 k2_nodma")
            dma_chunk(a, "k2_dl")
            a("s_add_u32 s30, s30, s34")
            a.label("k2_nodma")
            a("v_add_u32 v5, s33, v5")
        post1 = [sync]
    if t == 7:
        post1 = ["v_add_u32 v6, s33, v6",
                 "s_mov_b32 s34, s33",
                 "s_add_u32 s32, s32, 1",
                 "s_cmp_eq_u32 s32, 3",
                 "s_cselect_b32 s32, 0, s32",
                 "s_cmp_eq_u32 s32, 2",
                 "s_cselect_b32 s33, s35, s36",
                 "s_add_u32 s27, s27, 1"]
    grp(1, f"v_mfma_f32_32x32x16_bf16 {vr(nxt,16)}, {vr(KLO[ks],4)}, {vr(QLO,4)}, {vr(C,16)}", post=post1)
    grp(2, f"v_mfma_f32_32x32x8_bf16 {vr(nxt,16)}, {vr(KHI[ks],2)}, {vr(QHI,2)}, {vr(nxt,16)}")
    grp(3, f"v_mfma_f32_32x32x16_bf16 {vr(O,16)}, {vr(V0,4)}, {vr(P,4)}, {vr(O,16)}", pre=["s_waitcnt lgkmcnt(0)"])

def rowmax16(a, src, dst, t):
    for i in range(0, 16, 2):
        a(f"v_max3_f32 v{dst}, v{src+i}, v{src+i+1}, v{dst}")

def halfmax(a, r, t):
    a(f"v_mov_b32 v{t}, v{r}")
    a("s_nop 1")
    a(f"v_permlane32_swap_b32 v{r}, v{t}")
    a(f"v_max_f32 v{r}, v{r}, v{t}")

def attention(a):
    a("s_and_b32 s25, s2, 7")
    a("s_lshl_b32 s25, s25, 2")
    a("s_lshr_b32 s26, s2, 6")
    a("s_add_u32 s25, s25, s26")
    a("s_bfe_u32 s26, s2, 0x30003")
    a(f"s_mov_b32 s44, {TILE_B}")
    a("s_mul_i32 s45, s25, 1280")
    a("s_add_u32 s45, s45, 40960")
    a("s_mul_i32 s46, s25, 320")
    a("s_add_u32 s46, s46, 81920")
    a("s_movk_i32 s47, 320")
    a("s_movk_i32 s48, 10240")
    piece_addr(a, 2, 0, 47, 45, 112, 113)
    piece_addr(a, 3, 0, 48, 46, 112, 113)
    a("s_cmp_lt_u32 s24, 2")
    a("s_cselect_b32 s49, s47, s48")
    a("s_cselect_b32 s50, s45, s46")
    a("s_cselect_b32 s39, 8, 16")
    a("s_lshl_b32 s39, s39, 10")
    a("v_and_b32 v114, 127, v0")
    a("v_add_u32 v114, 512, v114")
    piece_addr(a, 4, 114, 49, 50, 112, 113)
    a("v_lshrrev_b32 v112, 5, v1")
    a("v_and_b32 v113, 31, v1")
    a("v_lshlrev_b32 v5, 9, v112")
    a("v_lshl_add_u32 v5, v113, 3, v5")
    a("v_lshlrev_b32 v114, 31, v112")
    a("v_or_b32 v114, v114, v5")
    a("s_lshl_b32 s51, s26, 3")
    a("s_add_u32 s51, s51, s24")
    a("s_mul_i32 s31, s51, s44")
    a("s_mul_i32 s29, s25, 1280")
    a("s_add_u32 s31, s31, s29")
    a("s_mov_b32 s28, 0")
    a("s_lshl_b32 s30, s24, 10")
    a("s_waitcnt lgkmcnt(0)")
    srd(a, 20, 10, WS_USED)
    a(f"buffer_load_dwordx2 {vr(QLO,2)}, v5, s[20:23], s31 offen")
    a(f"buffer_load_dwordx2 {vr(QLO+2,2)}, v5, s[20:23], s31 offen offset:256")
    a(f"buffer_load_dwordx2 {vr(QHI,2)}, v114, s[20:23], s31 offen offset:1024")
    dma_chunk(a, "k2_d0")
    a(f"s_add_u32 s30, s30, {CH}")
    dma_chunk(a, "k2_d1")
    a(f"s_add_u32 s30, s30, {CH}")
    a("v_mul_u32_u24 v6, 320, v112")
    a("v_lshl_add_u32 v6, v113, 4, v6")
    a("v_add_u32 v6, 10240, v6")
    a("s_mov_b32 s40, 0x000fffff")
    a("s_mov_b32 s41, 0x000fffff")
    a("s_mov_b32 s27, 0")
    a("s_mov_b32 s32, 0")
    a(f"s_mov_b32 s35, {(-2*CH) & 0xffffffff}")
    a(f"s_mov_b32 s36, {CH}")
    a("s_mov_b32 s33, s36")
    a("s_mov_b32 s34, s35")
    for r in range(8): a(f"v_mov_b32 v{V0+r}, 0x3f803f80")
    for r in range(4): a(f"v_mov_b32 v{P+4+r}, 0")
    for r in range(16): a(f"v_mov_b32 v{O+r}, 0")
    a(f"v_mov_b32 v115, 0xff800000")
    a("s_waitcnt vmcnt(2)")
    a("s_barrier")
    kread(a, 0, 0)
    kread(a, 1, 1280)
    a("s_waitcnt lgkmcnt(3)")
    a(f"v_mfma_f32_32x32x16_bf16 {vr(SS[0],16)}, {vr(KLO[0],4)}, {vr(QLO,4)}, 0")
    a(f"v_mfma_f32_32x32x8_bf16 {vr(SS[0],16)}, {vr(KHI[0],2)}, {vr(QHI,2)}, {vr(SS[0],16)}")
    a("s_nop 11")
    rowmax16(a, SS[0], 115, 116)
    halfmax(a, 115, 116)
    for r in range(16): a(f"v_sub_f32 v{C+r}, 0, v115")
    for r in range(16): a(f"v_sub_f32 v{SS[0]+r}, v{SS[0]+r}, v115")
    a("s_waitcnt lgkmcnt(0)")
    a.raw(".p2align 3")
    a.label("k2_loop")
    for t in range(8): tile(a, t)
    a("s_cmp_lt_u32 s27, 8")
    a("s_cbranch_scc1 k2_loop")
    a("s_nop 0")
    a(f"v_mfma_f32_32x32x16_bf16 {vr(O,16)}, {vr(V1,4)}, {vr(P+4,4)}, {vr(O,16)}")
    a("s_mul_i32 s29, s25, 5")
    a("v_lshrrev_b32 v112, 5, v1")
    a("v_add_u32 v112, s29, v112")
    a("v_bfe_u32 v113, v1, 4, 1")
    a("v_mul_u32_u24 v113, 20480, v113")
    a("v_and_b32 v114, 15, v1")
    a("v_lshl_add_u32 v113, v114, 4, v113")
    for gg in range(3):
        a("v_lshrrev_b32 v114, 3, v112")
        a(f"v_lshl_add_u32 v{116+gg}, v114, 10, v113")
        a("v_and_b32 v114, 3, v112")
        a(f"v_lshl_add_u32 v{116+gg}, v114, 8, v{116+gg}")
        a("v_and_b32 v114, 4, v112")
        a(f"v_lshl_add_u32 v{116+gg}, v114, 1, v{116+gg}")
        if gg < 2: a("v_add_u32 v112, 2, v112")
    a("s_mul_i32 s29, s51, 40960")
    a(f"s_add_u32 s29, s29, {O_OFF}")
    a(f"v_cmp_nlt_f32 vcc, v{O+12}, v7")
    a("s_cbranch_vccnz k2_slow")
    a.label("k2_fin")
    a(f"v_rcp_f32 v114, v{O+12}")
    a("s_nop 0")
    for p in range(6):
        a(f"v_pk_mul_f32 {vr(O+2*p,2)}, {vr(O+2*p,2)}, v[114:115] op_sel_hi:[1,0]")
    for p in range(6):
        a(f"v_cvt_pk_bf16_f32 v{O+p}, v{O+2*p}, v{O+2*p+1}")
    a(f"buffer_store_dwordx2 {vr(O,2)}, v116, s[20:23], s29 offen")
    a(f"buffer_store_dwordx2 {vr(O+2,2)}, v117, s[20:23], s29 offen")
    a("s_mov_b32 exec_hi, 0")
    a(f"buffer_store_dwordx2 {vr(O+4,2)}, v118, s[20:23], s29 offen")
    a("s_endpgm")
    a.label("k2_slow")
    a("v_lshrrev_b32 v112, 5, v1")
    a("v_and_b32 v113, 31, v1")
    a("v_lshlrev_b32 v5, 9, v112")
    a("v_lshl_add_u32 v5, v113, 3, v5")
    a("v_add_u32 v5, s45, v5")
    a("v_mul_u32_u24 v6, 10240, v112")
    a("v_lshl_add_u32 v6, v113, 4, v6")
    a("v_add_u32 v6, s46, v6")
    a("v_add_u32 v4, 20480, v6")
    for r in range(16): a(f"v_mov_b32 v{C+r}, 0")
    a(f"v_mov_b32 v115, 0xff800000")
    a("s_mov_b32 s32, 0")
    a.label("k2_s_pass")
    a("s_mov_b32 s28, 0")
    a.label("k2_s_loop")
    a(f"buffer_load_dwordx2 {vr(KLO[0],2)}, v5, s[20:23], s28 offen")
    a(f"buffer_load_dwordx2 {vr(KLO[0]+2,2)}, v5, s[20:23], s28 offen offset:256")
    a(f"buffer_load_dwordx2 {vr(KHI[0],2)}, v5, s[20:23], s28 offen offset:1024")
    a("s_mov_b64 exec, s[40:41]")
    a(f"buffer_load_dwordx4 {vr(V0,4)}, v6, s[20:23], s28 offen")
    a(f"buffer_load_dwordx4 {vr(V1,4)}, v4, s[20:23], s28 offen")
    a("s_mov_b64 exec, -1")
    a("s_waitcnt vmcnt(0)")
    a(f"v_mfma_f32_32x32x16_bf16 {vr(SS[0],16)}, {vr(KLO[0],4)}, {vr(QLO,4)}, {vr(C,16)}")
    a(f"v_mfma_f32_32x32x8_bf16 {vr(SS[0],16)}, {vr(KHI[0],2)}, {vr(QHI,2)}, {vr(SS[0],16)}")
    a("s_nop 11")
    a("s_cmp_eq_u32 s32, 0")
    a("s_cbranch_scc0 k2_s_p2")
    rowmax16(a, SS[0], 115, 116)
    a("s_branch k2_s_next")
    a.label("k2_s_p2")
    for r in range(16): a(f"v_exp_f32 v{SS[0]+r}, v{SS[0]+r}")
    a("s_nop 0")
    for r in range(8): a(f"v_cvt_pk_bf16_f32 v{P+r}, v{SS[0]+2*r}, v{SS[0]+2*r+1}")
    a("s_nop 1")
    a(f"v_mfma_f32_32x32x16_bf16 {vr(O,16)}, {vr(V0,4)}, {vr(P,4)}, {vr(O,16)}")
    a(f"v_mfma_f32_32x32x16_bf16 {vr(O,16)}, {vr(V1,4)}, {vr(P+4,4)}, {vr(O,16)}")
    a.label("k2_s_next")
    a(f"s_add_u32 s28, s28, {TILE_B}")
    a(f"s_cmp_lt_u32 s28, {64*TILE_B}")
    a("s_cbranch_scc1 k2_s_loop")
    a("s_nop 11")
    a("s_cmp_eq_u32 s32, 0")
    a("s_cbranch_scc0 k2_fin")
    halfmax(a, 115, 119)
    for r in range(16): a(f"v_sub_f32 v{C+r}, 0, v115")
    for r in range(16): a(f"v_mov_b32 v{O+r}, 0")
    a("s_mov_b32 s32, 1")
    a("s_branch k2_s_pass")

def silu_bf16(a, x, t):
    a(f"v_mul_f32 v{t}, {f32(-math.log2(math.e))}, v{x}")
    a(f"v_exp_f32 v{t}, v{t}")
    a("s_nop 0")
    a(f"v_add_f32 v{t}, 1.0, v{t}")
    a(f"v_rcp_f32 v{t}, v{t}")
    a("s_nop 0")
    a(f"v_mul_f32 v{x}, v{x}, v{t}")
    a(f"v_cvt_pk_bf16_f32 v{x}, v{x}, v{x}")
    a(f"v_and_b32 v{x}, 0xffff0000, v{x}")

def rnd_bf16(a, x):
    a(f"v_cvt_pk_bf16_f32 v{x}, v{x}, v{x}")
    a(f"v_and_b32 v{x}, 0xffff0000, v{x}")

def producer(a):
    a.label("k2_prod")
    a("s_load_dwordx4 s[4:7], s[0:1], 40")
    a("s_load_dwordx2 s[8:9], s[0:1], 72")
    a("s_sub_u32 s25, s2, 256")
    a("s_and_b32 s26, s25, 7")
    a("s_mul_i32 s26, s26, 12")
    a("s_lshr_b32 s27, s25, 3")
    a("s_add_u32 s26, s26, s27")
    a("s_lshl_b32 s26, s26, 5")
    a("v_lshrrev_b32 v2, 1, v0")
    a("v_mul_u32_u24 v2, 3072, v2")
    a("v_and_b32 v3, 1, v0")
    a("v_lshl_add_u32 v2, v3, 4, v2")
    a("v_lshlrev_b32 v3, 3, v1")
    a("s_lshl_b32 s30, s24, 10")
    a("s_waitcnt lgkmcnt(0)")
    srd(a, 12, 4, WG_BYTES)
    srd(a, 16, 6, WG_BYTES)
    srd(a, 20, 10, WS_USED)
    a(f"s_mov_b32 s31, {CAND_OFF}")
    a("buffer_load_dwordx2 v[6:7], v3, s[20:23], s31 offen")
    a("s_mov_b32 s28, s26")
    for i in range(3):
        if i == 2:
            a("s_cmp_ge_u32 s24, 4")
            a("s_cbranch_scc1 k2p_wait")
        a(f"s_add_u32 m0, s30, {i*8192}")
        a("s_nop 0")
        a("buffer_load_dwordx4 v2, s[12:15], s28 offen lds")
        a("s_addk_i32 m0, 20480")
        a("s_nop 0")
        a("buffer_load_dwordx4 v2, s[16:19], s28 offen lds")
        a(f"s_add_u32 s28, s28, {256*3072}")
    a("s_cmp_eq_u32 s24, 0")
    a("s_cbranch_scc1 k2p_w0")
    a.label("k2p_wait")
    a("s_waitcnt vmcnt(0)")
    a("s_barrier")
    a("s_endpgm")
    a.label("k2p_w0")
    a("v_mov_b32 v9, 0")
    a("s_mov_b32 s27, 0")
    a("s_mov_b32 s44, 0x01010101")
    a("s_mov_b32 s45, 0x01010101")
    a("s_waitcnt vmcnt(6)")
    a.label("k2p_top")
    top8_rounds(a, 6, 7, 8, 31)
    a("s_add_u32 s27, s27, 1")
    a("s_nop 0")
    a("v_cmp_ne_u32 s[40:41], s31, v6")
    a("v_cmp_ne_u32 s[42:43], s31, v7")
    a("v_mov_b32 v8, s31")
    a("v_cndmask_b32 v9, v9, v8, s[44:45]")
    a("v_cndmask_b32 v6, 0, v6, s[40:41]")
    a("v_cndmask_b32 v7, 0, v7, s[42:43]")
    a("s_lshl_b64 s[44:45], s[44:45], 1")
    a("s_cmp_lt_u32 s27, 8")
    a("s_cbranch_scc1 k2p_top")
    a("v_bfe_u32 v6, v9, 10, 4")
    a("v_sub_u32 v6, 15, v6")
    a("v_and_b32 v7, 7, v9")
    a("v_lshl_or_b32 v6, v6, 3, v7")
    a("v_mul_u32_u24 v6, 1280, v6")
    a("v_lshrrev_b32 v7, 4, v1")
    a("v_lshl_add_u32 v6, v7, 4, v6")
    a(f"s_mov_b32 s31, {XS_OFF}")
    for ks in range(20):
        a(f"buffer_load_dwordx4 {vr(32+4*ks,4)}, v6, s[20:23], s31 offen offset:{ks*64}")
    a("v_and_b32 v4, 15, v1")
    a("v_lshlrev_b32 v5, 3, v4")
    a("v_lshl_add_u32 v5, v7, 8, v5")
    for r in range(8): a(f"v_mov_b32 v{12+r}, 0")
    a("s_waitcnt vmcnt(0)")
    a("s_barrier")
    for ks in range(20):
        b = 20 if ks % 2 == 0 else 112
        a(f"ds_read_b64_tr_b16 {vr(b,2)}, v5 offset:{ks*1024}")
        a(f"ds_read_b64_tr_b16 {vr(b+2,2)}, v5 offset:{ks*1024+128}")
        a(f"ds_read_b64_tr_b16 {vr(b+4,2)}, v5 offset:{20480+ks*1024}")
        a(f"ds_read_b64_tr_b16 {vr(b+6,2)}, v5 offset:{20480+ks*1024+128}")
        if ks > 0:
            pb = 132 - b
            a("s_waitcnt lgkmcnt(4)")
            a(f"v_mfma_f32_16x16x32_bf16 v[12:15], {vr(pb,4)}, {vr(32+4*(ks-1),4)}, v[12:15]")
            a(f"v_mfma_f32_16x16x32_bf16 v[16:19], {vr(pb+4,4)}, {vr(32+4*(ks-1),4)}, v[16:19]")
    a("s_waitcnt lgkmcnt(0)")
    a(f"v_mfma_f32_16x16x32_bf16 v[12:15], v[112:115], {vr(32+4*19,4)}, v[12:15]")
    a(f"v_mfma_f32_16x16x32_bf16 v[16:19], v[116:119], {vr(32+4*19,4)}, v[16:19]")
    a("v_mul_u32_u24 v4, 3072, v4")
    a("v_lshl_add_u32 v4, v7, 3, v4")
    a(f"s_add_u32 s26, s26, {H_OFF}")
    a("s_nop 7")
    for r in range(4):
        rnd_bf16(a, 12 + r)
        silu_bf16(a, 12 + r, 20)
        rnd_bf16(a, 16 + r)
        a(f"v_mul_f32 v{12+r}, v{12+r}, v{16+r}")
    a("v_cvt_pk_bf16_f32 v12, v12, v13")
    a("v_cvt_pk_bf16_f32 v13, v14, v15")
    a("s_mov_b32 s40, 0x00ff00ff")
    a("s_mov_b32 s41, 0x00ff00ff")
    a("s_mov_b64 exec, s[40:41]")
    a("buffer_store_dwordx2 v[12:13], v4, s[20:23], s26 offen sc1")
    a("s_cmp_lg_u32 s25, 0")
    a("s_cbranch_scc1 k2p_pub")
    a("s_mov_b64 exec, 0xff")
    a("v_lshlrev_b32 v4, 2, v1")
    a(f"s_mov_b32 s31, {SEL_OFF}")
    a("buffer_store_dword v9, v4, s[20:23], s31 offen sc1")
    a.label("k2p_pub")
    a("s_mov_b64 exec, 1")
    a("v_mov_b32 v4, 0")
    a("v_mov_b32 v5, 1")
    a("s_waitcnt vmcnt(0)")
    a("global_atomic_add v4, v5, s[8:9]")
    a("s_endpgm")

def consumer(a):
    a.label("k2_cons")
    a("s_load_dwordx2 s[4:5], s[0:1], 56")
    a("s_load_dwordx2 s[8:9], s[0:1], 72")
    a(f"s_sub_u32 s25, s2, {256+NPROD}")
    a("s_and_b32 s26, s25, 7")
    a("s_mul_i32 s26, s26, 5")
    a("s_lshr_b32 s27, s25, 3")
    a("s_add_u32 s26, s26, s27")
    a("s_lshl_b32 s26, s26, 5")
    a("v_lshrrev_b32 v2, 1, v0")
    a("v_mul_u32_u24 v2, 1280, v2")
    a("v_and_b32 v3, 1, v0")
    a("v_lshl_add_u32 v2, v3, 4, v2")
    a("s_lshl_b32 s30, s24, 10")
    a("s_waitcnt lgkmcnt(0)")
    srd(a, 12, 4, WG_BYTES)
    srd(a, 20, 10, WS_USED)
    a("s_mov_b32 s28, s26")
    a("s_mov_b32 m0, s30")
    for i in range(6):
        a("s_nop 0")
        a("buffer_load_dwordx4 v2, s[12:15], s28 offen lds")
        a("s_addk_i32 m0, 8192")
        a(f"s_add_u32 s28, s28, {256*1280}")
    a("v_lshrrev_b32 v7, 4, v1")
    a("v_and_b32 v4, 15, v1")
    a("v_lshlrev_b32 v5, 3, v4")
    a("v_lshl_add_u32 v5, v7, 8, v5")
    a("v_add_u32 v5, s30, v5")
    a("v_and_b32 v8, 7, v1")
    a("v_mul_u32_u24 v6, 3072, v8")
    a("v_lshl_add_u32 v6, v7, 4, v6")
    a("v_lshlrev_b32 v8, 2, v8")
    a("s_lshl_b32 s29, s24, 6")
    a(f"s_add_u32 s29, s29, {H_OFF}")
    a("v_mov_b32 v10, 0")
    a("s_cmp_lg_u32 s24, 0")
    a("s_cbranch_scc1 k2c_go")
    a("s_mov_b32 s27, 0")
    a.label("k2c_poll")
    a("s_sleep 4")
    a("global_load_dword v11, v10, s[8:9] sc1")
    a("s_add_u32 s27, s27, 1")
    a("s_waitcnt vmcnt(0)")
    a("v_readfirstlane_b32 s31, v11")
    a("s_cmp_ge_u32 s27, 0x400000")
    a("s_cbranch_scc1 k2c_go")
    a(f"s_cmp_lt_u32 s31, {NPROD}")
    a("s_cbranch_scc1 k2c_poll")
    a.label("k2c_go")
    a("s_barrier")
    for i in range(6):
        a(f"buffer_load_dwordx4 {vr(32+4*i,4)}, v6, s[20:23], s29 offen offset:{i*512} sc1")
    a(f"s_mov_b32 s31, {SEL_OFF}")
    a("buffer_load_dword v9, v8, s[20:23], s31 offen sc1")
    a("s_waitcnt vmcnt(7)")
    for i in range(6):
        a(f"ds_read_b64_tr_b16 {vr(64+4*i,2)}, v5 offset:{i*8192}")
        a(f"ds_read_b64_tr_b16 {vr(66+4*i,2)}, v5 offset:{i*8192+128}")
    a("v_lshlrev_b32 v2, 4, v1")
    a("v_add_u32 v3, s30, v2")
    a("s_waitcnt vmcnt(0) lgkmcnt(0)")
    for i in range(6):
        a(f"v_mfma_f32_16x16x32_bf16 v[12:15], {vr(64+4*i,4)}, {vr(32+4*i,4)}, " + ("0" if i == 0 else "v[12:15]"))
    a("s_nop 7")
    a("ds_write_b128 v3, v[12:15] offset:49152")
    a("s_waitcnt lgkmcnt(0)")
    a("s_barrier")
    a("s_cmp_lg_u32 s24, 0")
    a("s_cbranch_scc1 k2_exit")
    for w in range(1, 8):
        a(f"ds_read_b128 {vr(32+4*w,4)}, v2 offset:{49152+w*1024}")
    a("v_and_b32 v9, 0xffff0000, v9")
    a("v_ashrrev_i32 v10, 31, v9")
    a("v_not_b32 v10, v10")
    a("v_or_b32 v10, 0x80000000, v10")
    a("v_xor_b32 v9, v9, v10")
    a("v_and_b32 v9, 0xffff0000, v9")
    a(f"v_mul_f32 v9, {f32(-math.log2(math.e))}, v9")
    a("v_exp_f32 v9, v9")
    a("v_mul_u32_u24 v4, 1280, v4")
    a("v_add_f32 v9, 1.0, v9")
    a("v_rcp_f32 v9, v9")
    a("v_lshl_add_u32 v4, v7, 3, v4")
    rnd_bf16(a, 9)
    a(f"s_add_u32 s26, s26, {UPD_OFF}")
    a("s_waitcnt lgkmcnt(0)")
    for w in range(1, 8):
        a(f"v_pk_add_f32 v[12:13], v[12:13], {vr(32+4*w,2)}")
        a(f"v_pk_add_f32 v[14:15], v[14:15], {vr(34+4*w,2)}")
    for r in range(4):
        rnd_bf16(a, 12 + r)
        a(f"v_mul_f32 v{12+r}, v{12+r}, v9")
    a("v_cvt_pk_bf16_f32 v12, v12, v13")
    a("v_cvt_pk_bf16_f32 v13, v14, v15")
    a("s_mov_b32 s40, 0x00ff00ff")
    a("s_mov_b32 s41, 0x00ff00ff")
    a("s_mov_b64 exec, s[40:41]")
    a("buffer_store_dwordx2 v[12:13], v4, s[20:23], s26 offen")
    a.label("k2_exit")
    a("s_endpgm")

def gen():
    a = Asm()
    a.raw(f".globl {NAME}\n.p2align 8\n.type {NAME},@function")
    a.label(NAME)
    a("s_load_dwordx2 s[10:11], s[0:1], 80")
    a("v_lshrrev_b32 v2, 6, v0")
    a("v_and_b32 v1, 63, v0")
    a(f"v_mov_b32 v7, {f32(2.0**64)}")
    a("v_readfirstlane_b32 s24, v2")
    a("s_cmp_ge_u32 s2, 256")
    a("s_cbranch_scc1 k2_other")
    attention(a)
    a.label("k2_other")
    a(f"s_cmp_ge_u32 s2, {GRID}")
    a("s_cbranch_scc1 k2_exit")
    a(f"s_cmp_ge_u32 s2, {256+NPROD}")
    a("s_cbranch_scc1 k2_cons")
    producer(a)
    consumer(a)
    return a
```

```python
from common import *

NAME = "outp_kernel"
LDS = 102400
VGPR = 192
OF = 96
WB = (16, 36)
ACC = 56
XR = 76
UR = 86

def wreads(a, st, ks):
    b = WB[st]
    base = 7 if ks < 10 else 8
    off = (ks % 10) * 5120
    for T in range(5):
        a(f"ds_read_b64_tr_b16 {vr(b+4*T,2)}, v{base} offset:{off+T*32}")
        a(f"ds_read_b64_tr_b16 {vr(b+4*T+2,2)}, v{base} offset:{off+2560+T*32}")

def gate_ops(p):
    t = 176 + 4 * (p % 2); u = t + 2
    x = XR + p; d = UR + p
    L = [f"v_lshlrev_b32 v{t}, 16, v{x}",
         f"v_and_b32 v{t+1}, 0xffff0000, v{x}",
         f"v_pk_add_f32 {vr(t,2)}, {vr(t,2)}, v[10:11] op_sel_hi:[1,0]",
         f"v_cvt_pk_bf16_f32 v{u}, v{t}, v{t+1}",
         f"v_lshlrev_b32 v{t}, 16, v{u}",
         f"v_and_b32 v{t+1}, 0xffff0000, v{u}",
         f"v_pk_mul_f32 {vr(t,2)}, {vr(t,2)}, v[12:13] op_sel_hi:[1,0]",
         f"v_cvt_pk_bf16_f32 v{u}, v{t}, v{t+1}",
         f"v_lshlrev_b32 v{t}, 16, v{u}",
         f"v_and_b32 v{t+1}, 0xffff0000, v{u}",
         f"v_lshlrev_b32 v{u}, 16, v{d}",
         f"v_and_b32 v{u+1}, 0xffff0000, v{d}",
         f"v_pk_add_f32 {vr(t,2)}, {vr(t,2)}, {vr(u,2)}",
         f"v_cvt_pk_bf16_f32 v{u}, v{t}, v{t+1}",
         f"v_lshlrev_b32 v{t}, 16, v{u}",
         f"v_and_b32 v{t+1}, 0xffff0000, v{u}",
         f"v_pk_mul_f32 {vr(u,2)}, {vr(t,2)}, v[14:15] op_sel_hi:[1,0]",
         f"v_exp_f32 v{u}, v{u}",
         f"v_exp_f32 v{u+1}, v{u+1}",
         f"v_add_f32 v{u}, 1.0, v{u}",
         f"v_add_f32 v{u+1}, 1.0, v{u+1}",
         f"v_rcp_f32 v{u}, v{u}",
         f"v_rcp_f32 v{u+1}, v{u+1}",
         "s_nop 0",
         f"v_pk_mul_f32 {vr(t,2)}, {vr(t,2)}, {vr(u,2)}",
         f"v_cvt_pk_bf16_f32 v{d}, v{t}, v{t+1}"]
    return L

def gen():
    a = Asm()
    a.raw(f".globl {NAME}\n.p2align 8\n.type {NAME},@function")
    a.label(NAME)
    a("s_cmp_ge_u32 s2, 256")
    a("s_cbranch_scc1 k3_exit")
    a("s_load_dwordx2 s[4:5], s[0:1], 0")
    a("s_load_dwordx2 s[6:7], s[0:1], 16")
    a("s_load_dwordx2 s[8:9], s[0:1], 64")
    a("s_load_dwordx2 s[10:11], s[0:1], 80")
    a("v_lshrrev_b32 v2, 6, v0")
    a("v_and_b32 v1, 63, v0")
    a("s_bfe_u32 s25, s2, 0x20001")
    a("v_readfirstlane_b32 s24, v2")
    a("s_lshl_b32 s25, s25, 3")
    a("s_lshr_b32 s26, s2, 5")
    a("s_add_u32 s25, s25, s26")
    a("s_and_b32 s26, s2, 1")
    a("s_lshl_b32 s26, s26, 2")
    a("s_bfe_u32 s27, s2, 0x20003")
    a("s_add_u32 s26, s26, s27")
    for ii in range(5):
        a(f"v_add_u32 v9, {ii*64}, v1")
        a("v_mul_u32_u24 v10, 6554, v9")
        a("v_lshrrev_b32 v10, 16, v10")
        a("v_mul_u32_u24 v11, 1120, v10")
        a(f"v_lshl_add_u32 v{2+ii}, v9, 4, v11")
    a("v_lshlrev_b32 v9, 4, v1")
    a("s_lshl_b32 s27, s25, 2")
    a("s_add_u32 s27, s27, s24")
    a("s_mul_i32 s28, s27, 20480")
    a(f"s_add_u32 s28, s28, {O_OFF}")
    a("s_mul_i32 s29, s26, 160")
    a("s_mul_i32 s31, s24, 40960")
    a("s_add_u32 s29, s29, s31")
    a("s_mul_i32 s30, s24, 5120")
    a("v_and_b32 v10, 15, v1")
    a("v_lshrrev_b32 v11, 4, v1")
    a("v_mul_u32_u24 v184, 1280, v10")
    a("v_lshl_add_u32 v184, v11, 3, v184")
    a("s_mul_i32 s32, s27, 20480")
    a("s_mul_i32 s33, s26, 160")
    a("s_add_u32 s32, s32, s33")
    a("s_lshl_b32 s34, s27, 4")
    a("v_add_u32 v185, s34, v10")
    a("v_lshlrev_b32 v186, 3, v185")
    a("v_lshlrev_b32 v187, 3, v11")
    a("s_waitcnt lgkmcnt(0)")
    a(f"s_add_u32 s36, s10, {SEL_OFF}")
    a("s_addc_u32 s37, s11, 0")
    a("s_load_dwordx8 s[40:47], s[36:37], 0")
    srd(a, 12, 4, X_BYTES)
    srd(a, 16, 6, WO_BYTES)
    srd(a, 20, 10, WS_USED)
    a(f"s_mov_b32 s31, {ST_OFF}")
    a("buffer_load_dwordx2 v[10:11], v186, s[20:23], s31 offen")
    for T in range(5):
        a(f"buffer_load_dwordx2 {vr(XR+2*T,2)}, v184, s[12:15], s32 offen offset:{T*32}")
    for j in range(5):
        a("s_mov_b32 m0, s30")
        a("s_add_u32 s30, s30, 20480")
        for ii in range(5):
            a(f"buffer_load_dwordx4 v{2+ii}, s[16:19], s29 offen lds")
            if ii < 4:
                a("s_addk_i32 m0, 0x400")
                a(f"buffer_load_dwordx4 {vr(OF+16*j+4*ii,4)}, v9, s[20:23], s28 offen offset:{ii*1024}")
        a("s_add_u32 s29, s29, 163840")
        a("s_addk_i32 s28, 0x1000")
        if j == 2:
            a("v_mov_b32 v188, 0x80000000")
            a("v_sub_u32 v185, 2047, v185")
            a("s_waitcnt lgkmcnt(0)")
            for i in range(8):
                a(f"s_bfe_u32 s31, s{40+i}, 0xb0003")
                a(f"v_add_u32 v189, {i*1280}, v187")
                a("v_cmp_eq_u32 s[38:39], s31, v185")
                a("s_nop 1")
                a("v_cndmask_b32 v188, v188, v189, s[38:39]")
            a(f"s_add_u32 s31, s33, {UPD_OFF}")
            for T in range(5):
                a(f"buffer_load_dwordx2 {vr(UR+2*T,2)}, v188, s[20:23], s31 offen offset:{T*32}")
    srd(a, 12, 8, X_BYTES)
    a("v_lshrrev_b32 v7, 2, v1")
    a("v_mul_u32_u24 v7, 160, v7")
    a("v_and_b32 v8, 3, v1")
    a("v_lshl_add_u32 v7, v8, 3, v7")
    a("v_add_u32 v8, 51200, v7")
    a(f"v_mov_b32 v14, {f32(-math.log2(math.e))}")
    waits = [41, 32, 18, 9, 0]
    a(f"s_waitcnt vmcnt({waits[0]})")
    a("s_barrier")
    wreads(a, 0, 0)
    a("v_rcp_f32 v12, v11")
    a("v_sub_f32 v10, 0, v10")
    fill = []
    for p in range(10): fill += gate_ops(p)
    FILL_FROM = 8
    per = (len(fill) + (20 - FILL_FROM) * 5 - 1) // ((20 - FILL_FROM) * 5)
    for ks in range(20):
        a("s_waitcnt lgkmcnt(0)")
        if ks % 4 == 3 and ks < 19:
            a(f"s_waitcnt vmcnt({waits[ks//4+1]})")
            a("s_barrier")
        if ks < 19: wreads(a, (ks + 1) % 2, ks + 1)
        b = WB[ks % 2]
        for T in range(5):
            c = vr(ACC + 4 * T, 4)
            a(f"v_mfma_f32_16x16x32_bf16 {c}, {vr(b+4*T,4)}, {vr(OF+4*ks,4)}, " + ("0" if ks == 0 else c))
            if ks >= FILL_FROM:
                for _ in range(per):
                    if fill: a(fill.pop(0))
    for s in fill: a(s)
    a("s_nop 7")
    for p in range(10):
        c = ACC + 2 * p; t = 176 + 4 * (p % 2); u = t + 2
        a(f"v_cvt_pk_bf16_f32 v{c}, v{c}, v{c+1}")
        a(f"v_lshlrev_b32 v{t}, 16, v{UR+p}")
        a(f"v_and_b32 v{t+1}, 0xffff0000, v{UR+p}")
        a(f"v_and_b32 v{c+1}, 0xffff0000, v{c}")
        a(f"v_lshlrev_b32 v{c}, 16, v{c}")
        a(f"v_pk_mul_f32 {vr(c,2)}, {vr(c,2)}, {vr(t,2)}")
        a(f"v_lshlrev_b32 v{u}, 16, v{XR+p}")
        a(f"v_cvt_pk_bf16_f32 v{c}, v{c}, v{c+1}")
        a(f"v_and_b32 v{u+1}, 0xffff0000, v{XR+p}")
        a(f"v_and_b32 v{c+1}, 0xffff0000, v{c}")
        a(f"v_lshlrev_b32 v{c}, 16, v{c}")
        a(f"v_pk_add_f32 {vr(c,2)}, {vr(c,2)}, {vr(u,2)}")
        a(f"v_cvt_pk_bf16_f32 v{XR+p}, v{c}, v{c+1}")
        if p % 2 == 1:
            a(f"buffer_store_dwordx2 {vr(XR+p-1,2)}, v184, s[12:15], s32 offen offset:{(p//2)*32}")
    a.label("k3_exit")
    a("s_endpgm")
    return a
```

```python
import sys, importlib
from common import *
import k1
parts = [("qkv_kernel", k1, (256,1,1), k1.BLOCK, k1.LDS, k1.VGPR, 64)]
try:
    import k2
    parts.append(("attn_kernel", k2, (k2.GRID,1,1), 512, k2.LDS, 128, 80))
except ImportError: pass
try:
    import k3
    parts.append(("outp_kernel", k3, (256,1,1), k3.BLOCK, k3.LDS, k3.VGPR, 64))
except ImportError: pass
hdr = open("recurrent_scan__mha_block__moe_arch_mod__prompt.s.ref").read().split("\n")
out = [l for l in hdr[:12]]
for name, mod, g, b, lds, vg, sg in parts:
    out.append(f"; @launch kernel={name} grid=({g[0]},{g[1]},{g[2]}) block=({b},1,1) lds={lds}")
out.append('.amdgcn_target "amdgcn-amd-amdhsa--gfx950"')
out.append(".text")
txt = "\n".join(out) + "\n"
for name, mod, g, b, lds, vg, sg in parts:
    txt += mod.gen().text()
txt += "code_end:\n    s_endpgm\n"
txt += '.section .rodata,"a"\n'
for name, mod, g, b, lds, vg, sg in parts:
    txt += desc(name, vg, 100 if STAMP else sg)
dst = sys.argv[1] if len(sys.argv) > 1 else "recurrent_scan__mha_block__moe_arch_mod__prompt.s"
open(dst, "w").write(txt)
print("wrote", dst, len(txt))
```

```python
import math, struct

class Asm:
    def __init__(self):
        self.lines = []
    def __call__(self, s):
        for l in s.strip("\n").split("\n"):
            self.lines.append("    " + l.strip())
    def label(self, l):
        self.lines.append(l + ":")
    def raw(self, s):
        self.lines.append(s)
    def text(self):
        return "\n".join(self.lines) + "\n"

def f32(x):
    return "0x%08x" % struct.unpack("<I", struct.pack("<f", x))[0]

def vr(a, n):
    return f"v[{a}:{a+n-1}]"
def sr(a, n):
    return f"s[{a}:{a+n-1}]"

S, D, H, DH, F = 2048, 640, 32, 20, 1536
X_BYTES = S * D * 2
WQKV_BYTES = D * 3 * D * 2
WO_BYTES = D * D * 2
WR_BYTES = D * 2
WG_BYTES = D * F * 2
TILE_B = 122880
IMG_OFF = 0
O_OFF = IMG_OFF + 64 * TILE_B
ST_OFF = O_OFF + X_BYTES
CAND_OFF = ST_OFF + 16384
SEL_OFF = CAND_OFF + 1024
H_OFF = SEL_OFF + 1024
UPD_OFF = H_OFF + 32768
XS_OFF = UPD_OFF + 16384
CNT_OFF = XS_OFF + 128 * 1280
PART_OFF = CNT_OFF + 4096
NMOE = 96
NREP = 4
WS_USED = PART_OFF + NREP * 20480
QSCALE = math.log2(math.e) / math.sqrt(DH)

def srd(a, base, ptr, nbytes):
    a(f"s_mov_b32 s{base}, s{ptr}")
    a(f"s_mov_b32 s{base+1}, s{ptr+1}")
    a(f"s_mov_b32 s{base+2}, {nbytes}")
    a(f"s_mov_b32 s{base+3}, 0x20000")

def desc(name, vgpr, sgpr):
    acc = (vgpr + 3) // 4 * 4
    return f""".p2align 6
.amdhsa_kernel {name}
  .amdhsa_next_free_vgpr {vgpr}
  .amdhsa_next_free_sgpr {sgpr}
  .amdhsa_accum_offset {acc}
  .amdhsa_group_segment_fixed_size 0
  .amdhsa_kernarg_size 88
  .amdhsa_user_sgpr_count 2
  .amdhsa_user_sgpr_kernarg_segment_ptr 1
  .amdhsa_system_sgpr_workgroup_id_x 1
.end_amdhsa_kernel
"""

def top8_rounds(a, k0, k1, tmp, sdst, per_round=None):
    a(f"v_max_u32 v{tmp}, v{k0}, v{k1}")
    for dpp in ("row_ror:8 row_mask:0xf bank_mask:0xf", "row_ror:4 row_mask:0xf bank_mask:0xf",
                "row_ror:2 row_mask:0xf bank_mask:0xf", "row_ror:1 row_mask:0xf bank_mask:0xf",
                "row_bcast:15 row_mask:0xa bank_mask:0xf", "row_bcast:31 row_mask:0xc bank_mask:0xf"):
        a("s_nop 1")
        a(f"v_max_u32_dpp v{tmp}, v{tmp}, v{tmp} {dpp}")
    a("s_nop 1")
    a(f"v_readlane_b32 s{sdst}, v{tmp}, 63")

def norm_pair(a, d, negm, rstd, t):
    a(f"v_lshlrev_b32 v{t}, 16, v{d}")
    a(f"v_and_b32 v{t+1}, 0xffff0000, v{d}")
    a(f"v_pk_add_f32 {vr(t,2)}, {vr(t,2)}, {vr(negm,2)} op_sel_hi:[1,0]")
    a(f"v_cvt_pk_bf16_f32 v{d}, v{t}, v{t+1}")
    a(f"v_lshlrev_b32 v{t}, 16, v{d}")
    a(f"v_and_b32 v{t+1}, 0xffff0000, v{d}")
    a(f"v_pk_mul_f32 {vr(t,2)}, {vr(t,2)}, {vr(rstd,2)} op_sel_hi:[1,0]")
    a(f"v_cvt_pk_bf16_f32 v{d}, v{t}, v{t+1}")

import os
STAMP = int(os.environ.get("STAMP", "0"))
STAMP_OFF = 64 << 20
SB = 64
def stamp(a, i):
    if not STAMP: return
    if i == 0:
        a(f"s_memrealtime s[{SB}:{SB+1}]")
        for j in range(2, 12): a(f"s_mov_b32 s{SB+2*j}, 0")
    a(f"s_memtime s[{SB+2+2*i}:{SB+3+2*i}]")
def stamp_end(a, kidx, vt=120):
    if not STAMP: return
    a("s_mov_b64 exec, 1")
    a(f"s_memtime s[{SB+24}:{SB+25}]")
    a(f"s_memrealtime s[{SB+26}:{SB+27}]")
    a("s_lshl_b32 s96, s2, 3")
    a("s_add_u32 s96, s96, s24")
    a("s_lshl_b32 s96, s96, 6")
    a(f"s_add_u32 s96, s96, {STAMP_OFF + kidx * (1<<20)}")
    a(f"v_mov_b32 v{vt}, s96")
    a("s_waitcnt lgkmcnt(0)")
    regs = [SB, SB + 26] + [SB + 2 + 2 * i for i in range(12)]
    for n, r in enumerate(regs):
        a(f"v_mov_b32 v{vt+1}, s{r}")
        a(f"global_store_dword v{vt}, v{vt+1}, s[10:11] offset:{4*n}")
    a("s_getreg_b32 s96, hwreg(HW_REG_HW_ID)")
    a(f"v_mov_b32 v{vt+1}, s96")
    a(f"global_store_dword v{vt}, v{vt+1}, s[10:11] offset:56")
    a("s_waitcnt vmcnt(0)")
```

```python
from common import *

NAME = "qkv_kernel"
NSLOT = 4
EX = NSLOT * 32768
LDS = EX + 2048
BLOCK = 512
ST_FLAG = os.environ.get("K1ST", "")

def dma_stage(a, fill=None):
    seq = [("s_mov_b32 m0, s30", "s_add_u32 s31, s28, 10240", "buffer_load_dwordx4 v2, s[12:15], s28 offen lds"),
           ("s_addk_i32 m0, 0x4000", "s_add_u32 s33, s29, 15360", "buffer_load_dwordx4 v4, s[16:19], s29 offen lds"),
           (f"s_addk_i32 m0, {0x400-0x4000}", "s_addk_i32 s28, 128", "buffer_load_dwordx4 v3, s[12:15], s31 offen lds"),
           ("s_addk_i32 m0, 0x4000", "s_addk_i32 s31, 10240", "buffer_load_dwordx4 v4, s[16:19], s33 offen lds"),
           (f"s_addk_i32 m0, {0x400-0x4000}", "s_addk_i32 s33, 15360", "buffer_load_dwordx4 v2, s[12:15], s31 offen lds"),
           ("s_addk_i32 m0, 0x4000", "s_addk_i32 s31, 10240", "buffer_load_dwordx4 v4, s[16:19], s33 offen lds"),
           (f"s_addk_i32 m0, {0x400-0x4000}", "s_addk_i32 s33, 15360", "buffer_load_dwordx4 v3, s[12:15], s31 offen lds"),
           ("s_addk_i32 m0, 0x4000", "s_add_u32 s29, s29, 245760", "buffer_load_dwordx4 v4, s[16:19], s33 offen lds")]
    for n, g in enumerate(seq):
        for x in g: a(x)
        if fill:
            for x in fill[n]: a(x)
    a("s_add_u32 s30, s30, 0x8000")
    a(f"s_and_b32 s30, s30, {NSLOT*32768-1}")
    a("s_add_u32 s32, s32, 1")
    a("s_cmp_eq_u32 s32, 10")
    a("s_cselect_b32 s28, s34, s28")
    a("s_cselect_b32 s29, s35, s29")

def cs_reads():
    return [f"ds_read_b128 {vr(32+4*i,4)}, v12 offset:{i*1024}" for i in range(4)] + \
           ["v_add_u32 v12, 0x8000, v12", f"v_and_b32 v12, {NSLOT*32768-1}, v12"]
def cs_ops():
    G = []
    for i in range(4):
        L = []
        for d in range(4):
            L.append(f"v_lshlrev_b32 v{24+2*d}, 16, v{32+4*i+d}")
            L.append(f"v_and_b32 v{25+2*d}, v15, v{32+4*i+d}")
        for d in range(8):
            L.append(f"v_add_f32 v{16+d}, v{16+d}, v{24+d}")
        G.append(L)
    return G

X = os.environ.get("K1X", "")
VGPR = 160
def read_list(ks):
    b = 32 + 16 * ks
    return [f"ds_read_b128 {vr(b,4)}, v{5+ks}",
            f"ds_read_b64_tr_b16 {vr(b+8,2)}, v13 offset:{ks*4096}",
            f"ds_read_b64_tr_b16 {vr(b+10,2)}, v13 offset:{ks*4096+1024}",
            f"ds_read_b64_tr_b16 {vr(b+12,2)}, v14 offset:{ks*4096}",
            f"ds_read_b64_tr_b16 {vr(b+14,2)}, v14 offset:{ks*4096+1024}",
            f"ds_read_b128 {vr(b+4,4)}, v{5+ks} offset:4096"]

def acc(i, j):
    return 96 + (2 * i + j) * 16

def mm(a, ks, vmode, extra=None):
    b = 32 + 16 * ks
    rd = read_list((ks + 2) % 4)
    rds = [rd[0:2], rd[2:4], rd[4:5], rd[5:6]]
    n = 0
    for i in range(2):
        for j in range(2):
            Xr = vr(b + 4 * i, 4); W = vr(b + 8 + 4 * j, 4); C = vr(acc(i, j), 16)
            if "nomm" in X: pass
            elif vmode: a(f"v_mfma_f32_32x32x16_bf16 {C}, {Xr}, {W}, {C}")
            else:     a(f"v_mfma_f32_32x32x16_bf16 {C}, {W}, {Xr}, {C}")
            for r in rds[n]:
                if "nox" in X and "b128" in r: r = "s_nop 0"
                if "now" in X and "tr_b16" in r: r = "s_nop 0"
                a(r)
            if extra:
                for e in extra[n]: a(e)
            n += 1
    if "nocs" not in X: a(f"v_mfma_f32_16x16x32_bf16 v[16:19], v[20:23], {vr(b+8,4)}, v[16:19]")

def stats_math(a, vsum, vsq, vmp, vsd, t0):
    a(f"v_mul_f32 v{vsum}, {f32(1.0/640)}, v{vsum}")
    a(f"v_mul_f32 v{vsq}, {f32(1.0/640)}, v{vsq}")
    a(f"v_fma_f32 v{vsq}, -v{vsum}, v{vsum}, v{vsq}")
    a(f"v_max_f32 v{vsq}, 0, v{vsq}")
    a(f"v_cvt_pk_bf16_f32 v{vmp}, v{vsum}, v{vsum}")
    a(f"v_cvt_pk_bf16_f32 v{t0}, v{vsq}, v{vsq}")
    a(f"v_and_b32 v{t0}, 0xffff0000, v{t0}")
    a(f"v_add_f32 v{t0}, {f32(1e-5)}, v{t0}")
    a(f"v_cvt_pk_bf16_f32 v{t0}, v{t0}, v{t0}")
    a(f"v_and_b32 v{t0}, 0xffff0000, v{t0}")
    a(f"v_sqrt_f32 v{t0}, v{t0}")
    a("s_nop 0")
    a(f"v_cvt_pk_bf16_f32 v{t0}, v{t0}, v{t0}")
    a(f"v_and_b32 v{vsd}, 0xffff0000, v{t0}")

def gemm_body(a, vmode):
    L = "k1v" if vmode else "k1q"
    stamp(a, 3)
    a("s_barrier")
    stamp(a, 4)
    for r in read_list(0) + read_list(1): a(r)
    a.label(f"{L}_loop")
    a("s_and_b32 s32, s27, 3")
    a("s_cmp_eq_u32 s32, 3")
    a("s_cselect_b32 s33, s35, s36")
    a("s_waitcnt lgkmcnt(6)")
    mm(a, 0, vmode, extra=[[], [], ["v_add_u32 v5, s33, v5"], ["v_add_u32 v6, s33, v6"]])
    a("s_waitcnt lgkmcnt(6)")
    mm(a, 1, vmode, extra=[[], [], ["v_add_u32 v7, s33, v7", "v_add_u32 v13, s33, v13"], ["v_add_u32 v14, s33, v14", "v_add_u32 v8, s33, v8"]])
    a("s_add_u32 s27, s27, 1")
    a("s_cmp_eq_u32 s27, 10")
    a("s_waitcnt lgkmcnt(6)")
    a(f"s_cbranch_scc1 {L}_nb")
    a("s_barrier")
    a.label(f"{L}_nb")
    mm(a, 2, vmode)
    a("s_waitcnt lgkmcnt(6)")
    mm(a, 3, vmode)
    a(f"s_cbranch_scc0 {L}_loop")
    stamp(a, 5)
    a("s_waitcnt vmcnt(0)")
    a("v_and_b32 v24, 31, v1")
    a("v_lshlrev_b32 v24, 2, v24")
    a("s_lshr_b32 s31, s24, 1")
    a("s_lshl_b32 s31, s31, 8")
    a(f"s_add_u32 s31, s31, {EX}")
    a("v_add_u32 v9, s31, v24")
    a("s_lshl_b32 s33, s38, 8")
    a(f"s_add_u32 s33, s33, {EX+1024}")
    a("v_lshl_add_u32 v10, v1, 2, s33")
    if vmode:
        a("v_lshrrev_b32 v11, 5, v1")
        a("v_lshl_add_u32 v11, v11, 4, s31")
    a("v_cvt_pk_bf16_f32 v26, v16, v16")
    a("v_mov_b32 v23, 0")
    a("v_and_b32 v26, 0xffff0000, v26")
    a("v_mov_b32 v25, 0")
    a("v_sub_f32 v16, v16, v26")
    a("v_mov_b32 v27, 0")
    a("v_cvt_pk_bf16_f32 v26, -v26, -v16")
    a("v_mov_b32 v29, 0")
    a("ds_write_b32 v10, v26")
    a("v_xor_b32 v10, 256, v10")
    a("s_lshl_b32 s42, s25, 2")
    a("s_and_b32 s43, s24, 2")
    a("s_waitcnt lgkmcnt(0)")
    a("s_barrier")
    a("ds_read_b32 v22, v9")
    a("ds_read_b32 v24, v9 offset:128")
    a("ds_read_b32 v28, v10")
    if not vmode:
        a("ds_read_b32 v30, v9 offset:512")
        a("ds_read_b32 v20, v9 offset:640")
        a("s_waitcnt lgkmcnt(2)")
    else:
        for g in range(8):
            a(f"ds_read_b128 {vr(32+4*g,4)}, v11 offset:{512+32*g}")
        a("s_waitcnt lgkmcnt(8)")
    def corr(i, j):
        M = vr(22 + 2 * i, 2); CS = vr(26 + 2 * j, 2); C = vr(acc(i, j), 16)
        if vmode: a(f"v_mfma_f32_32x32x8_bf16 {C}, {M}, {CS}, {C}")
        else:     a(f"v_mfma_f32_32x32x8_bf16 {C}, {CS}, {M}, {C}")
    corr(0, 0); corr(1, 0); corr(0, 1); corr(1, 1)
    if not vmode:
        a("v_lshrrev_b32 v18, 5, v1")
        a("v_lshlrev_b32 v18, 8, v18")
        a("v_and_b32 v19, 31, v1")
        a("v_lshl_add_u32 v18, v19, 3, v18")
    else:
        a("v_lshrrev_b32 v18, 5, v1")
        a("v_mul_u32_u24 v18, 10240, v18")
        a("v_and_b32 v19, 31, v1")
        a("v_lshl_add_u32 v18, v19, 4, v18")
    a("s_add_u32 s42, s42, s43")
    a(f"s_mul_i32 s42, s42, {TILE_B}")
    a(f"s_add_u32 s43, s42, {TILE_B}")
    a("s_lshl_b32 s44, s26, 2")
    a("s_add_u32 s44, s44, s38")
    a("s_xor_b32 s45, s44, 1")
    a("s_waitcnt lgkmcnt(0)")
    if not vmode:
        a("s_lshl_b32 s44, s44, 11")
        a("s_lshl_b32 s45, s45, 11")
    else:
        a("s_lshl_b32 s44, s44, 9")
        a("s_lshl_b32 s45, s45, 9")
        a(f"s_add_u32 s44, s44, {81920 - 40*512}")
        a(f"s_add_u32 s45, s45, {81920 - 40*512}")
    stamp(a, 6)
    for j in range(2):
        for i in range(2):
            c = acc(i, j)
            a(f"s_add_u32 s46, s{42+i}, s{44+j}")
            if vmode: a("s_add_u32 s47, s46, 20480")
            for p in range(8):
                if vmode:
                    a(f"v_pk_mul_f32 {vr(c+2*p,2)}, {vr(c+2*p,2)}, {vr(32+16*i+2*p,2)}")
                else:
                    rs = 30 if i == 0 else 20
                    a(f"v_pk_mul_f32 {vr(c+2*p,2)}, {vr(c+2*p,2)}, {vr(rs,2)} op_sel_hi:[1,0]")
            for p in range(8):
                a(f"v_cvt_pk_bf16_f32 v{c+p}, v{c+2*p}, v{c+2*p+1}")
            if vmode:
                a(f"buffer_store_dwordx4 {vr(c,4)}, v18, s[20:23], s46 offen {ST_FLAG}")
                a(f"buffer_store_dwordx4 {vr(c+4,4)}, v18, s[20:23], s47 offen {ST_FLAG}")
            else:
                for g in range(4):
                    a(f"buffer_store_dwordx2 {vr(c+2*g,2)}, v18, s[20:23], s46 offen offset:{g*512} {ST_FLAG}")
    stamp(a, 7)
    if STAMP: a("s_waitcnt vmcnt(0)")
    stamp_end(a, 0, 2)
    a("s_endpgm")

def loader(a):
    a.label("k1_loader")
    a("s_sub_u32 s39, s24, 4")
    a("v_lshrrev_b32 v5, 3, v1")
    a("v_mul_u32_u24 v5, 1280, v5")
    a("v_lshrrev_b32 v6, 4, v1")
    a("v_and_b32 v7, 7, v1")
    a("v_xor_b32 v7, v7, v6")
    a("v_lshl_add_u32 v2, v7, 4, v5")
    a("v_xor_b32 v3, 64, v2")
    a("v_mul_u32_u24 v5, 3840, v6")
    a("v_lshlrev_b32 v7, 2, v6")
    a("v_and_b32 v8, 15, v1")
    a("v_xor_b32 v7, v7, v8")
    a("v_lshl_add_u32 v4, v7, 4, v5")
    a("s_lshl_b32 s34, s25, 2")
    a("s_add_u32 s34, s34, s39")
    a("s_mul_i32 s34, s34, 40960")
    a("s_mul_i32 s35, s39, 61440")
    a("s_lshl_b32 s31, s26, 8")
    a("s_add_u32 s35, s35, s31")
    a("s_and_b32 s32, s25, 3")
    a("s_mul_i32 s32, s32, 3")
    a("s_add_u32 s32, s32, s26")
    a("s_sub_u32 s31, s32, 10")
    a("s_cselect_b32 s32, s32, s31")
    a("s_sub_u32 s31, s32, 10")
    a("s_cselect_b32 s32, s32, s31")
    if "norot" in X: a("s_mov_b32 s32, 0")
    a("s_lshl_b32 s28, s32, 7")
    a("s_add_u32 s28, s28, s34")
    a("s_mul_i32 s29, s32, 245760")
    a("s_add_u32 s29, s29, s35")
    a("s_lshl_b32 s30, s39, 12")
    a("s_mov_b32 s27, 0")
    a("s_waitcnt lgkmcnt(0)")
    srd(a, 12, 4, X_BYTES)
    srd(a, 16, 6, WQKV_BYTES)
    stamp(a, 1)
    a.label("k1l_loop")
    dma_stage(a)
    a("s_add_u32 s27, s27, 1")
    a("s_cmp_eq_u32 s27, 1")
    a("s_cbranch_scc1 k1l_loop")
    a("s_cmp_eq_u32 s27, 10")
    a("s_cbranch_scc1 k1l_tail")
    a("s_waitcnt vmcnt(8)")
    a("s_barrier")
    a("s_branch k1l_loop")
    a.label("k1l_tail")
    a("s_cmp_ge_u32 s39, 2")
    a("s_cbranch_scc0 k1l_st")
    a("s_waitcnt vmcnt(8)")
    a("s_barrier")
    a("s_waitcnt vmcnt(0)")
    a("s_barrier")
    a("s_endpgm")
    a.label("k1l_st")
    a("s_lshl_b32 s31, s25, 2")
    a("v_mov_b32 v5, s31")
    if "nostat" not in X: a("global_load_dword v8, v5, s[8:9] sc1")
    else: a("global_load_dword v8, v5, s[4:5]")
    a("s_waitcnt vmcnt(9)")
    a("s_barrier")
    stamp(a, 2)
    srd(a, 20, 10, WS_USED)
    a("s_lshl_b32 s33, s39, 6")
    a("v_add_u32 v6, s33, v1")
    a("v_lshlrev_b32 v7, 3, v6")
    a("v_lshlrev_b32 v6, 2, v6")
    a(f"v_add_u32 v6, {EX}, v6")
    a("s_lshl_b32 s33, s25, 10")
    a(f"s_add_u32 s33, s33, {ST_OFF}")
    a("s_cmp_lt_u32 s26, 5")
    a(f"s_cselect_b32 s37, {f32(QSCALE)}, 1.0")
    a("s_mov_b32 s27, 0")
    a("s_waitcnt vmcnt(1)")
    a("s_barrier")
    a.label("k1l_poll")
    a("s_waitcnt vmcnt(0)")
    a("v_readfirstlane_b32 s31, v8")
    a("s_add_u32 s27, s27, 1")
    a("s_cmp_lg_u32 s31, 0")
    a("s_cbranch_scc1 k1l_go")
    a("s_cmp_ge_u32 s27, 0x400000")
    a("s_cbranch_scc1 k1l_go")
    a("s_sleep 2")
    a("global_load_dword v8, v5, s[8:9] sc1")
    a("s_branch k1l_poll")
    a.label("k1l_go")
    stamp(a, 4)
    a("buffer_load_dwordx2 v[10:11], v7, s[20:23], s33 offen sc1")
    a("s_waitcnt vmcnt(0)")
    a("v_rcp_f32 v11, v11")
    a("v_lshrrev_b32 v9, 16, v10")
    a("v_or_b32 v10, v10, v9")
    a("v_mul_f32 v11, s37, v11")
    a("ds_write_b32 v6, v10")
    a("ds_write_b32 v6, v11 offset:512")
    a("s_waitcnt lgkmcnt(0)")
    stamp(a, 5)
    a("s_barrier")
    stamp(a, 3)
    stamp_end(a, 0, 2)
    a("s_endpgm")

def router(a):
    a.label("k1_router")
    a("s_load_dwordx2 s[6:7], s[0:1], 32")
    a("v_and_b32 v3, 15, v1")
    a("v_lshlrev_b32 v4, 4, v3")
    a("v_lshrrev_b32 v5, 4, v1")
    a("v_mul_u32_u24 v5, 1280, v5")
    a("v_add_u32 v5, v5, v4")
    a("s_lshl_b32 s28, s25, 3")
    a("s_add_u32 s28, s28, s24")
    a("s_mul_i32 s28, s28, 20480")
    a("s_waitcnt lgkmcnt(0)")
    srd(a, 12, 4, X_BYTES)
    srd(a, 16, 6, WR_BYTES)
    def xl(g):
        for i in range(5):
            a(f"buffer_load_dwordx4 {vr(44+20*g+4*i,4)}, v5, s[12:15], s28 offen offset:{i*256}")
        a("s_addk_i32 s28, 5120")
    xl(0)
    xl(1)
    srd(a, 20, 10, WS_USED)
    a("s_mov_b32 s34, 0x3f803f80")
    a("s_mov_b32 s40, 0x00010001")
    a("s_mov_b32 s41, 0x00010001")
    for r in (9, 10, 11, 12): a(f"v_mov_b32 v{r}, 0")
    stamp(a, 3)
    for g in range(4):
        for r in (6, 7, 8, 13): a(f"v_mov_b32 v{r}, 0")
        a("s_waitcnt vmcnt(5)")
        if g < 2: xl(g + 2)
        if g == 2:
            for i in range(5):
                a(f"buffer_load_dwordx4 {vr(24+4*i,4)}, v4, s[16:19], 0 offen offset:{i*256}")
        if g == 0: stamp(a, 4)
        for r in range(0, 20, 2):
            x = 44 + 20 * g + r
            a(f"v_dot2c_f32_bf16 v6, s34, v{x}")
            a(f"v_dot2c_f32_bf16 v7, v{x}, v{x}")
            a(f"v_dot2c_f32_bf16 v8, s34, v{x+1}")
            a(f"v_dot2c_f32_bf16 v13, v{x+1}, v{x+1}")
        a("s_nop 1")
        a("v_add_f32 v6, v6, v8")
        a("s_nop 0")
        a("v_add_f32 v7, v7, v13")
        for sh in (8, 4, 2, 1):
            a("s_nop 0")
            for r in (6, 7):
                a(f"v_add_f32_dpp v{r}, v{r}, v{r} row_ror:{sh} row_mask:0xf bank_mask:0xf")
        a("v_cndmask_b32 v10, v10, v6, s[40:41]")
        a("v_cndmask_b32 v11, v11, v7, s[40:41]")
        if g < 3: a("s_lshl_b64 s[40:41], s[40:41], 1")
    stamp(a, 5)
    stats_math(a, 10, 11, 14, 15, 16)
    a("v_and_b32 v14, 0xffff0000, v14")
    a("v_lshrrev_b32 v17, 4, v1")
    a("v_lshl_add_u32 v17, v3, 2, v17")
    a("s_lshl_b32 s31, s24, 4")
    a("v_add_u32 v17, s31, v17")
    a("s_lshl_b32 s31, s25, 7")
    a("v_add_u32 v18, s31, v17")
    a("v_lshlrev_b32 v21, 3, v18")
    a("s_mov_b32 s42, 0x000f000f")
    a("s_mov_b32 s43, 0x000f000f")
    a("s_mov_b64 exec, s[42:43]")
    a(f"s_mov_b32 s31, {ST_OFF}")
    a("buffer_store_dwordx2 v[14:15], v21, s[20:23], s31 offen sc1")
    a("s_mov_b64 exec, -1")
    a("s_waitcnt vmcnt(0)")
    a("s_barrier")
    a("s_cmp_lg_u32 s24, 0")
    a("s_cbranch_scc1 k1r_nf")
    a("s_lshl_b32 s31, s25, 2")
    a("v_mov_b32 v4, s31")
    a("v_mov_b32 v5, 1")
    a("s_mov_b64 exec, 1")
    a("global_store_dword v4, v5, s[8:9] sc1")
    a("s_mov_b64 exec, -1")
    a.label("k1r_nf")
    a("s_cmp_ge_u32 s24, 5")
    a("s_cbranch_scc1 k1r_nz")
    a("v_lshlrev_b32 v4, 4, v0")
    for r in range(4): a(f"v_mov_b32 v{124+r}, 0")
    a("s_mul_i32 s31, s25, 5120")
    a(f"s_add_u32 s31, s31, {PART_OFF}")
    a("buffer_store_dwordx4 v[124:127], v4, s[20:23], s31 offen")
    a.label("k1r_nz")
    stamp(a, 6)
    for r in (6, 7, 8, 13): a(f"v_mov_b32 v{r}, 0")
    for r in range(20):
        for g, ac in enumerate((6, 7, 8, 13)):
            a(f"v_dot2c_f32_bf16 v{ac}, v{24+r}, v{44+20*g+r}")
        a(f"v_dot2c_f32_bf16 v9, s34, v{24+r}")
    a("s_mov_b32 s40, 0x00010001")
    a("s_mov_b32 s41, 0x00010001")
    a("s_nop 0")
    for sh in (8, 4, 2, 1):
        for r in (6, 7, 8, 13, 9):
            a(f"v_add_f32_dpp v{r}, v{r}, v{r} row_ror:{sh} row_mask:0xf bank_mask:0xf")
    for ac in (6, 7, 8, 13):
        a(f"v_cndmask_b32 v12, v12, v{ac}, s[40:41]")
        a("s_lshl_b64 s[40:41], s[40:41], 1")
    a("s_mov_b64 exec, s[42:43]")
    a("v_rcp_f32 v16, v15")
    a("v_fma_f32 v12, -v14, v9, v12")
    a("v_mul_f32 v12, v12, v16")
    a("v_cvt_pk_bf16_f32 v12, v12, v12")
    a("v_ashrrev_i32 v13, 31, v12")
    a("v_or_b32 v13, 0x80000000, v13")
    a("v_xor_b32 v12, v12, v13")
    a("v_and_b32 v12, 0xffff0000, v12")
    a("v_sub_u32 v19, 2047, v18")
    a("v_lshl_or_b32 v12, v19, 3, v12")
    a("v_lshlrev_b32 v19, 2, v17")
    a("v_lshlrev_b32 v20, 3, v17")
    a("ds_write_b32 v19, v12")
    a("ds_write_b64 v20, v[14:15] offset:512")
    a("s_mov_b64 exec, -1")
    a("v_lshlrev_b32 v2, 3, v1")
    a("s_waitcnt lgkmcnt(0)")
    a("s_barrier")
    a("ds_read_b64 v[6:7], v2")
    a("v_mov_b32 v9, 0")
    a("s_mov_b32 s27, 0")
    a("s_waitcnt lgkmcnt(0)")
    a.label("k1r_top")
    top8_rounds(a, 6, 7, 8, 31)
    a("s_or_b32 s33, s31, s27")
    a("s_mov_b32 m0, s27")
    a("v_cmp_ne_u32 s[40:41], s31, v6")
    a("v_cmp_ne_u32 s[42:43], s31, v7")
    a("v_writelane_b32 v9, s33, m0")
    a("s_add_u32 s27, s27, 1")
    a("v_cndmask_b32 v6, 0, v6, s[40:41]")
    a("v_cndmask_b32 v7, 0, v7, s[42:43]")
    a("s_cmp_le_u32 s27, s24")
    a("s_cbranch_scc1 k1r_top")
    a("s_lshl_b32 s35, s25, 3")
    a("s_add_u32 s35, s35, s24")
    a("s_bfe_u32 s31, s33, 0xb0003")
    a("s_sub_u32 s31, 2047, s31")
    a("s_and_b32 s36, s31, 127")
    a("s_lshl_b32 s36, s36, 3")
    a("v_mov_b32 v4, s36")
    a("ds_read_b64 v[14:15], v4 offset:512")
    a("s_mul_i32 s31, s31, 1280")
    a("v_lshlrev_b32 v6, 4, v1")
    a("v_lshlrev_b32 v7, 2, v1")
    a("buffer_load_dwordx4 v[32:35], v6, s[12:15], s31 offen")
    a("buffer_load_dword v36, v7, s[12:15], s31 offen offset:1024")
    a("s_lshl_b32 s36, s35, 2")
    a(f"s_add_u32 s36, s36, {CAND_OFF}")
    a("v_mov_b32 v4, 0")
    a("v_mov_b32 v5, s33")
    a("s_mov_b64 exec, 1")
    a("buffer_store_dword v5, v4, s[20:23], s36 offen")
    a("s_mov_b64 exec, -1")
    a("s_mul_i32 s35, s35, 1280")
    a(f"s_add_u32 s35, s35, {XS_OFF}")
    a("s_waitcnt lgkmcnt(0)")
    a("v_rcp_f32 v16, v15")
    a("v_sub_f32 v14, 0, v14")
    a("s_waitcnt vmcnt(1)")
    for r in range(5):
        norm_pair(a, 32 + r, 14, 16, 18)
    a("buffer_store_dwordx4 v[32:35], v6, s[20:23], s35 offen")
    a("buffer_store_dword v36, v7, s[20:23], s35 offen offset:1024")
    stamp(a, 7)
    if STAMP: a("s_waitcnt vmcnt(0)")
    stamp_end(a, 0, 2)
    a("s_endpgm")

def gen():
    a = Asm()
    a.raw(f".globl {NAME}\n.p2align 8\n.type {NAME},@function")
    a.label(NAME)
    a("s_cmp_ge_u32 s2, 256")
    a("s_cbranch_scc1 k1_exit")
    stamp(a, 0)
    a("s_load_dwordx4 s[4:7], s[0:1], 0")
    a("s_load_dwordx4 s[8:11], s[0:1], 72")
    a("v_lshrrev_b32 v2, 6, v0")
    a("v_and_b32 v1, 63, v0")
    a("s_and_b32 s28, s2, 7")
    a("v_readfirstlane_b32 s24, v2")
    a("s_lshr_b32 s29, s2, 3")
    a("s_lshr_b32 s30, s28, 1")
    a("s_and_b32 s28, s28, 1")
    a("s_lshl_b32 s30, s30, 2")
    a("s_cmp_lt_u32 s29, 2")
    a("s_cbranch_scc0 k1_gemm")
    a("s_lshl_b32 s28, s28, 1")
    a("s_add_u32 s25, s30, s28")
    a("s_add_u32 s25, s25, s29")
    a("s_waitcnt lgkmcnt(0)")
    a("s_branch k1_router")
    a.label("k1_exit")
    a("s_endpgm")
    a.label("k1_gemm")
    a("s_mul_i32 s28, s28, 30")
    a("s_add_u32 s28, s28, s29")
    a("s_sub_u32 s28, s28, 2")
    a("s_lshr_b32 s26, s28, 2")
    a("s_and_b32 s28, s28, 3")
    a("s_add_u32 s25, s30, s28")
    a("s_cmp_ge_u32 s24, 4")
    a("s_cbranch_scc0 k1_comp")
    loader(a)
    a.label("k1_comp")
    a("s_mov_b32 s27, 0")
    a(f"s_mov_b32 s35, {(-(NSLOT-1)*32768) & 0xffffffff}")
    a("s_mov_b32 s36, 0x8000")
    a("s_and_b32 s38, s24, 1")
    a("s_lshl_b32 s38, s38, 1")
    a("s_lshr_b32 s31, s24, 1")
    a("s_add_u32 s38, s38, s31")
    a("s_lshl_b32 s30, s31, 13")
    a("v_and_b32 v18, 31, v1")
    a("v_lshlrev_b32 v18, 7, v18")
    a("v_lshrrev_b32 v19, 5, v1")
    a("v_bfe_u32 v20, v1, 1, 3")
    a("v_xor_b32 v20, v20, v19")
    a("v_lshl_add_u32 v18, v20, 4, v18")
    a("v_add_u32 v5, s30, v18")
    for ks in range(1, 4):
        a(f"v_xor_b32 v{5+ks}, {ks<<5}, v5")
    a("v_bfe_u32 v20, v1, 2, 2")
    a("v_lshl_add_u32 v21, v19, 3, v20")
    a("v_lshlrev_b32 v21, 8, v21")
    a("v_xor_b32 v20, s38, v20")
    a("v_lshl_add_u32 v21, v20, 6, v21")
    a("v_bfe_u32 v20, v1, 4, 1")
    a("v_lshl_add_u32 v21, v20, 5, v21")
    a("v_and_b32 v20, 3, v1")
    a("v_lshl_add_u32 v21, v20, 3, v21")
    a("v_add_u32 v13, 0x4000, v21")
    a("v_xor_b32 v14, 64, v13")
    a("s_mov_b32 s40, 0x00100001")
    a("s_mov_b32 s41, 0x00100001")
    a("v_mov_b32 v24, 0x3f803f80")
    for r in range(4):
        a(f"v_mov_b32 v{16+r}, 0")
        a(f"v_cndmask_b32 v{20+r}, 0, v24, s[40:41]")
    for r in range(96, 160):
        a(f"v_mov_b32 v{r}, 0")
    a("s_waitcnt lgkmcnt(0)")
    if "pf" in X:
        srd(a, 12, 4, X_BYTES)
        srd(a, 16, 6, WQKV_BYTES)
        a("v_lshrrev_b32 v25, 5, v1")
        a("v_lshlrev_b32 v25, 6, v25")
        a("v_bfe_u32 v26, v1, 1, 4")
        a("v_add_u32 v25, v25, v26")
        a("v_mul_u32_u24 v25, 3840, v25")
        a("v_and_b32 v26, 1, v1")
        a("v_lshl_add_u32 v25, v26, 7, v25")
        a("s_lshl_b32 s31, s24, 3")
        a("s_and_b32 s33, s25, 3")
        a("s_add_u32 s31, s31, s33")
        a("s_add_u32 s31, s31, 8")
        a("s_mul_i32 s31, s31, 61440")
        a("s_lshl_b32 s33, s26, 8")
        a("s_add_u32 s31, s31, s33")
        a("buffer_load_dword v27, v25, s[16:19], s31 offen")
        a("v_and_b32 v25, 15, v1")
        a("v_mul_u32_u24 v25, 1280, v25")
        a("v_bfe_u32 v26, v1, 4, 1")
        a("v_lshl_add_u32 v25, v26, 7, v25")
        a("s_lshl_b32 s31, s25, 3")
        a("s_and_b32 s33, s26, 7")
        a("s_add_u32 s31, s31, s33")
        a("s_mul_i32 s31, s31, 20480")
        a("s_lshl_b32 s33, s24, 8")
        a("s_add_u32 s31, s31, s33")
        a("buffer_load_dword v31, v25, s[12:15], s31 offen offset:256")
    srd(a, 20, 10, WS_USED)
    a("s_cmp_ge_u32 s26, 10")
    a("s_cbranch_scc1 k1_vbody")
    gemm_body(a, False)
    a.label("k1_vbody")
    gemm_body(a, True)
    router(a)
    return a
```

```python
from common import *

NAME = "attn_kernel"
LDS = 81920
X = os.environ.get("K2X", "")
GRID = 256 + NMOE
if "nomoe" in X: GRID = 256
CH = 20480
APACE = int(os.environ.get("APACE", "6"))
PACE = 0 if "pace0" in X else 2 if "pace2" in X else 1
TOP = 2 if "top2" in X else 3
QLO = (8, 14); QHI = (12, 18)
KLO = (20, 26); KHI = (24, 30)
VV = (32, 40)
P = 48
SS = (56, 72)
OO = (88, 104)
T0 = 120

def dma_chunk(a, lab):
    a("s_mov_b32 m0, s30")
    a("s_nop 0")
    a("buffer_load_dwordx4 v2, s[20:23], s28 offen lds")
    a("s_addk_i32 m0, 10240")
    a("s_cmp_ge_u32 s24, 4")
    a("buffer_load_dwordx4 v3, s[20:23], s28 offen lds")
    a(f"s_cbranch_scc1 {lab}")
    a("s_add_u32 m0, s30, s39")
    a("s_nop 0")
    a("buffer_load_dwordx4 v4, s[20:23], s28 offen lds")
    a.label(lab)
    a(f"s_add_u32 s28, s28, {4*TILE_B}")
    a(f"s_cmp_eq_u32 s28, {32*TILE_B}")
    a(f"s_cselect_b32 s28, {WS_USED}, s28")

def piece_split(a, p, run, d16, tb):
    a(f"v_mul_u32_u24 v{run}, 3277, v{p}")
    a(f"v_lshrrev_b32 v{run}, 16, v{run}")
    a(f"v_mul_u32_u24 v{d16}, 20, v{run}")
    a(f"v_sub_u32 v{d16}, v{p}, v{d16}")
    a(f"v_lshlrev_b32 v{d16}, 4, v{d16}")
    a(f"v_bfe_u32 v{tb}, v{run}, 2, 2")
    a(f"v_mad_u32_u24 v{d16}, v{tb}, s44, v{d16}")
    a(f"v_lshrrev_b32 v{tb}, 4, v{run}")
    a(f"v_mad_u32_u24 v{d16}, v{tb}, s52, v{d16}")
    a(f"v_and_b32 v{run}, 3, v{run}")

def kv_reads(i, koff, voff):
    kb = (i + 1) % 2; vb = i % 2
    L = ["s_mov_b64 exec, s[40:41]",
         f"ds_read_b128 {vr(VV[vb],4)}, v6 offset:{voff}",
         f"ds_read_b128 {vr(VV[vb]+4,4)}, v6 offset:{voff+640}"]
    if "khz" in X:
        L += ["s_mov_b64 exec, s[42:43]", f"ds_read_b64 {vr(KHI[kb],2)}, v5 offset:{koff+1024}", "s_mov_b64 exec, -1"]
    else:
        L += ["s_mov_b64 exec, -1", f"ds_read_b64 {vr(KHI[kb],2)}, v5 offset:{koff+1024}"]
    L += [f"ds_read_b64 {vr(KLO[kb],2)}, v5 offset:{koff}",
          f"ds_read_b64 {vr(KLO[kb]+2,2)}, v5 offset:{koff+256}"]
    return L

def unit(a, u):
    i = u // 2; b = u % 2
    cur = SS[b]; nxt = SS[1 - b]
    ob = OO[1 - b]
    vb = VV[(i - 1) % 2] if b == 0 else VV[i % 2]
    kb = i % 2 if b == 0 else (i + 1) % 2
    def grp(g, mf, pre=(), post=()):
        e = cur + 4 * g
        a(f"v_exp_f32 v{e}, v{e}")
        a(f"v_exp_f32 v{e+1}, v{e+1}")
        for s in pre: a(s)
        a(mf)
        for s in post:
            if callable(s): s()
            else: a(s)
        a(f"v_exp_f32 v{e+2}, v{e+2}")
        a(f"v_exp_f32 v{e+3}, v{e+3}")
        c = (cur + 4 * (g - 1)) if g > 0 else nxt + 12
        pd = P + 2 * ((g - 1) % 4)
        a(f"v_cvt_pk_bf16_f32 v{pd}, v{c}, v{c+1}")
        a(f"v_cvt_pk_bf16_f32 v{pd+1}, v{c+2}, v{c+3}")
    pre = [[], [], [], []]; post = [[], [], [], []]
    if b == 0:
        rd = kv_reads(i, ((i + 1) % 4) * 1280, i * 1280)
        if "nospread" in X:
            post[0] = rd
        else:
            n = len(rd) - 3
            post[0] = rd[:n]; post[1] = rd[n:n+2]; post[2] = rd[n+2:]
    else:
        pre[0] = ["s_waitcnt lgkmcnt(0)"]
    def dma_if(cond, lab):
        def f():
            a(cond)
            a(f"s_cbranch_scc1 {lab}_skip")
            dma_chunk(a, lab)
            a("s_add_u32 s30, s30, s34")
            a.label(f"{lab}_skip")
        return f
    if u == 5:
        post[0] = ["s_waitcnt vmcnt(2)", "s_barrier", f"s_setprio {TOP}"]
        if "itst" in X:
            post[0] = ["s_memtime s[92:93]", "s_waitcnt vmcnt(2)", "s_memtime s[94:95]", "s_barrier", "s_memtime s[96:97]", "s_lshl_b32 m0, s27, 2", "s_waitcnt lgkmcnt(0)",
                       "v_writelane_b32 v125, s92, m0", "s_add_u32 m0, m0, 1", "s_nop 0", "v_writelane_b32 v125, s94, m0", "s_add_u32 m0, m0, 1", "s_nop 0", "v_writelane_b32 v125, s96, m0", f"s_setprio {TOP}"]
        post[1] = [dma_if("s_cmp_ge_u32 s27, s55", "k2_dla")]
        post[2] = ["v_add_u32 v5, s33, v5"]
    if u == 2 and "notouch" not in X:
        def touch():
            a("s_cmp_lg_u32 s27, s58")
            a("s_cbranch_scc1 k2_nt")
            a(f"buffer_load_dword v{T0+7}, v{T0+6}, s[12:15], s57 offen")
            a.label("k2_nt")
        post[3] = [touch]
    LAD = {(0, 2): 2, (2, 2): 1, (4, 2): 0}
    if TOP == 2: LAD = {(1, 2): 1, (4, 2): 0}
    if "lad2" in X: LAD = {(7, 0): 2, (1, 0): 1, (3, 0): 0}
    if "lad3" in X: LAD = {(0, 2): 2, (3, 2): 1, (4, 3): 0}
    for (uu, g), pr in LAD.items():
        if uu == u: post[g] = post[g] + [f"s_setprio {pr}"]
    if u == 7:
        post[0] = post[0] + [dma_if("s_cmp_ge_u32 s27, s56", "k2_dlb")]
        post[1] = ["v_add_u32 v6, s33, v6", "s_mov_b32 s34, s33", "s_add_u32 s27, s27, 1"]
        post[2] = ["s_and_b32 s32, s27, 3", "s_cmp_eq_u32 s32, 3", "s_cselect_b32 s33, s35, s36"]
    if not post[2] and not post[3] and not pre[3]:
        post[3] = ["s_nop 0"]
    grp(0, f"v_mfma_f32_32x32x16_bf16 {vr(ob,16)}, {vr(vb,4)}, {vr(P,4)}, {vr(ob,16)}", pre[0], post[0])
    grp(1, f"v_mfma_f32_32x32x16_bf16 {vr(nxt,16)}, {vr(KLO[kb],4)}, {vr(QLO[1-b],4)}, 0", pre[1], post[1])
    grp(2, f"v_mfma_f32_32x32x8_bf16 {vr(nxt,16)}, {vr(KHI[kb],2)}, {vr(QHI[1-b],2)}, {vr(nxt,16)}", pre[2], post[2])
    grp(3, f"v_mfma_f32_32x32x16_bf16 {vr(ob,16)}, {vr(vb+4,4)}, {vr(P+4,4)}, {vr(ob,16)}", pre[3], post[3])

def touch_setup(a):
    a("s_cmp_lt_u32 s24, 5")
    a("s_cselect_b32 s31, 16, 0")
    a("s_load_dwordx2 s[12:13], s[0:1], s31")
    a(f"s_cselect_b32 s14, {WO_BYTES >> 14}, {X_BYTES >> 14}")
    a("s_lshl_b32 s14, s14, 14")
    a("s_mov_b32 s15, 0x20000")
    a("s_lshr_b32 s59, s2, 3")
    a("s_mul_i32 s57, s59, 20")
    a("s_bfe_u32 s31, s2, 0x20001")
    a("s_lshl_b32 s31, s31, 5")
    a("s_add_u32 s31, s31, s59")
    a("s_lshl_b32 s31, s31, 4")
    a("s_cmp_lt_u32 s24, 5")
    a("s_cselect_b32 s57, s57, s31")
    a("s_and_b32 s31, s24, 1")
    a("s_xor_b32 s31, s31, 1")
    a("s_mul_i32 s31, s31, 12")
    a("s_add_u32 s57, s57, s31")
    a("s_mul_i32 s57, s57, 1280")
    a("s_and_b32 s31, s2, 1")
    a("s_mul_i32 s31, s31, 640")
    a("s_add_u32 s57, s57, s31")
    a("s_movk_i32 s62, 1280")
    a("s_sub_u32 s58, s24, 2")
    a("s_cmp_lt_u32 s24, 3")
    a("s_cselect_b32 s58, 99, s58")
    a("s_waitcnt lgkmcnt(0)")
    a("s_cmp_lg_u32 s24, 7")
    a("s_cbranch_scc1 k2_tgo")
    a("s_getpc_b64 s[12:13]")
    a.label("k2_tpc")
    a("s_add_u32 s12, s12, outp_kernel-k2_tpc")
    a("s_addc_u32 s13, s13, 0")
    a("s_mov_b32 s14, code_end-outp_kernel")
    a("s_mov_b32 s57, 0")
    a("s_movk_i32 s62, 640")
    a.label("k2_tgo")
    a(f"v_mul_u32_u24 v{T0+4}, 13108, v1")
    a(f"v_lshrrev_b32 v{T0+4}, 16, v{T0+4}")
    a(f"v_mul_u32_u24 v{T0+5}, 5, v{T0+4}")
    a(f"v_sub_u32 v{T0+5}, v1, v{T0+5}")
    a(f"v_mul_u32_u24 v{T0+6}, s62, v{T0+4}")
    a(f"v_lshl_add_u32 v{T0+6}, v{T0+5}, 7, v{T0+6}")

def attention(a):
    a("s_and_b32 s25, s2, 7")
    a("s_lshl_b32 s25, s25, 2")
    a("s_lshr_b32 s26, s2, 6")
    a("s_add_u32 s25, s25, s26")
    a("s_bfe_u32 s26, s2, 0x30003")
    a(f"s_mov_b32 s44, {TILE_B}")
    a(f"s_mov_b32 s52, {32*TILE_B}")
    a("s_mul_i32 s45, s25, 1280")
    a("s_add_u32 s45, s45, 40960")
    a("s_mul_i32 s46, s25, 320")
    a("s_add_u32 s46, s46, 81920")
    a("s_movk_i32 s47, 320")
    a("s_movk_i32 s48, 10240")
    piece_split(a, 0, T0, T0 + 1, T0 + 2)
    a(f"v_mad_u32_u24 v2, v{T0}, s47, v{T0+1}")
    a(f"v_mad_u32_u24 v3, v{T0}, s48, v{T0+1}")
    a("v_add_u32 v2, s45, v2")
    a("v_add_u32 v3, s46, v3")
    a("s_cmp_lt_u32 s24, 2")
    a("s_cselect_b32 s49, s47, s48")
    a("s_cselect_b32 s50, s45, s46")
    a("s_cselect_b32 s39, 8, 16")
    a("s_lshl_b32 s39, s39, 10")
    a(f"v_and_b32 v{T0+3}, 127, v0")
    a(f"v_add_u32 v{T0+3}, 512, v{T0+3}")
    piece_split(a, T0 + 3, T0, T0 + 1, T0 + 2)
    a(f"v_mad_u32_u24 v4, v{T0}, s49, v{T0+1}")
    a("v_add_u32 v4, s50, v4")
    a("s_mov_b32 s28, 0")
    a("s_lshl_b32 s30, s24, 10")
    a(f"v_lshrrev_b32 v{T0}, 5, v1")
    a(f"v_and_b32 v{T0+1}, 31, v1")
    a(f"v_lshlrev_b32 v5, 9, v{T0}")
    a(f"v_lshl_add_u32 v5, v{T0+1}, 3, v5")
    a(f"v_lshlrev_b32 v{T0+2}, 31, v{T0}")
    a(f"v_or_b32 v{T0+2}, v{T0+2}, v5")
    a("s_lshl_b32 s51, s26, 3")
    a("s_and_b32 s31, s24, 3")
    a("s_lshl_b32 s31, s31, 1")
    a("s_add_u32 s51, s51, s31")
    a("s_lshr_b32 s53, s24, 2")
    a("s_add_u32 s51, s51, s53")
    a("s_xor_b32 s37, s51, 1")
    a("s_mul_i32 s31, s51, s44")
    a("s_mul_i32 s37, s37, s44")
    a("s_mul_i32 s29, s25, 1280")
    a("s_add_u32 s31, s31, s29")
    a("s_add_u32 s37, s37, s29")
    a("s_waitcnt lgkmcnt(0)")
    srd(a, 20, 10, WS_USED)
    stamp(a, 1)
    dma_chunk(a, "k2_d0")
    for sl, so in ((0, 31), (1, 37)):
        a(f"buffer_load_dwordx2 {vr(QLO[sl],2)}, v5, s[20:23], s{so} offen")
        a(f"buffer_load_dwordx2 {vr(QLO[sl]+2,2)}, v5, s[20:23], s{so} offen offset:256")
        a(f"buffer_load_dwordx2 {vr(QHI[sl],2)}, v{T0+2}, s[20:23], s{so} offen offset:1024")
    a(f"s_add_u32 s30, s30, {CH}")
    touch_setup(a)
    a("s_mul_i32 s31, s53, 5120")
    a("v_add_u32 v5, s31, v5")
    a(f"v_mul_u32_u24 v6, 320, v{T0}")
    a(f"v_lshl_add_u32 v6, v{T0+1}, 4, v6")
    a("s_add_u32 s31, s31, 10240")
    a("v_add_u32 v6, s31, v6")
    a("s_mov_b32 s40, 0x000fffff")
    a("s_mov_b32 s41, 0x000fffff")
    a("s_mov_b32 s27, 0")
    a(f"s_mov_b32 s35, {(-3*CH) & 0xffffffff}")
    a(f"s_mov_b32 s36, {CH}")
    a("s_mov_b32 s33, s36")
    a("s_mov_b32 s34, s35")
    a("s_mul_i32 s56, s53, 6")
    a("s_sub_u32 s55, 6, s56")
    a("s_mov_b32 s42, 0x11000000")
    a("s_mov_b32 s43, 0x11000000")
    a(f"v_mov_b32 v{T0+3}, 0x3f803f80")
    a(f"v_cndmask_b32 v{VV[0]}, 0, v{T0+3}, s[42:43]")
    for r in range(1, 16): a(f"v_mov_b32 v{VV[0]+r}, v{VV[0]}")
    for r in range(8): a(f"v_mov_b32 v{P+r}, 0")
    for r in range(32): a(f"v_mov_b32 v{OO[0]+r}, 0")
    for r in range(4): a(f"v_mov_b32 v{SS[1]+12+r}, 0")
    for st in range(2):
        for r in range(2): a(f"v_mov_b32 v{KHI[st]+r}, 0")
    a("s_mov_b32 s42, -1")
    a("s_mov_b32 s43, 0")
    stamp(a, 2)
    a("s_waitcnt vmcnt(0)")
    a("s_barrier")
    stamp(a, 3)
    a(f"ds_read_b64 {vr(KLO[0],2)}, v5")
    a(f"ds_read_b64 {vr(KLO[0]+2,2)}, v5 offset:256")
    a("s_mov_b64 exec, s[42:43]")
    a(f"ds_read_b64 {vr(KHI[0],2)}, v5 offset:1024")
    a("s_mov_b64 exec, -1")
    dma_chunk(a, "k2_d1")
    a(f"s_add_u32 s30, s30, {CH}")
    a("s_waitcnt lgkmcnt(0)")
    a(f"v_mfma_f32_32x32x16_bf16 {vr(SS[0],16)}, {vr(KLO[0],4)}, {vr(QLO[0],4)}, 0")
    a(f"v_mfma_f32_32x32x8_bf16 {vr(SS[0],16)}, {vr(KHI[0],2)}, {vr(QHI[0],2)}, {vr(SS[0],16)}")
    dma_chunk(a, "k2_d2")
    a(f"s_add_u32 s30, s30, {CH}")
    a(f"s_setprio {TOP}")
    stamp(a, 4)
    a.raw(".p2align 3")
    a.label("k2_loop")
    for u in range(8): unit(a, u)
    a("s_cmp_lt_u32 s27, 8")
    a("s_cbranch_scc1 k2_loop")
    stamp(a, 5)
    if "itst" in X:
        a("s_lshl_b32 s96, s2, 3")
        a("s_add_u32 s96, s96, s24")
        a("s_lshl_b32 s96, s96, 8")
        a(f"s_add_u32 s96, s96, {STAMP_OFF + (3<<20)}")
        a("v_lshl_add_u32 v124, v1, 2, s96")
        a("global_store_dword v124, v125, s[10:11]")
    O = OO[0]
    a(f"v_mfma_f32_32x32x16_bf16 {vr(OO[1],16)}, {vr(VV[1],4)}, {vr(P,4)}, {vr(OO[1],16)}")
    a(f"v_cvt_pk_bf16_f32 v{P+6}, v{SS[1]+12}, v{SS[1]+13}")
    a(f"v_cvt_pk_bf16_f32 v{P+7}, v{SS[1]+14}, v{SS[1]+15}")
    a("s_and_b32 s31, s24, 3")
    a("s_mul_i32 s31, s31, 3328")
    a(f"v_mfma_f32_32x32x16_bf16 {vr(OO[1],16)}, {vr(VV[1]+4,4)}, {vr(P+4,4)}, {vr(OO[1],16)}")
    a(f"s_mul_i32 s29, s53, {CH}")
    a(f"s_sub_u32 s33, {2*CH}, s29")
    a("s_add_u32 s29, s29, s31")
    a(f"s_add_u32 s29, s29, {CH}")
    a("s_add_u32 s33, s33, s31")
    a("v_lshl_add_u32 v2, v1, 4, s29")
    a("v_lshl_add_u32 v3, v1, 2, s29")
    a("v_lshl_add_u32 v4, v1, 4, s33")
    a("v_lshl_add_u32 v5, v1, 2, s33")
    a("s_mul_i32 s29, s25, 5")
    a(f"v_lshrrev_b32 v{T0}, 5, v1")
    a(f"v_add_u32 v{T0}, s29, v{T0}")
    a(f"v_bfe_u32 v{T0+1}, v1, 4, 1")
    for g in range(3):
        a(f"ds_write_b128 v2, {vr(OO[1]+4*g,4)} offset:{g*1024}")
    a(f"ds_write_b32 v3, v{OO[1]+12} offset:3072")
    a(f"v_mul_u32_u24 v{T0+1}, 20480, v{T0+1}")
    a(f"v_and_b32 v{T0+2}, 15, v1")
    a(f"v_lshl_add_u32 v{T0+1}, v{T0+2}, 4, v{T0+1}")
    a("s_waitcnt lgkmcnt(0)")
    a("s_barrier")
    for g in range(3):
        a(f"ds_read_b128 {vr(SS[0]+4*g,4)}, v4 offset:{g*1024}")
    a(f"ds_read_b32 v{SS[0]+12}, v5 offset:3072")
    for gg in range(3):
        d = T0 + 4 + gg
        a(f"v_lshrrev_b32 v{T0+2}, 3, v{T0}")
        a(f"v_lshl_add_u32 v{d}, v{T0+2}, 10, v{T0+1}")
        a(f"v_and_b32 v{T0+2}, 3, v{T0}")
        a(f"v_lshl_add_u32 v{d}, v{T0+2}, 8, v{d}")
        a(f"v_and_b32 v{T0+2}, 4, v{T0}")
        a(f"v_lshl_add_u32 v{d}, v{T0+2}, 1, v{d}")
        if gg < 2: a(f"v_add_u32 v{T0}, 2, v{T0}")
    a("s_mul_i32 s29, s51, 40960")
    a(f"s_add_u32 s29, s29, {O_OFF}")
    a("s_waitcnt lgkmcnt(0)")
    a(f"v_add_f32 v{O+12}, v{O+12}, v{SS[0]+12}")
    for p in range(6):
        a(f"v_pk_add_f32 {vr(O+2*p,2)}, {vr(O+2*p,2)}, {vr(SS[0]+2*p,2)}")
    a(f"v_med3_f32 v{T0+2}, v{O+12}, v7, s54")
    a(f"v_cmp_neq_f32 vcc, v{O+12}, v{T0+2}")
    a("s_cbranch_vccnz k2_slow")
    a.label("k2_fin")
    a(f"v_rcp_f32 v{T0+2}, v{O+12}")
    a("s_nop 0")
    for p in range(6):
        a(f"v_pk_mul_f32 {vr(O+2*p,2)}, {vr(O+2*p,2)}, {vr(T0+2,2)} op_sel_hi:[1,0]")
    for p in range(6):
        a(f"v_cvt_pk_bf16_f32 v{O+p}, v{O+2*p}, v{O+2*p+1}")
    if "sync" in X:
        a(f"v_lshrrev_b32 v{T0}, 5, v1")
        a(f"v_and_b32 v{T0+1}, 31, v1")
        a(f"v_lshlrev_b32 v{T0}, 8, v{T0}")
        a(f"v_lshl_add_u32 v{T0}, v{T0+1}, 3, v{T0}")
        a("s_mul_i32 s31, s25, 1280")
        a("s_add_u32 s29, s29, s31")
        a(f"buffer_store_dwordx2 {vr(O,2)}, v{T0}, s[20:23], s29 offen sc1")
        a(f"buffer_store_dwordx2 {vr(O+2,2)}, v{T0}, s[20:23], s29 offen offset:512 sc1")
        a("s_mov_b32 exec_hi, 0")
        a(f"buffer_store_dwordx2 {vr(O+4,2)}, v{T0}, s[20:23], s29 offen offset:1024 sc1")
        a("s_mov_b64 exec, -1")
        stamp(a, 6)
        a("s_waitcnt vmcnt(0)")
        stamp(a, 7)
        a("s_barrier")
        a("s_cmp_lg_u32 s24, 0")
        a("s_cbranch_scc1 k2_sy_w")
        a("s_lshl_b32 s31, s26, 8")
        a(f"s_add_u32 s31, s31, {CNT_OFF}")
        a("v_mov_b32 v2, s31")
        if "flag" in X:
            a("s_lshl_b32 s33, s25, 2")
            a("v_add_u32 v4, s33, v2")
            a("v_mov_b32 v3, 1")
            a("s_mov_b64 exec, 1")
            a("global_store_dword v4, v3, s[10:11] sc1")
            a("s_mov_b64 exec, -1")
            a(f"v_and_b32 v{T0+1}, 31, v1")
            a(f"v_lshl_add_u32 v2, v{T0+1}, 2, v2")
        else:
            a("v_mov_b32 v3, 1")
            a("s_mov_b64 exec, 1")
            a("global_atomic_add v2, v3, s[10:11]")
        stamp(a, 8)
        a("s_mov_b32 s27, 0")
        a.label("k2_sy_poll")
        a("global_load_dword v3, v2, s[10:11] sc1")
        a("s_add_u32 s27, s27, 1")
        a("s_waitcnt vmcnt(0)")
        if "flag" in X:
            a("v_cmp_eq_u32 vcc, 0, v3")
            a("s_cmp_ge_u32 s27, 0x100000")
            a("s_cbranch_scc1 k2_sy_w")
            a("s_cbranch_vccnz k2_sy_poll")
        else:
            a("v_readfirstlane_b32 s31, v3")
            a("s_cmp_ge_u32 s27, 0x100000")
            a("s_cbranch_scc1 k2_sy_w")
            a("s_cmp_lt_u32 s31, 32")
            a("s_cbranch_scc1 k2_sy_poll")
        a.label("k2_sy_w")
        a("s_barrier")
        stamp(a, 9)
    else:
        a(f"buffer_store_dwordx2 {vr(O,2)}, v{T0+4}, s[20:23], s29 offen")
        a(f"buffer_store_dwordx2 {vr(O+2,2)}, v{T0+5}, s[20:23], s29 offen")
        a("s_mov_b32 exec_hi, 0")
        a(f"buffer_store_dwordx2 {vr(O+4,2)}, v{T0+6}, s[20:23], s29 offen")
        stamp(a, 6)
    if STAMP: a("s_waitcnt vmcnt(0)")
    stamp_end(a, 1, 2)
    a("s_endpgm")
    C = SS[1]; M = T0 + 3
    a.label("k2_slow")
    a(f"v_lshrrev_b32 v{T0}, 5, v1")
    a(f"v_and_b32 v{T0+1}, 31, v1")
    a(f"v_lshlrev_b32 v5, 9, v{T0}")
    a(f"v_lshl_add_u32 v5, v{T0+1}, 3, v5")
    a("v_add_u32 v5, s45, v5")
    a(f"v_mul_u32_u24 v6, 10240, v{T0}")
    a(f"v_lshl_add_u32 v6, v{T0+1}, 4, v6")
    a("v_add_u32 v6, s46, v6")
    a("v_add_u32 v4, 20480, v6")
    for r in range(16): a(f"v_mov_b32 v{C+r}, 0")
    a(f"v_mov_b32 v{M}, 0xff800000")
    a("s_mov_b32 s32, 0")
    a.label("k2_s_pass")
    a("s_mov_b32 s28, 0")
    a.label("k2_s_loop")
    a(f"buffer_load_dwordx2 {vr(KLO[0],2)}, v5, s[20:23], s28 offen")
    a(f"buffer_load_dwordx2 {vr(KLO[0]+2,2)}, v5, s[20:23], s28 offen offset:256")
    a(f"buffer_load_dwordx2 {vr(KHI[0],2)}, v5, s[20:23], s28 offen offset:1024")
    a("s_mov_b64 exec, s[40:41]")
    a(f"buffer_load_dwordx4 {vr(VV[0],4)}, v6, s[20:23], s28 offen")
    a(f"buffer_load_dwordx4 {vr(VV[0]+4,4)}, v4, s[20:23], s28 offen")
    a("s_mov_b64 exec, -1")
    a("s_waitcnt vmcnt(0)")
    a(f"v_mfma_f32_32x32x16_bf16 {vr(SS[0],16)}, {vr(KLO[0],4)}, {vr(QLO[0],4)}, {vr(C,16)}")
    a(f"v_mfma_f32_32x32x8_bf16 {vr(SS[0],16)}, {vr(KHI[0],2)}, {vr(QHI[0],2)}, {vr(SS[0],16)}")
    a("s_nop 11")
    a("s_cmp_eq_u32 s32, 0")
    a("s_cbranch_scc0 k2_s_p2")
    for i in range(0, 16, 2):
        a(f"v_max3_f32 v{M}, v{SS[0]+i}, v{SS[0]+i+1}, v{M}")
    a("s_branch k2_s_next")
    a.label("k2_s_p2")
    for r in range(16): a(f"v_exp_f32 v{SS[0]+r}, v{SS[0]+r}")
    a("s_nop 0")
    for r in range(8): a(f"v_cvt_pk_bf16_f32 v{P+r}, v{SS[0]+2*r}, v{SS[0]+2*r+1}")
    a("s_nop 1")
    a(f"v_mfma_f32_32x32x16_bf16 {vr(O,16)}, {vr(VV[0],4)}, {vr(P,4)}, {vr(O,16)}")
    a(f"v_mfma_f32_32x32x16_bf16 {vr(O,16)}, {vr(VV[0]+4,4)}, {vr(P+4,4)}, {vr(O,16)}")
    a.label("k2_s_next")
    a(f"s_add_u32 s28, s28, {TILE_B}")
    a(f"s_cmp_lt_u32 s28, {64*TILE_B}")
    a("s_cbranch_scc1 k2_s_loop")
    a("s_nop 11")
    a("s_cmp_eq_u32 s32, 0")
    a("s_cbranch_scc0 k2_fin")
    a(f"v_mov_b32 v{T0+7}, v{M}")
    a("s_nop 1")
    a(f"v_permlane32_swap_b32 v{M}, v{T0+7}")
    a(f"v_max_f32 v{M}, v{M}, v{T0+7}")
    for r in range(16): a(f"v_sub_f32 v{C+r}, 0, v{M}")
    for r in range(16): a(f"v_mov_b32 v{O+r}, 0")
    a("s_mov_b32 s32, 1")
    a("s_branch k2_s_pass")

def silu_bf16(a, x, t):
    a(f"v_mul_f32 v{t}, {f32(-math.log2(math.e))}, v{x}")
    a(f"v_exp_f32 v{t}, v{t}")
    a("s_nop 0")
    a(f"v_add_f32 v{t}, 1.0, v{t}")
    a(f"v_rcp_f32 v{t}, v{t}")
    a("s_nop 0")
    a(f"v_mul_f32 v{x}, v{x}, v{t}")
    a(f"v_cvt_pk_bf16_f32 v{x}, v{x}, v{x}")
    a(f"v_and_b32 v{x}, 0xffff0000, v{x}")

def rnd_bf16(a, x):
    a(f"v_cvt_pk_bf16_f32 v{x}, v{x}, v{x}")
    a(f"v_and_b32 v{x}, 0xffff0000, v{x}")

XSL = 61440
UL = XSL + 10368
KL = UL + 1536

def moe(a):
    a("s_load_dwordx4 s[4:7], s[0:1], 40")
    a("s_load_dwordx2 s[8:9], s[0:1], 56")
    a("s_sub_u32 s25, s2, 256")
    a("s_and_b32 s26, s25, 7")
    a("s_mul_i32 s26, s26, 12")
    a("s_lshr_b32 s27, s25, 3")
    a("s_add_u32 s26, s26, s27")
    a("v_lshrrev_b32 v7, 4, v1")
    a("v_and_b32 v4, 15, v1")
    a("v_lshlrev_b32 v5, 4, v1")
    a("s_waitcnt lgkmcnt(0)")
    srd(a, 20, 10, WS_USED)
    a("s_cmp_lt_u32 s24, 4")
    a("s_cbranch_scc1 moe_c")
    a("s_cmp_eq_u32 s24, 7")
    a("s_cbranch_scc1 k2_exit")
    a("s_cmp_eq_u32 s24, 5")
    a("s_cselect_b32 s12, s6, s4")
    a("s_cselect_b32 s13, s7, s5")
    a("v_lshrrev_b32 v2, 1, v1")
    a("v_mul_u32_u24 v2, 3072, v2")
    a("v_and_b32 v3, 1, v1")
    a("v_lshl_add_u32 v2, v3, 4, v2")
    a("s_lshl_b32 s28, s26, 5")
    a(f"s_mov_b32 s29, {32*3072}")
    a("s_cmp_lg_u32 s24, 6")
    a("s_cbranch_scc1 moe_st")
    a("s_mov_b32 s12, s8")
    a("s_mov_b32 s13, s9")
    a("v_mov_b32 v2, v5")
    a("s_mul_i32 s28, s26, 20480")
    a("s_movk_i32 s29, 1024")
    a.label("moe_st")
    a(f"s_mov_b32 s14, {WG_BYTES}")
    a("s_mov_b32 s15, 0x20000")
    a("s_sub_u32 s30, s24, 4")
    a("s_mul_i32 s30, s30, 20480")
    a("s_and_b32 s27, s26, 3")
    a("s_mul_i32 s27, s27, 5")
    a("s_mov_b32 s33, 0")
    a("s_setprio 0")
    a("s_barrier")
    a.label("moe_stl")
    a("s_lshl_b32 s31, s27, 10")
    a("s_add_u32 m0, s30, s31")
    a("s_mul_i32 s31, s27, s29")
    a("s_add_u32 s31, s31, s28")
    a("buffer_load_dwordx4 v2, s[12:15], s31 offen lds")
    a("s_add_u32 s27, s27, 1")
    a("s_cmp_eq_u32 s27, 20")
    a("s_cselect_b32 s27, 0, s27")
    a("s_add_u32 s33, s33, 1")
    a("s_cmp_lt_u32 s33, 20")
    a(f"s_waitcnt vmcnt({PACE})")
    a("s_cbranch_scc1 moe_stl")
    a("s_waitcnt vmcnt(0)")
    a("s_barrier")
    a("s_endpgm")
    a.label("moe_c")
    a("s_cmp_lg_u32 s24, 3")
    a("s_cbranch_scc1 moe_w0")
    a("v_lshlrev_b32 v3, 3, v1")
    a(f"s_mov_b32 s31, {CAND_OFF}")
    a("buffer_load_dwordx2 v[10:11], v3, s[20:23], s31 offen")
    a("v_mov_b32 v9, 0")
    a("s_mov_b32 s27, 0")
    a("s_waitcnt vmcnt(0)")
    a.label("moe_top")
    top8_rounds(a, 10, 11, 8, 31)
    a("s_mov_b32 m0, s27")
    a("s_add_u32 s27, s27, 1")
    a("v_cmp_ne_u32 s[40:41], s31, v10")
    a("v_cmp_ne_u32 s[42:43], s31, v11")
    a("v_writelane_b32 v9, s31, m0")
    a("s_cmp_lt_u32 s27, 8")
    a("v_cndmask_b32 v10, 0, v10, s[40:41]")
    a("v_cndmask_b32 v11, 0, v11, s[42:43]")
    a("s_cbranch_scc1 moe_top")
    a("v_lshlrev_b32 v3, 2, v1")
    a("s_mov_b64 exec, 0xff")
    a(f"s_mov_b32 s31, {SEL_OFF}")
    a("buffer_store_dword v9, v3, s[20:23], s31 offen")
    a("s_mov_b64 exec, -1")
    stamp(a, 1)
    a("s_barrier")
    a("s_mov_b32 s27, 0")
    a(f"s_mov_b32 s30, {XSL}")
    a.label("moe_xs")
    a("v_readlane_b32 s31, v9, s27")
    a("s_mov_b32 m0, s30")
    a("s_bfe_u32 s33, s31, 0x4000a")
    a("s_sub_u32 s33, 15, s33")
    a("s_lshl_b32 s33, s33, 3")
    a("s_and_b32 s31, s31, 7")
    a("s_or_b32 s33, s33, s31")
    a("s_mul_i32 s33, s33, 1280")
    a(f"s_add_u32 s33, s33, {XS_OFF}")
    a("buffer_load_dwordx4 v5, s[20:23], s33 offen lds")
    a("s_mov_b64 exec, 0xffff")
    a("buffer_load_dwordx4 v5, s[20:23], s33 offen offset:1024 lds")
    a("s_mov_b64 exec, -1")
    a("s_addk_i32 s30, 1296")
    a("s_add_u32 s27, s27, 1")
    a("s_cmp_lt_u32 s27, 8")
    a("s_cbranch_scc1 moe_xs")
    a("s_branch moe_dn")
    a.label("moe_w0")
    a("s_barrier")
    a("s_cmp_ge_u32 s24, 2")
    a("s_cbranch_scc1 moe_dn")
    a("v_lshlrev_b32 v6, 3, v4")
    a("v_lshl_add_u32 v6, v7, 8, v6")
    a("s_mul_i32 s31, s24, 20480")
    a("v_add_u32 v6, s31, v6")
    a("v_bfe_u32 v9, v1, 2, 2")
    a("v_and_b32 v8, 1, v1")
    a("v_lshl_add_u32 v9, v9, 1, v8")
    a("v_mul_u32_u24 v8, 1296, v9")
    a("v_lshl_add_u32 v8, v7, 4, v8")
    a(f"v_add_u32 v8, {XSL}, v8")
    a(f"v_add_u32 v5, {UL}, v5")
    a("s_setprio 0")
    a("s_waitcnt vmcnt(0)")
    a("s_barrier")
    stamp(a, 2)
    for half in range(2):
        for k in range(10):
            ks = half * 10 + k
            a(f"ds_read_b64_tr_b16 {vr(16+8*k,2)}, v6 offset:{ks*1024}")
            a(f"ds_read_b64_tr_b16 {vr(18+8*k,2)}, v6 offset:{ks*1024+128}")
            a(f"ds_read_b128 {vr(20+8*k,4)}, v8 offset:{ks*64}")
            if k in (4, 7): a("s_waitcnt lgkmcnt(6)")
        a("s_waitcnt lgkmcnt(0)")
        a("s_setprio 3")
        for k in range(10):
            a(f"v_mfma_f32_16x16x32_bf16 v[12:15], {vr(16+8*k,4)}, {vr(20+8*k,4)}, " + ("0" if half == 0 and k == 0 else "v[12:15]"))
        if half == 0: a("s_setprio 0")
    a("s_cmp_eq_u32 s24, 0")
    a("s_nop 6")
    a("s_cbranch_scc1 moe_g")
    a("ds_write_b128 v5, v[12:15]")
    a("s_waitcnt lgkmcnt(0)")
    a("s_barrier")
    a("s_endpgm")
    a.label("moe_g")
    for r in range(4): a(f"v_mul_f32 v{16+r}, {f32(-math.log2(math.e))}, v{12+r}")
    for r in range(4): a(f"v_exp_f32 v{16+r}, v{16+r}")
    for r in range(4): a(f"v_add_f32 v{16+r}, 1.0, v{16+r}")
    for r in range(4): a(f"v_rcp_f32 v{16+r}, v{16+r}")
    a("s_barrier")
    a("ds_read_b128 v[20:23], v5")
    for r in range(4): a(f"v_mul_f32 v{12+r}, v{12+r}, v{16+r}")
    a("v_lshlrev_b32 v5, 3, v1")
    a("s_waitcnt lgkmcnt(0)")
    for r in range(4): a(f"v_mul_f32 v{12+r}, v{12+r}, v{20+r}")
    a(f"v_add_u32 v5, {UL+1024}, v5")
    a("v_cvt_pk_bf16_f32 v12, v12, v13")
    a("v_cvt_pk_bf16_f32 v13, v14, v15")
    a("ds_write_b64 v5, v[12:13]")
    a("s_waitcnt lgkmcnt(0)")
    a("s_barrier")
    a("s_endpgm")
    a.label("moe_dn")
    a("v_lshrrev_b32 v6, 2, v1")
    a("v_mul_u32_u24 v6, 1280, v6")
    a("v_and_b32 v8, 3, v1")
    a("v_lshl_add_u32 v6, v8, 3, v6")
    a("s_sub_u32 s27, s24, 2")
    a("s_mul_i32 s31, s27, 640")
    a("s_add_u32 s31, s31, 40960")
    a("v_add_u32 v6, s31, v6")
    a("v_mul_u32_u24 v10, 5120, v7")
    a("v_lshl_add_u32 v10, v4, 2, v10")
    a("s_mul_i32 s34, s27, 1280")
    a("s_and_b32 s31, s26, 3")
    a("s_mul_i32 s31, s31, 20480")
    a("s_add_u32 s34, s34, s31")
    a(f"s_add_u32 s34, s34, {PART_OFF}")
    a("v_lshlrev_b32 v5, 3, v1")
    a(f"v_add_u32 v5, {UL+1024}, v5")
    a("s_setprio 0")
    a("s_waitcnt vmcnt(0)")
    a("s_barrier")
    for k in range(20):
        a(f"ds_read_b64_tr_b16 {vr(16+2*k,2)}, v6 offset:{k*32}")
        if k == 13: a("s_waitcnt lgkmcnt(4)")
    a("s_barrier")
    a("s_barrier")
    a("ds_read_b64 v[12:13], v5")
    a("s_waitcnt lgkmcnt(0)")
    stamp(a, 2)
    a("s_setprio 3")
    dreg = lambda k: 56 + 4 * k if k < 18 else 16 + 4 * (k - 18)
    for k in range(20):
        a(f"v_mfma_f32_16x16x16_bf16 {vr(dreg(k),4)}, v[12:13], {vr(16+2*k,2)}, 0")
    a("s_setprio 0")
    for k in range(20):
        a(f"buffer_atomic_add_f32 v{dreg(k)}, v10, s[20:23], s34 offen offset:{k*64}")
        a(f"buffer_atomic_add_f32 v{dreg(k)+1}, v10, s[20:23], s34 offen offset:{2560+k*64}")
        if 2*k+2 > APACE and k < 19: a(f"s_waitcnt vmcnt({APACE})")
    stamp_end(a, 1, 2)
    a.label("k2_exit")
    a("s_endpgm")

def gen():
    a = Asm()
    a.raw(f".globl {NAME}\n.p2align 8\n.type {NAME},@function")
    a.label(NAME)
    stamp(a, 0)
    a("s_load_dwordx2 s[10:11], s[0:1], 80")
    a("v_lshrrev_b32 v2, 6, v0")
    a("v_and_b32 v1, 63, v0")
    a(f"v_mov_b32 v7, {f32(2.0**64)}")
    a(f"s_mov_b32 s54, {f32(2.0**-64)}")
    a("v_readfirstlane_b32 s24, v2")
    a("s_cmp_ge_u32 s2, 256")
    a("s_cbranch_scc1 k2_other")
    attention(a)
    a.label("k2_other")
    a("s_setprio 3")
    a(f"s_cmp_ge_u32 s2, {GRID}")
    a("s_cbranch_scc1 k2_exit")
    moe(a)
    return a
```

```python
from common import *

NAME = "outp_kernel"
LDS = 102400
VGPR = 192
BLOCK = 512
X = os.environ.get("K3X", "")
OF = 96
WB = (16, 36)
ACC = 56
XR = 76
UR = 86
NPRE = 8

def wread_list(st, ks):
    b = WB[st]
    base = 7 if ks < 10 else 8
    off = (ks % 10) * 5120
    L = []
    for T in range(5):
        L.append(f"ds_read_b64_tr_b16 {vr(b+4*T,2)}, v{base} offset:{off+T*32}")
        L.append(f"ds_read_b64_tr_b16 {vr(b+4*T+2,2)}, v{base} offset:{off+2560+T*32}")
    return L

def gate_ops(p, t):
    u = t + 2
    x = XR + p; d = UR + p
    return [f"v_lshlrev_b32 v{t}, 16, v{x}",
         f"v_and_b32 v{t+1}, 0xffff0000, v{x}",
         f"v_pk_add_f32 {vr(t,2)}, {vr(t,2)}, v[10:11] op_sel_hi:[1,0]",
         f"v_cvt_pk_bf16_f32 v{u}, v{t}, v{t+1}",
         f"v_lshlrev_b32 v{t}, 16, v{u}",
         f"v_and_b32 v{t+1}, 0xffff0000, v{u}",
         f"v_pk_mul_f32 {vr(t,2)}, {vr(t,2)}, v[12:13] op_sel_hi:[1,0]",
         f"v_cvt_pk_bf16_f32 v{u}, v{t}, v{t+1}",
         f"v_lshlrev_b32 v{t}, 16, v{u}",
         f"v_and_b32 v{t+1}, 0xffff0000, v{u}",
         f"v_lshlrev_b32 v{u}, 16, v{d}",
         f"v_and_b32 v{u+1}, 0xffff0000, v{d}",
         f"v_pk_add_f32 {vr(t,2)}, {vr(t,2)}, {vr(u,2)}",
         f"v_cvt_pk_bf16_f32 v{u}, v{t}, v{t+1}",
         f"v_lshlrev_b32 v{t}, 16, v{u}",
         f"v_and_b32 v{t+1}, 0xffff0000, v{u}",
         f"v_pk_mul_f32 {vr(u,2)}, {vr(t,2)}, v[14:15] op_sel_hi:[1,0]",
         f"v_exp_f32 v{u}, v{u}",
         f"v_exp_f32 v{u+1}, v{u+1}",
         f"v_add_f32 v{u}, 1.0, v{u}",
         f"v_add_f32 v{u+1}, 1.0, v{u+1}",
         f"v_rcp_f32 v{u}, v{u}",
         f"v_rcp_f32 v{u+1}, v{u+1}",
         f"v_pk_mul_f32 {vr(t,2)}, {vr(t,2)}, {vr(u,2)}",
         f"v_cvt_pk_bf16_f32 v{d}, v{t}, v{t+1}"]

def oload(a, ks):
    a(f"buffer_load_dwordx4 {vr(OF+4*ks,4)}, v9, s[20:23], s28 offen offset:{(ks%4)*1024}")
    if ks % 4 == 3 and ks < 19:
        a("s_addk_i32 s28, 0x1000")
        a("s_cmp_eq_u32 s28, s30")
        a("s_cselect_b32 s28, s29, s28")

def gen():
    a = Asm()
    a.raw(f".globl {NAME}\n.p2align 8\n.type {NAME},@function")
    a.label(NAME)
    a("s_cmp_ge_u32 s2, 256")
    a("s_cbranch_scc1 k3_exit")
    stamp(a, 0)
    a("s_load_dwordx2 s[4:5], s[0:1], 0")
    a("s_load_dwordx2 s[6:7], s[0:1], 16")
    a("s_load_dwordx2 s[8:9], s[0:1], 64")
    a("s_load_dwordx2 s[10:11], s[0:1], 80")
    a("v_lshrrev_b32 v2, 6, v0")
    a("v_and_b32 v1, 63, v0")
    a("s_bfe_u32 s25, s2, 0x20001")
    a("v_readfirstlane_b32 s24, v2")
    a("s_lshl_b32 s25, s25, 3")
    a("s_lshr_b32 s26, s2, 5")
    a("s_add_u32 s25, s25, s26")
    a("s_and_b32 s26, s2, 1")
    a("s_lshl_b32 s26, s26, 2")
    a("s_bfe_u32 s27, s2, 0x20003")
    a("s_add_u32 s26, s26, s27")
    a("s_mul_i32 s33, s26, 160")
    a("s_mov_b32 s48, " + ("0" if "norot" in X else "s27"))
    a("s_cmp_lt_u32 s24, 4")
    a("s_cbranch_scc1 k3_comp")
    for ii in range(5):
        a(f"v_add_u32 v9, {ii*64}, v1")
        a("v_mul_u32_u24 v10, 6554, v9")
        a("v_lshrrev_b32 v10, 16, v10")
        a("v_mul_u32_u24 v11, 1120, v10")
        a(f"v_lshl_add_u32 v{2+ii}, v9, 4, v11")
    a("s_sub_u32 s27, s24, 4")
    a("s_mul_i32 s29, s27, 40960")
    a("s_add_u32 s34, s29, s33")
    a(f"s_add_u32 s35, s34, {5*163840}")
    a("s_mul_i32 s29, s48, 163840")
    a("s_add_u32 s29, s29, s34")
    a("s_mul_i32 s30, s27, 5120")
    a("s_mov_b32 s27, 0")
    a("s_waitcnt lgkmcnt(0)")
    srd(a, 16, 6, WO_BYTES)
    stamp(a, 1)
    a.label("k3_ld")
    a("s_mov_b32 m0, s30")
    a("s_add_u32 s30, s30, 20480")
    for ii in range(5):
        a(f"buffer_load_dwordx4 v{2+ii}, s[16:19], s29 offen lds")
        if ii < 4:
            a("s_addk_i32 m0, 0x400")
            a("s_nop 0")
    a("s_add_u32 s29, s29, 163840")
    a("s_cmp_eq_u32 s29, s35")
    a("s_cselect_b32 s29, s34, s29")
    a("s_add_u32 s27, s27, 1")
    a("s_cmp_lt_u32 s27, 5")
    a("s_cbranch_scc1 k3_ld")
    stamp(a, 2)
    a("s_waitcnt vmcnt(10)")
    a("s_barrier")
    a("s_waitcnt vmcnt(0)")
    stamp(a, 3)
    a("s_barrier")
    stamp_end(a, 2, 2)
    a.label("k3_exit")
    a("s_endpgm")
    a.label("k3_comp")
    a("v_lshlrev_b32 v9, 4, v1")
    a("s_lshl_b32 s27, s25, 2")
    a("s_add_u32 s27, s27, s24")
    a("s_mul_i32 s32, s27, 20480")
    a(f"s_add_u32 s29, s32, {O_OFF}")
    a("s_add_u32 s30, s29, 20480")
    a("s_lshl_b32 s28, s48, 12")
    a("s_add_u32 s28, s28, s29")
    a("s_add_u32 s32, s32, s33")
    a("v_and_b32 v2, 15, v1")
    a("v_lshrrev_b32 v3, 4, v1")
    a("v_mul_u32_u24 v184, 1280, v2")
    a("v_lshl_add_u32 v184, v3, 3, v184")
    a("v_lshlrev_b32 v4, 3, v2")
    a("s_lshl_b32 s31, s27, 7")
    a(f"s_add_u32 s31, s31, {ST_OFF}")
    a("s_waitcnt lgkmcnt(0)")
    a(f"s_add_u32 s36, s10, {SEL_OFF}")
    a("s_addc_u32 s37, s11, 0")
    a("s_load_dwordx8 s[40:47], s[36:37], 0")
    srd(a, 12, 4, X_BYTES)
    srd(a, 20, 10, WS_USED)
    stamp(a, 1)
    a("buffer_load_dwordx2 v[10:11], v4, s[20:23], s31 offen")
    for T in range(5):
        a(f"buffer_load_dwordx2 {vr(XR+2*T,2)}, v184, s[12:15], s32 offen offset:{T*32}")
    for ks in range(NPRE): oload(a, ks)
    srd(a, 12, 8, X_BYTES)
    a("v_lshrrev_b32 v7, 2, v1")
    a("v_mul_u32_u24 v7, 160, v7")
    a("v_and_b32 v8, 3, v1")
    a("v_lshl_add_u32 v7, v8, 3, v7")
    a("v_add_u32 v8, 51200, v7")
    a(f"v_mov_b32 v14, {f32(-math.log2(math.e))}")
    for p in range(10): a(f"v_mov_b32 v{UR+p}, 0")
    a("s_sub_u32 s34, 127, s27")
    a("s_mov_b32 s35, 0")
    a("s_waitcnt lgkmcnt(0)")
    a.label("k3_sel")
    a("s_bfe_u32 s31, s40, 0x70007")
    a("s_cmp_lg_u32 s31, s34")
    a("s_cbranch_scc0 k3_hit")
    a.label("k3_seln")
    for i in range(7): a(f"s_mov_b32 s{40+i}, s{41+i}")
    a("s_add_u32 s35, s35, 1")
    a("s_cmp_lt_u32 s35, 8")
    a("s_cbranch_scc1 k3_sel")
    stamp(a, 2)
    a(f"s_waitcnt vmcnt({NPRE})")
    stamp(a, 3)
    a("v_rcp_f32 v12, v11")
    a("v_sub_f32 v10, 0, v10")
    for p in range(0, 10, 2):
        A = gate_ops(p, 176); B = gate_ops(p + 1, 180)
        for x, y in zip(A, B): a(x); a(y)
    stamp(a, 4)
    a("s_barrier")
    stamp(a, 5)
    for r in wread_list(0, 0): a(r)
    nissued = NPRE
    for ks in range(20):
        if ks == 11:
            a("s_barrier")
            stamp(a, 6)
        rd = wread_list((ks + 1) % 2, ks + 1) if ks < 19 else []
        for _ in range(2):
            if nissued < 20: oload(a, nissued); nissued += 1
        a(f"s_waitcnt vmcnt({nissued-ks-1}) lgkmcnt(0)")
        b = WB[ks % 2]
        for T in range(5):
            c = vr(ACC + 4 * T, 4)
            for r in rd[2*T:2*T+2]: a(r)
            a(f"v_mfma_f32_16x16x32_bf16 {c}, {vr(b+4*T,4)}, {vr(OF+4*ks,4)}, " + ("0" if ks == 0 else c))
    a("s_nop 3")
    stamp(a, 8)
    def fin(p, t):
        c = ACC + 2 * p; u = t + 2
        return [f"v_lshlrev_b32 v{t}, 16, v{UR+p}",
                f"v_and_b32 v{t+1}, 0xffff0000, v{UR+p}",
                f"v_cvt_pk_bf16_f32 v{c}, v{c}, v{c+1}",
                f"v_lshlrev_b32 v{u}, 16, v{XR+p}",
                f"v_and_b32 v{c+1}, 0xffff0000, v{c}",
                f"v_lshlrev_b32 v{c}, 16, v{c}",
                f"v_pk_mul_f32 {vr(c,2)}, {vr(c,2)}, {vr(t,2)}",
                f"v_and_b32 v{u+1}, 0xffff0000, v{XR+p}",
                f"v_cvt_pk_bf16_f32 v{c}, v{c}, v{c+1}",
                f"v_and_b32 v{c+1}, 0xffff0000, v{c}",
                f"v_lshlrev_b32 v{c}, 16, v{c}",
                f"v_pk_add_f32 {vr(c,2)}, {vr(c,2)}, {vr(u,2)}",
                f"v_cvt_pk_bf16_f32 v{XR+p}, v{c}, v{c+1}"]
    for p in range(0, 10, 2):
        for x, y in zip(fin(p, 176), fin(p + 1, 180)): a(x); a(y)
        a(f"buffer_store_dwordx2 {vr(XR+p,2)}, v184, s[12:15], s32 offen offset:{(p//2)*32}")
    stamp(a, 9)
    if STAMP: a("s_waitcnt vmcnt(0)")
    stamp_end(a, 2, 2)
    a("s_endpgm")
    a.label("k3_hit")
    a("v_lshlrev_b32 v4, 4, v3")
    a("s_mul_i32 s31, s35, 2560")
    a("s_lshl_b32 s38, s33, 1")
    a("s_add_u32 s31, s31, s38")
    a(f"s_add_u32 s31, s31, {PART_OFF}")
    HB = [16, 36, 56, OF + 4 * NPRE]
    for rp in range(NREP):
        for T in range(5):
            a(f"buffer_load_dwordx4 {vr(HB[rp]+4*T,4)}, v4, s[20:23], s31 offen offset:{T*64}")
        if rp < NREP - 1: a("s_addk_i32 s31, 20480")
    a("s_and_b32 s31, s40, 0xffff0000")
    a("s_ashr_i32 s38, s31, 31")
    a("s_orn2_b32 s38, 0x80000000, s38")
    a("s_xor_b32 s31, s31, s38")
    a("s_and_b32 s31, s31, 0xffff0000")
    a("v_mul_f32 v6, s31, v14")
    a("v_exp_f32 v6, v6")
    a("s_bfe_u32 s31, s40, 0x40003")
    a("s_sub_u32 s31, 15, s31")
    a("v_add_f32 v6, 1.0, v6")
    a("v_rcp_f32 v6, v6")
    a("v_cmp_eq_u32 s[38:39], s31, v2")
    a("v_cvt_pk_bf16_f32 v6, v6, v6")
    a("v_and_b32 v6, 0xffff0000, v6")
    a("s_waitcnt vmcnt(0)")
    for rp in range(1, NREP):
        for r in range(0, 20, 2): a(f"v_pk_add_f32 {vr(16+r,2)}, {vr(16+r,2)}, {vr(HB[rp]+r,2)}")
    for p in range(10):
        c = 16 + 2 * p
        a(f"v_cvt_pk_bf16_f32 v{c}, v{c}, v{c+1}")
        a(f"v_and_b32 v{c+1}, 0xffff0000, v{c}")
        a(f"v_lshlrev_b32 v{c}, 16, v{c}")
        a(f"v_mul_f32 v{c+1}, v{c+1}, v6")
        a(f"v_mul_f32 v{c}, v{c}, v6")
        a(f"v_cvt_pk_bf16_f32 v{c}, v{c}, v{c+1}")
        a(f"v_cndmask_b32 v{UR+p}, v{UR+p}, v{c}, s[38:39]")
    a("s_branch k3_seln")
    return a
```

```python
from common import *

NAME = "qkv_kernel"
NSLOT = 4
EX = NSLOT * 32768
LDS = EX + 2048
BLOCK = 512
ST_FLAG = os.environ.get("K1ST", "")

def dma_stage(a, fill=None):
    seq = [("s_mov_b32 m0, s30", "s_add_u32 s31, s28, 10240", "buffer_load_dwordx4 v2, s[12:15], s28 offen lds"),
           ("s_addk_i32 m0, 0x4000", "s_add_u32 s33, s29, 15360", "buffer_load_dwordx4 v4, s[16:19], s29 offen lds"),
           (f"s_addk_i32 m0, {0x400-0x4000}", "s_addk_i32 s28, 128", "buffer_load_dwordx4 v3, s[12:15], s31 offen lds"),
           ("s_addk_i32 m0, 0x4000", "s_addk_i32 s31, 10240", "buffer_load_dwordx4 v4, s[16:19], s33 offen lds"),
           (f"s_addk_i32 m0, {0x400-0x4000}", "s_addk_i32 s33, 15360", "buffer_load_dwordx4 v2, s[12:15], s31 offen lds"),
           ("s_addk_i32 m0, 0x4000", "s_addk_i32 s31, 10240", "buffer_load_dwordx4 v4, s[16:19], s33 offen lds"),
           (f"s_addk_i32 m0, {0x400-0x4000}", "s_addk_i32 s33, 15360", "buffer_load_dwordx4 v3, s[12:15], s31 offen lds"),
           ("s_addk_i32 m0, 0x4000", "s_add_u32 s29, s29, 245760", "buffer_load_dwordx4 v4, s[16:19], s33 offen lds")]
    for n, g in enumerate(seq):
        for x in g: a(x)
        if fill:
            for x in fill[n]: a(x)
    a("s_add_u32 s30, s30, 0x8000")
    a(f"s_and_b32 s30, s30, {NSLOT*32768-1}")
    a("s_add_u32 s32, s32, 1")
    a("s_cmp_eq_u32 s32, 10")
    a("s_cselect_b32 s28, s34, s28")
    a("s_cselect_b32 s29, s35, s29")

def cs_reads():
    return [f"ds_read_b128 {vr(32+4*i,4)}, v12 offset:{i*1024}" for i in range(4)] + \
           ["v_add_u32 v12, 0x8000, v12", f"v_and_b32 v12, {NSLOT*32768-1}, v12"]
def cs_ops():
    G = []
    for i in range(4):
        L = []
        for d in range(4):
            L.append(f"v_lshlrev_b32 v{24+2*d}, 16, v{32+4*i+d}")
            L.append(f"v_and_b32 v{25+2*d}, v15, v{32+4*i+d}")
        for d in range(8):
            L.append(f"v_add_f32 v{16+d}, v{16+d}, v{24+d}")
        G.append(L)
    return G

X = os.environ.get("K1X", "")
VGPR = 160
def read_list(ks):
    b = 32 + 16 * ks
    return [f"ds_read_b128 {vr(b,4)}, v{5+ks}",
            f"ds_read_b64_tr_b16 {vr(b+8,2)}, v13 offset:{ks*4096}",
            f"ds_read_b64_tr_b16 {vr(b+10,2)}, v13 offset:{ks*4096+1024}",
            f"ds_read_b64_tr_b16 {vr(b+12,2)}, v14 offset:{ks*4096}",
            f"ds_read_b64_tr_b16 {vr(b+14,2)}, v14 offset:{ks*4096+1024}",
            f"ds_read_b128 {vr(b+4,4)}, v{5+ks} offset:4096"]

def acc(i, j):
    return 96 + (2 * i + j) * 16

def mm(a, ks, vmode, extra=None):
    b = 32 + 16 * ks
    rd = read_list((ks + 2) % 4)
    rds = [rd[0:2], rd[2:4], rd[4:5], rd[5:6]]
    n = 0
    for i in range(2):
        for j in range(2):
            Xr = vr(b + 4 * i, 4); W = vr(b + 8 + 4 * j, 4); C = vr(acc(i, j), 16)
            if "nomm" in X: pass
            elif vmode: a(f"v_mfma_f32_32x32x16_bf16 {C}, {Xr}, {W}, {C}")
            else:     a(f"v_mfma_f32_32x32x16_bf16 {C}, {W}, {Xr}, {C}")
            for r in rds[n]:
                if "nox" in X and "b128" in r: r = "s_nop 0"
                if "now" in X and "tr_b16" in r: r = "s_nop 0"
                a(r)
            if extra:
                for e in extra[n]: a(e)
            n += 1
    if "nocs" not in X: a(f"v_mfma_f32_16x16x32_bf16 v[16:19], v[20:23], {vr(b+8,4)}, v[16:19]")

def stats_math(a, vsum, vsq, vmp, vsd, t0):
    a(f"v_mul_f32 v{vsum}, {f32(1.0/640)}, v{vsum}")
    a(f"v_mul_f32 v{vsq}, {f32(1.0/640)}, v{vsq}")
    a(f"v_fma_f32 v{vsq}, -v{vsum}, v{vsum}, v{vsq}")
    a(f"v_max_f32 v{vsq}, 0, v{vsq}")
    a(f"v_cvt_pk_bf16_f32 v{vmp}, v{vsum}, v{vsum}")
    a(f"v_cvt_pk_bf16_f32 v{t0}, v{vsq}, v{vsq}")
    a(f"v_and_b32 v{t0}, 0xffff0000, v{t0}")
    a(f"v_add_f32 v{t0}, {f32(1e-5)}, v{t0}")
    a(f"v_cvt_pk_bf16_f32 v{t0}, v{t0}, v{t0}")
    a(f"v_and_b32 v{t0}, 0xffff0000, v{t0}")
    a(f"v_sqrt_f32 v{t0}, v{t0}")
    a("s_nop 0")
    a(f"v_cvt_pk_bf16_f32 v{t0}, v{t0}, v{t0}")
    a(f"v_and_b32 v{vsd}, 0xffff0000, v{t0}")

def gemm_body(a, vmode):
    L = "k1v" if vmode else "k1q"
    stamp(a, 3)
    a("s_barrier")
    stamp(a, 4)
    for r in read_list(0) + read_list(1): a(r)
    a.label(f"{L}_loop")
    a("s_and_b32 s32, s27, 3")
    a("s_cmp_eq_u32 s32, 3")
    a("s_cselect_b32 s33, s35, s36")
    a("s_waitcnt lgkmcnt(6)")
    mm(a, 0, vmode, extra=[[], [], ["v_add_u32 v5, s33, v5"], ["v_add_u32 v6, s33, v6"]])
    a("s_waitcnt lgkmcnt(6)")
    mm(a, 1, vmode, extra=[[], [], ["v_add_u32 v7, s33, v7", "v_add_u32 v13, s33, v13"], ["v_add_u32 v14, s33, v14", "v_add_u32 v8, s33, v8"]])
    a("s_add_u32 s27, s27, 1")
    a("s_cmp_eq_u32 s27, 10")
    a("s_waitcnt lgkmcnt(6)")
    a(f"s_cbranch_scc1 {L}_nb")
    a("s_barrier")
    a.label(f"{L}_nb")
    mm(a, 2, vmode)
    a("s_waitcnt lgkmcnt(6)")
    mm(a, 3, vmode)
    a(f"s_cbranch_scc0 {L}_loop")
    stamp(a, 5)
    a("s_waitcnt vmcnt(0)")
    a("v_and_b32 v24, 31, v1")
    a("v_lshlrev_b32 v24, 2, v24")
    a("s_lshr_b32 s31, s24, 1")
    a("s_lshl_b32 s31, s31, 8")
    a(f"s_add_u32 s31, s31, {EX}")
    a("v_add_u32 v9, s31, v24")
    a("s_lshl_b32 s33, s38, 8")
    a(f"s_add_u32 s33, s33, {EX+1024}")
    a("v_lshl_add_u32 v10, v1, 2, s33")
    if vmode:
        a("v_lshrrev_b32 v11, 5, v1")
        a("v_lshl_add_u32 v11, v11, 4, s31")
    a("v_cvt_pk_bf16_f32 v26, v16, v16")
    a("v_mov_b32 v23, 0")
    a("v_and_b32 v26, 0xffff0000, v26")
    a("v_mov_b32 v25, 0")
    a("v_sub_f32 v16, v16, v26")
    a("v_mov_b32 v27, 0")
    a("v_cvt_pk_bf16_f32 v26, -v26, -v16")
    a("v_mov_b32 v29, 0")
    a("ds_write_b32 v10, v26")
    a("v_xor_b32 v10, 256, v10")
    a("s_lshl_b32 s42, s25, 2")
    a("s_and_b32 s43, s24, 2")
    a("s_waitcnt lgkmcnt(0)")
    a("s_barrier")
    a("ds_read_b32 v22, v9")
    a("ds_read_b32 v24, v9 offset:128")
    a("ds_read_b32 v28, v10")
    if not vmode:
        a("ds_read_b32 v30, v9 offset:512")
        a("ds_read_b32 v20, v9 offset:640")
        a("s_waitcnt lgkmcnt(2)")
    else:
        for g in range(8):
            a(f"ds_read_b128 {vr(32+4*g,4)}, v11 offset:{512+32*g}")
        a("s_waitcnt lgkmcnt(8)")
    def corr(i, j):
        M = vr(22 + 2 * i, 2); CS = vr(26 + 2 * j, 2); C = vr(acc(i, j), 16)
        if vmode: a(f"v_mfma_f32_32x32x8_bf16 {C}, {M}, {CS}, {C}")
        else:     a(f"v_mfma_f32_32x32x8_bf16 {C}, {CS}, {M}, {C}")
    corr(0, 0); corr(1, 0); corr(0, 1); corr(1, 1)
    if not vmode:
        a("v_lshrrev_b32 v18, 5, v1")
        a("v_lshlrev_b32 v18, 8, v18")
        a("v_and_b32 v19, 31, v1")
        a("v_lshl_add_u32 v18, v19, 3, v18")
    else:
        a("v_lshrrev_b32 v18, 5, v1")
        a("v_mul_u32_u24 v18, 10240, v18")
        a("v_and_b32 v19, 31, v1")
        a("v_lshl_add_u32 v18, v19, 4, v18")
    a("s_add_u32 s42, s42, s43")
    a(f"s_mul_i32 s42, s42, {TILE_B}")
    a(f"s_add_u32 s43, s42, {TILE_B}")
    a("s_lshl_b32 s44, s26, 2")
    a("s_add_u32 s44, s44, s38")
    a("s_xor_b32 s45, s44, 1")
    a("s_waitcnt lgkmcnt(0)")
    if not vmode:
        a("s_lshl_b32 s44, s44, 11")
        a("s_lshl_b32 s45, s45, 11")
    else:
        a("s_lshl_b32 s44, s44, 9")
        a("s_lshl_b32 s45, s45, 9")
        a(f"s_add_u32 s44, s44, {81920 - 40*512}")
        a(f"s_add_u32 s45, s45, {81920 - 40*512}")
    stamp(a, 6)
    for j in range(2):
        for i in range(2):
            c = acc(i, j)
            a(f"s_add_u32 s46, s{42+i}, s{44+j}")
            if vmode: a("s_add_u32 s47, s46, 20480")
            for p in range(8):
                if vmode:
                    a(f"v_pk_mul_f32 {vr(c+2*p,2)}, {vr(c+2*p,2)}, {vr(32+16*i+2*p,2)}")
                else:
                    rs = 30 if i == 0 else 20
                    a(f"v_pk_mul_f32 {vr(c+2*p,2)}, {vr(c+2*p,2)}, {vr(rs,2)} op_sel_hi:[1,0]")
            for p in range(8):
                a(f"v_cvt_pk_bf16_f32 v{c+p}, v{c+2*p}, v{c+2*p+1}")
            if vmode:
                a(f"buffer_store_dwordx4 {vr(c,4)}, v18, s[20:23], s46 offen {ST_FLAG}")
                a(f"buffer_store_dwordx4 {vr(c+4,4)}, v18, s[20:23], s47 offen {ST_FLAG}")
            else:
                for g in range(4):
                    a(f"buffer_store_dwordx2 {vr(c+2*g,2)}, v18, s[20:23], s46 offen offset:{g*512} {ST_FLAG}")
    stamp(a, 7)
    if STAMP: a("s_waitcnt vmcnt(0)")
    stamp_end(a, 0, 2)
    a("s_endpgm")

def loader(a):
    a.label("k1_loader")
    a("s_sub_u32 s39, s24, 4")
    a("v_lshrrev_b32 v5, 3, v1")
    a("v_mul_u32_u24 v5, 1280, v5")
    a("v_lshrrev_b32 v6, 4, v1")
    a("v_and_b32 v7, 7, v1")
    a("v_xor_b32 v7, v7, v6")
    a("v_lshl_add_u32 v2, v7, 4, v5")
    a("v_xor_b32 v3, 64, v2")
    a("v_mul_u32_u24 v5, 3840, v6")
    a("v_lshlrev_b32 v7, 2, v6")
    a("v_and_b32 v8, 15, v1")
    a("v_xor_b32 v7, v7, v8")
    a("v_lshl_add_u32 v4, v7, 4, v5")
    a("s_lshl_b32 s34, s25, 2")
    a("s_add_u32 s34, s34, s39")
    a("s_mul_i32 s34, s34, 40960")
    a("s_mul_i32 s35, s39, 61440")
    a("s_lshl_b32 s31, s26, 8")
    a("s_add_u32 s35, s35, s31")
    a("s_and_b32 s32, s25, 3")
    a("s_mul_i32 s32, s32, 3")
    a("s_add_u32 s32, s32, s26")
    a("s_sub_u32 s31, s32, 10")
    a("s_cselect_b32 s32, s32, s31")
    a("s_sub_u32 s31, s32, 10")
    a("s_cselect_b32 s32, s32, s31")
    if "norot" in X: a("s_mov_b32 s32, 0")
    a("s_lshl_b32 s28, s32, 7")
    a("s_add_u32 s28, s28, s34")
    a("s_mul_i32 s29, s32, 245760")
    a("s_add_u32 s29, s29, s35")
    a("s_lshl_b32 s30, s39, 12")
    a("s_mov_b32 s27, 0")
    a("s_waitcnt lgkmcnt(0)")
    srd(a, 12, 4, X_BYTES)
    srd(a, 16, 6, WQKV_BYTES)
    stamp(a, 1)
    a.label("k1l_loop")
    dma_stage(a)
    a("s_add_u32 s27, s27, 1")
    a("s_cmp_eq_u32 s27, 1")
    a("s_cbranch_scc1 k1l_loop")
    a("s_cmp_eq_u32 s27, 10")
    a("s_cbranch_scc1 k1l_tail")
    a("s_waitcnt vmcnt(8)")
    a("s_barrier")
    a("s_branch k1l_loop")
    a.label("k1l_tail")
    a("s_cmp_ge_u32 s39, 2")
    a("s_cbranch_scc0 k1l_st")
    a("s_waitcnt vmcnt(8)")
    a("s_barrier")
    a("s_waitcnt vmcnt(0)")
    a("s_barrier")
    a("s_endpgm")
    a.label("k1l_st")
    a("s_lshl_b32 s31, s25, 2")
    a("v_mov_b32 v5, s31")
    if "nostat" not in X: a("global_load_dword v8, v5, s[8:9] sc1")
    else: a("global_load_dword v8, v5, s[4:5]")
    a("s_waitcnt vmcnt(9)")
    a("s_barrier")
    stamp(a, 2)
    srd(a, 20, 10, WS_USED)
    a("s_lshl_b32 s33, s39, 6")
    a("v_add_u32 v6, s33, v1")
    a("v_lshlrev_b32 v7, 3, v6")
    a("v_lshlrev_b32 v6, 2, v6")
    a(f"v_add_u32 v6, {EX}, v6")
    a("s_lshl_b32 s33, s25, 10")
    a(f"s_add_u32 s33, s33, {ST_OFF}")
    a("s_cmp_lt_u32 s26, 5")
    a(f"s_cselect_b32 s37, {f32(QSCALE)}, 1.0")
    a("s_mov_b32 s27, 0")
    a("s_waitcnt vmcnt(1)")
    a("s_barrier")
    a.label("k1l_poll")
    a("s_waitcnt vmcnt(0)")
    a("v_readfirstlane_b32 s31, v8")
    a("s_add_u32 s27, s27, 1")
    a("s_cmp_lg_u32 s31, 0")
    a("s_cbranch_scc1 k1l_go")
    a("s_cmp_ge_u32 s27, 0x400000")
    a("s_cbranch_scc1 k1l_go")
    a("s_sleep 2")
    a("global_load_dword v8, v5, s[8:9] sc1")
    a("s_branch k1l_poll")
    a.label("k1l_go")
    stamp(a, 4)
    a("buffer_load_dwordx2 v[10:11], v7, s[20:23], s33 offen sc1")
    a("s_waitcnt vmcnt(0)")
    a("v_rcp_f32 v11, v11")
    a("v_lshrrev_b32 v9, 16, v10")
    a("v_or_b32 v10, v10, v9")
    a("v_mul_f32 v11, s37, v11")
    a("ds_write_b32 v6, v10")
    a("ds_write_b32 v6, v11 offset:512")
    a("s_waitcnt lgkmcnt(0)")
    stamp(a, 5)
    a("s_barrier")
    stamp(a, 3)
    stamp_end(a, 0, 2)
    a("s_endpgm")

def router(a):
    a.label("k1_router")
    a("s_load_dwordx2 s[6:7], s[0:1], 32")
    a("v_and_b32 v3, 15, v1")
    a("v_lshlrev_b32 v4, 4, v3")
    a("v_lshrrev_b32 v5, 4, v1")
    a("v_mul_u32_u24 v5, 1280, v5")
    a("v_add_u32 v5, v5, v4")
    a("s_lshl_b32 s28, s25, 3")
    a("s_add_u32 s28, s28, s24")
    a("s_mul_i32 s28, s28, 20480")
    a("s_waitcnt lgkmcnt(0)")
    srd(a, 12, 4, X_BYTES)
    srd(a, 16, 6, WR_BYTES)
    def xl(g):
        for i in range(5):
            a(f"buffer_load_dwordx4 {vr(44+20*g+4*i,4)}, v5, s[12:15], s28 offen offset:{i*256}")
        a("s_addk_i32 s28, 5120")
    xl(0)
    xl(1)
    srd(a, 20, 10, WS_USED)
    a("s_mov_b32 s34, 0x3f803f80")
    a("s_mov_b32 s40, 0x00010001")
    a("s_mov_b32 s41, 0x00010001")
    for r in (9, 10, 11, 12): a(f"v_mov_b32 v{r}, 0")
    stamp(a, 3)
    for g in range(4):
        for r in (6, 7, 8, 13): a(f"v_mov_b32 v{r}, 0")
        a("s_waitcnt vmcnt(5)")
        if g < 2: xl(g + 2)
        if g == 2:
            for i in range(5):
                a(f"buffer_load_dwordx4 {vr(24+4*i,4)}, v4, s[16:19], 0 offen offset:{i*256}")
        if g == 0: stamp(a, 4)
        for r in range(0, 20, 2):
            x = 44 + 20 * g + r
            a(f"v_dot2c_f32_bf16 v6, s34, v{x}")
            a(f"v_dot2c_f32_bf16 v7, v{x}, v{x}")
            a(f"v_dot2c_f32_bf16 v8, s34, v{x+1}")
            a(f"v_dot2c_f32_bf16 v13, v{x+1}, v{x+1}")
        a("s_nop 1")
        a("v_add_f32 v6, v6, v8")
        a("s_nop 0")
        a("v_add_f32 v7, v7, v13")
        for sh in (8, 4, 2, 1):
            a("s_nop 0")
            for r in (6, 7):
                a(f"v_add_f32_dpp v{r}, v{r}, v{r} row_ror:{sh} row_mask:0xf bank_mask:0xf")
        a("v_cndmask_b32 v10, v10, v6, s[40:41]")
        a("v_cndmask_b32 v11, v11, v7, s[40:41]")
        if g < 3: a("s_lshl_b64 s[40:41], s[40:41], 1")
    stamp(a, 5)
    stats_math(a, 10, 11, 14, 15, 16)
    a("v_and_b32 v14, 0xffff0000, v14")
    a("v_lshrrev_b32 v17, 4, v1")
    a("v_lshl_add_u32 v17, v3, 2, v17")
    a("s_lshl_b32 s31, s24, 4")
    a("v_add_u32 v17, s31, v17")
    a("s_lshl_b32 s31, s25, 7")
    a("v_add_u32 v18, s31, v17")
    a("v_lshlrev_b32 v21, 3, v18")
    a("s_mov_b32 s42, 0x000f000f")
    a("s_mov_b32 s43, 0x000f000f")
    a("s_mov_b64 exec, s[42:43]")
    a(f"s_mov_b32 s31, {ST_OFF}")
    a("buffer_store_dwordx2 v[14:15], v21, s[20:23], s31 offen sc1")
    a("s_mov_b64 exec, -1")
    a("s_waitcnt vmcnt(0)")
    a("s_barrier")
    a("s_cmp_lg_u32 s24, 0")
    a("s_cbranch_scc1 k1r_nf")
    a("s_lshl_b32 s31, s25, 2")
    a("v_mov_b32 v4, s31")
    a("v_mov_b32 v5, 1")
    a("s_mov_b64 exec, 1")
    a("global_store_dword v4, v5, s[8:9] sc1")
    a("s_mov_b64 exec, -1")
    a.label("k1r_nf")
    a("s_cmp_ge_u32 s24, 5")
    a("s_cbranch_scc1 k1r_nz")
    a("v_lshlrev_b32 v4, 4, v0")
    for r in range(4): a(f"v_mov_b32 v{124+r}, 0")
    a("s_mul_i32 s31, s25, 5120")
    a(f"s_add_u32 s31, s31, {PART_OFF}")
    a("buffer_store_dwordx4 v[124:127], v4, s[20:23], s31 offen")
    a.label("k1r_nz")
    if "notlb" not in X:
        a("s_lshl_b32 s31, s24, 2")
        a("s_lshr_b32 s31, 0x765a8aaa, s31")
        a("s_and_b32 s31, s31, 15")
        a("s_lshl_b32 s31, s31, 3")
        a("s_load_dwordx2 s[44:45], s[0:1], s31")
        a(f"s_mov_b32 s46, {WG_BYTES}")
        a("s_cmp_eq_u32 s24, 3")
        a(f"s_cselect_b32 s46, {X_BYTES}, s46")
        a("s_cmp_lt_u32 s24, 3")
        a(f"s_cselect_b32 s46, {WS_USED}, s46")
        a("s_cselect_b32 s31, s24, 0")
        a("s_lshl_b32 s31, s31, 22")
        a("s_mov_b32 s47, 0x20000")
        a("v_lshlrev_b32 v4, 16, v1")
        a("s_waitcnt lgkmcnt(0)")
        a("s_cmp_lg_u32 s24, 4")
        a("s_cbranch_scc1 k1r_tgo")
        a("s_getpc_b64 s[44:45]")
        a.label("k1r_tpc")
        a("s_add_u32 s44, s44, attn_kernel-k1r_tpc")
        a("s_addc_u32 s45, s45, 0")
        a("s_mov_b32 s46, code_end-attn_kernel")
        a("v_lshlrev_b32 v4, 7, v1")
        a.label("k1r_tgo")
        a("buffer_load_dword v128, v4, s[44:47], s31 offen")
    stamp(a, 6)
    for r in (6, 7, 8, 13): a(f"v_mov_b32 v{r}, 0")
    for r in range(20):
        for g, ac in enumerate((6, 7, 8, 13)):
            a(f"v_dot2c_f32_bf16 v{ac}, v{24+r}, v{44+20*g+r}")
        a(f"v_dot2c_f32_bf16 v9, s34, v{24+r}")
    a("s_mov_b32 s40, 0x00010001")
    a("s_mov_b32 s41, 0x00010001")
    a("s_nop 0")
    for sh in (8, 4, 2, 1):
        for r in (6, 7, 8, 13, 9):
            a(f"v_add_f32_dpp v{r}, v{r}, v{r} row_ror:{sh} row_mask:0xf bank_mask:0xf")
    for ac in (6, 7, 8, 13):
        a(f"v_cndmask_b32 v12, v12, v{ac}, s[40:41]")
        a("s_lshl_b64 s[40:41], s[40:41], 1")
    a("s_mov_b64 exec, s[42:43]")
    a("v_rcp_f32 v16, v15")
    a("v_fma_f32 v12, -v14, v9, v12")
    a("v_mul_f32 v12, v12, v16")
    a("v_cvt_pk_bf16_f32 v12, v12, v12")
    a("v_ashrrev_i32 v13, 31, v12")
    a("v_or_b32 v13, 0x80000000, v13")
    a("v_xor_b32 v12, v12, v13")
    a("v_and_b32 v12, 0xffff0000, v12")
    a("v_sub_u32 v19, 2047, v18")
    a("v_lshl_or_b32 v12, v19, 3, v12")
    a("v_lshlrev_b32 v19, 2, v17")
    a("v_lshlrev_b32 v20, 3, v17")
    a("ds_write_b32 v19, v12")
    a("ds_write_b64 v20, v[14:15] offset:512")
    a("s_mov_b64 exec, -1")
    a("v_lshlrev_b32 v2, 3, v1")
    a("s_waitcnt lgkmcnt(0)")
    a("s_barrier")
    a("ds_read_b64 v[6:7], v2")
    a("v_mov_b32 v9, 0")
    a("s_mov_b32 s27, 0")
    a("s_waitcnt lgkmcnt(0)")
    a.label("k1r_top")
    top8_rounds(a, 6, 7, 8, 31)
    a("s_or_b32 s33, s31, s27")
    a("s_mov_b32 m0, s27")
    a("v_cmp_ne_u32 s[40:41], s31, v6")
    a("v_cmp_ne_u32 s[42:43], s31, v7")
    a("v_writelane_b32 v9, s33, m0")
    a("s_add_u32 s27, s27, 1")
    a("v_cndmask_b32 v6, 0, v6, s[40:41]")
    a("v_cndmask_b32 v7, 0, v7, s[42:43]")
    a("s_cmp_le_u32 s27, s24")
    a("s_cbranch_scc1 k1r_top")
    a("s_lshl_b32 s35, s25, 3")
    a("s_add_u32 s35, s35, s24")
    a("s_bfe_u32 s31, s33, 0xb0003")
    a("s_sub_u32 s31, 2047, s31")
    a("s_and_b32 s36, s31, 127")
    a("s_lshl_b32 s36, s36, 3")
    a("v_mov_b32 v4, s36")
    a("ds_read_b64 v[14:15], v4 offset:512")
    a("s_mul_i32 s31, s31, 1280")
    a("v_lshlrev_b32 v6, 4, v1")
    a("v_lshlrev_b32 v7, 2, v1")
    a("buffer_load_dwordx4 v[32:35], v6, s[12:15], s31 offen")
    a("buffer_load_dword v36, v7, s[12:15], s31 offen offset:1024")
    a("s_lshl_b32 s36, s35, 2")
    a(f"s_add_u32 s36, s36, {CAND_OFF}")
    a("v_mov_b32 v4, 0")
    a("v_mov_b32 v5, s33")
    a("s_mov_b64 exec, 1")
    a("buffer_store_dword v5, v4, s[20:23], s36 offen")
    a("s_mov_b64 exec, -1")
    a("s_mul_i32 s35, s35, 1280")
    a(f"s_add_u32 s35, s35, {XS_OFF}")
    a("s_waitcnt lgkmcnt(0)")
    a("v_rcp_f32 v16, v15")
    a("v_sub_f32 v14, 0, v14")
    a("s_waitcnt vmcnt(1)")
    for r in range(5):
        norm_pair(a, 32 + r, 14, 16, 18)
    a("buffer_store_dwordx4 v[32:35], v6, s[20:23], s35 offen")
    a("buffer_store_dword v36, v7, s[20:23], s35 offen offset:1024")
    stamp(a, 7)
    if STAMP: a("s_waitcnt vmcnt(0)")
    stamp_end(a, 0, 2)
    a("s_endpgm")

def gen():
    a = Asm()
    a.raw(f".globl {NAME}\n.p2align 8\n.type {NAME},@function")
    a.label(NAME)
    a("s_cmp_ge_u32 s2, 256")
    a("s_cbranch_scc1 k1_exit")
    stamp(a, 0)
    a("s_load_dwordx4 s[4:7], s[0:1], 0")
    a("s_load_dwordx4 s[8:11], s[0:1], 72")
    a("v_lshrrev_b32 v2, 6, v0")
    a("v_and_b32 v1, 63, v0")
    a("s_and_b32 s28, s2, 7")
    a("v_readfirstlane_b32 s24, v2")
    a("s_lshr_b32 s29, s2, 3")
    a("s_lshr_b32 s30, s28, 1")
    a("s_and_b32 s28, s28, 1")
    a("s_lshl_b32 s30, s30, 2")
    a("s_cmp_lt_u32 s29, 2")
    a("s_cbranch_scc0 k1_gemm")
    a("s_lshl_b32 s28, s28, 1")
    a("s_add_u32 s25, s30, s28")
    a("s_add_u32 s25, s25, s29")
    a("s_waitcnt lgkmcnt(0)")
    a("s_branch k1_router")
    a.label("k1_exit")
    a("s_endpgm")
    a.label("k1_gemm")
    a("s_mul_i32 s28, s28, 30")
    a("s_add_u32 s28, s28, s29")
    a("s_sub_u32 s28, s28, 2")
    a("s_lshr_b32 s26, s28, 2")
    a("s_and_b32 s28, s28, 3")
    a("s_add_u32 s25, s30, s28")
    a("s_cmp_ge_u32 s24, 4")
    a("s_cbranch_scc0 k1_comp")
    loader(a)
    a.label("k1_comp")
    a("s_mov_b32 s27, 0")
    a(f"s_mov_b32 s35, {(-(NSLOT-1)*32768) & 0xffffffff}")
    a("s_mov_b32 s36, 0x8000")
    a("s_and_b32 s38, s24, 1")
    a("s_lshl_b32 s38, s38, 1")
    a("s_lshr_b32 s31, s24, 1")
    a("s_add_u32 s38, s38, s31")
    a("s_lshl_b32 s30, s31, 13")
    a("v_and_b32 v18, 31, v1")
    a("v_lshlrev_b32 v18, 7, v18")
    a("v_lshrrev_b32 v19, 5, v1")
    a("v_bfe_u32 v20, v1, 1, 3")
    a("v_xor_b32 v20, v20, v19")
    a("v_lshl_add_u32 v18, v20, 4, v18")
    a("v_add_u32 v5, s30, v18")
    for ks in range(1, 4):
        a(f"v_xor_b32 v{5+ks}, {ks<<5}, v5")
    a("v_bfe_u32 v20, v1, 2, 2")
    a("v_lshl_add_u32 v21, v19, 3, v20")
    a("v_lshlrev_b32 v21, 8, v21")
    a("v_xor_b32 v20, s38, v20")
    a("v_lshl_add_u32 v21, v20, 6, v21")
    a("v_bfe_u32 v20, v1, 4, 1")
    a("v_lshl_add_u32 v21, v20, 5, v21")
    a("v_and_b32 v20, 3, v1")
    a("v_lshl_add_u32 v21, v20, 3, v21")
    a("v_add_u32 v13, 0x4000, v21")
    a("v_xor_b32 v14, 64, v13")
    a("s_mov_b32 s40, 0x00100001")
    a("s_mov_b32 s41, 0x00100001")
    a("v_mov_b32 v24, 0x3f803f80")
    for r in range(4):
        a(f"v_mov_b32 v{16+r}, 0")
        a(f"v_cndmask_b32 v{20+r}, 0, v24, s[40:41]")
    for r in range(96, 160):
        a(f"v_mov_b32 v{r}, 0")
    a("s_waitcnt lgkmcnt(0)")
    if "pf" in X:
        srd(a, 12, 4, X_BYTES)
        srd(a, 16, 6, WQKV_BYTES)
        a("v_lshrrev_b32 v25, 5, v1")
        a("v_lshlrev_b32 v25, 6, v25")
        a("v_bfe_u32 v26, v1, 1, 4")
        a("v_add_u32 v25, v25, v26")
        a("v_mul_u32_u24 v25, 3840, v25")
        a("v_and_b32 v26, 1, v1")
        a("v_lshl_add_u32 v25, v26, 7, v25")
        a("s_lshl_b32 s31, s24, 3")
        a("s_and_b32 s33, s25, 3")
        a("s_add_u32 s31, s31, s33")
        a("s_add_u32 s31, s31, 8")
        a("s_mul_i32 s31, s31, 61440")
        a("s_lshl_b32 s33, s26, 8")
        a("s_add_u32 s31, s31, s33")
        a("buffer_load_dword v27, v25, s[16:19], s31 offen")
        a("v_and_b32 v25, 15, v1")
        a("v_mul_u32_u24 v25, 1280, v25")
        a("v_bfe_u32 v26, v1, 4, 1")
        a("v_lshl_add_u32 v25, v26, 7, v25")
        a("s_lshl_b32 s31, s25, 3")
        a("s_and_b32 s33, s26, 7")
        a("s_add_u32 s31, s31, s33")
        a("s_mul_i32 s31, s31, 20480")
        a("s_lshl_b32 s33, s24, 8")
        a("s_add_u32 s31, s31, s33")
        a("buffer_load_dword v31, v25, s[12:15], s31 offen offset:256")
    srd(a, 20, 10, WS_USED)
    a("s_cmp_ge_u32 s26, 10")
    a("s_cbranch_scc1 k1_vbody")
    gemm_body(a, False)
    a.label("k1_vbody")
    gemm_body(a, True)
    router(a)
    return a
```

```python
import math, struct

class Asm:
    def __init__(self):
        self.lines = []
    def __call__(self, s):
        for l in s.strip("\n").split("\n"):
            self.lines.append("    " + l.strip())
    def label(self, l):
        self.lines.append(l + ":")
    def raw(self, s):
        self.lines.append(s)
    def text(self):
        return "\n".join(self.lines) + "\n"

def f32(x):
    return "0x%08x" % struct.unpack("<I", struct.pack("<f", x))[0]

def vr(a, n):
    return f"v[{a}:{a+n-1}]"
def sr(a, n):
    return f"s[{a}:{a+n-1}]"

S, D, H, DH, F = 2048, 640, 32, 20, 1536
X_BYTES = S * D * 2
WQKV_BYTES = D * 3 * D * 2
WO_BYTES = D * D * 2
WR_BYTES = D * 2
WG_BYTES = D * F * 2
TILE_B = 122880
IMG_OFF = 0
O_OFF = IMG_OFF + 64 * TILE_B
ST_OFF = O_OFF + X_BYTES
CAND_OFF = ST_OFF + 16384
SEL_OLD = CAND_OFF + 1024
H_OFF = SEL_OLD + 1024
UPD_OFF = H_OFF + 32768
XS_OFF = UPD_OFF + 16384
CNT_OFF = XS_OFF + 128 * 1280
MOE_CNT = CNT_OFF + 8192
SEL_OFF = CNT_OFF + 4096
PART_OFF = CNT_OFF + 16384
NMOE = 96
NREP = 4
WOP_OFF = PART_OFF + NREP * 20480
WS_USED = WOP_OFF + WO_BYTES
QSCALE = math.log2(math.e) / math.sqrt(DH)

def srd(a, base, ptr, nbytes):
    a(f"s_mov_b32 s{base}, s{ptr}")
    a(f"s_mov_b32 s{base+1}, s{ptr+1}")
    a(f"s_mov_b32 s{base+2}, {nbytes}")
    a(f"s_mov_b32 s{base+3}, 0x20000")

def desc(name, vgpr, sgpr):
    acc = (vgpr + 3) // 4 * 4
    return f""".p2align 6
.amdhsa_kernel {name}
  .amdhsa_next_free_vgpr {vgpr}
  .amdhsa_next_free_sgpr {sgpr}
  .amdhsa_accum_offset {acc}
  .amdhsa_group_segment_fixed_size 0
  .amdhsa_kernarg_size 88
  .amdhsa_user_sgpr_count 2
  .amdhsa_user_sgpr_kernarg_segment_ptr 1
  .amdhsa_system_sgpr_workgroup_id_x 1
.end_amdhsa_kernel
"""

def top8_rounds(a, k0, k1, tmp, sdst, per_round=None):
    a(f"v_max_u32 v{tmp}, v{k0}, v{k1}")
    for dpp in ("row_ror:8 row_mask:0xf bank_mask:0xf", "row_ror:4 row_mask:0xf bank_mask:0xf",
                "row_ror:2 row_mask:0xf bank_mask:0xf", "row_ror:1 row_mask:0xf bank_mask:0xf",
                "row_bcast:15 row_mask:0xa bank_mask:0xf", "row_bcast:31 row_mask:0xc bank_mask:0xf"):
        a("s_nop 1")
        a(f"v_max_u32_dpp v{tmp}, v{tmp}, v{tmp} {dpp}")
    a("s_nop 1")
    a(f"v_readlane_b32 s{sdst}, v{tmp}, 63")

def norm_pair(a, d, negm, rstd, t):
    a(f"v_lshlrev_b32 v{t}, 16, v{d}")
    a(f"v_and_b32 v{t+1}, 0xffff0000, v{d}")
    a(f"v_pk_add_f32 {vr(t,2)}, {vr(t,2)}, {vr(negm,2)} op_sel_hi:[1,0]")
    a(f"v_cvt_pk_bf16_f32 v{d}, v{t}, v{t+1}")
    a(f"v_lshlrev_b32 v{t}, 16, v{d}")
    a(f"v_and_b32 v{t+1}, 0xffff0000, v{d}")
    a(f"v_pk_mul_f32 {vr(t,2)}, {vr(t,2)}, {vr(rstd,2)} op_sel_hi:[1,0]")
    a(f"v_cvt_pk_bf16_f32 v{d}, v{t}, v{t+1}")

import os
STAMP = int(os.environ.get("STAMP", "0"))
STAMP_OFF = 64 << 20
SB = 64
DIAG = os.environ.get("DIAG", "")
_kidx = [0]
def stamp(a, i):
    if DIAG:
        a(f"s_memrealtime s[{SB+2+2*i}:{SB+3+2*i}]")
        return
    if not STAMP: return
    if i == 0:
        a(f"s_memrealtime s[{SB}:{SB+1}]")
        for j in range(2, 12): a(f"s_mov_b32 s{SB+2*j}, 0")
    a(("s_memrealtime" if STAMP == 2 else "s_memtime") + f" s[{SB+2+2*i}:{SB+3+2*i}]")
def stamp_end(a, kidx, vt=120):
    if DIAG:
        _kidx[0] += 1
        lab = f"diag_skip{_kidx[0]}"
        a(f"s_cmp_lg_u32 s2, {os.environ.get(chr(68)+chr(87)+chr(71), 100)}")
        a(f"s_cbranch_scc1 {lab}")
        a("s_cmp_lg_u32 s24, 0")
        a(f"s_cbranch_scc1 {lab}")
        a("s_waitcnt vmcnt(0)")
        a(f"s_memrealtime s[{SB+24}:{SB+25}]")
        a("s_mov_b64 exec, 1")
        a(f"v_mov_b32 v{vt}, {STAMP_OFF + kidx * 64}")
        a("s_waitcnt lgkmcnt(0)")
        for n in range(12):
            a(f"v_mov_b32 v{vt+1}, s{SB+2+2*n}")
            a(f"global_store_dword v{vt}, v{vt+1}, s[10:11] offset:{4*n}")
        a.label(lab)
        return
    if not STAMP: return
    a("s_mov_b64 exec, 1")
    a(("s_memrealtime" if STAMP == 2 else "s_memtime") + f" s[{SB+24}:{SB+25}]")
    a(f"s_memrealtime s[{SB+26}:{SB+27}]")
    a("s_lshl_b32 s96, s2, 3")
    a("s_add_u32 s96, s96, s24")
    a("s_lshl_b32 s96, s96, 6")
    a(f"s_add_u32 s96, s96, {STAMP_OFF + kidx * (1<<20)}")
    a(f"v_mov_b32 v{vt}, s96")
    a("s_waitcnt lgkmcnt(0)")
    regs = [SB, SB + 26] + [SB + 2 + 2 * i for i in range(12)]
    for n, r in enumerate(regs):
        a(f"v_mov_b32 v{vt+1}, s{r}")
        a(f"global_store_dword v{vt}, v{vt+1}, s[10:11] offset:{4*n}")
    a("s_getreg_b32 s96, hwreg(HW_REG_HW_ID)")
    a(f"v_mov_b32 v{vt+1}, s96")
    a(f"global_store_dword v{vt}, v{vt+1}, s[10:11] offset:56")
    a("s_waitcnt vmcnt(0)")
```

```python
from common import *

NAME = "qkv_kernel"
NSLOT = 4
EX = NSLOT * 32768
LDS = EX + 2048
BLOCK = 512
ST_FLAG = os.environ.get("K1ST", "")

def dma_stage(a, fill=None):
    seq = [("s_mov_b32 m0, s30", "s_add_u32 s31, s28, 10240", "buffer_load_dwordx4 v2, s[12:15], s28 offen lds"),
           ("s_addk_i32 m0, 0x4000", "s_add_u32 s33, s29, 15360", "buffer_load_dwordx4 v4, s[16:19], s29 offen lds"),
           (f"s_addk_i32 m0, {0x400-0x4000}", "s_addk_i32 s28, 128", "buffer_load_dwordx4 v3, s[12:15], s31 offen lds"),
           ("s_addk_i32 m0, 0x4000", "s_addk_i32 s31, 10240", "buffer_load_dwordx4 v4, s[16:19], s33 offen lds"),
           (f"s_addk_i32 m0, {0x400-0x4000}", "s_addk_i32 s33, 15360", "buffer_load_dwordx4 v2, s[12:15], s31 offen lds"),
           ("s_addk_i32 m0, 0x4000", "s_addk_i32 s31, 10240", "buffer_load_dwordx4 v4, s[16:19], s33 offen lds"),
           (f"s_addk_i32 m0, {0x400-0x4000}", "s_addk_i32 s33, 15360", "buffer_load_dwordx4 v3, s[12:15], s31 offen lds"),
           ("s_addk_i32 m0, 0x4000", "s_add_u32 s29, s29, 245760", "buffer_load_dwordx4 v4, s[16:19], s33 offen lds")]
    for n, g in enumerate(seq):
        for x in g: a(x)
        if fill:
            for x in fill[n]: a(x)
    a("s_add_u32 s30, s30, 0x8000")
    a(f"s_and_b32 s30, s30, {NSLOT*32768-1}")
    a("s_add_u32 s32, s32, 1")
    a("s_cmp_eq_u32 s32, 10")
    a("s_cselect_b32 s28, s34, s28")
    a("s_cselect_b32 s29, s35, s29")

def cs_reads():
    return [f"ds_read_b128 {vr(32+4*i,4)}, v12 offset:{i*1024}" for i in range(4)] + \
           ["v_add_u32 v12, 0x8000, v12", f"v_and_b32 v12, {NSLOT*32768-1}, v12"]
def cs_ops():
    G = []
    for i in range(4):
        L = []
        for d in range(4):
            L.append(f"v_lshlrev_b32 v{24+2*d}, 16, v{32+4*i+d}")
            L.append(f"v_and_b32 v{25+2*d}, v15, v{32+4*i+d}")
        for d in range(8):
            L.append(f"v_add_f32 v{16+d}, v{16+d}, v{24+d}")
        G.append(L)
    return G

X = os.environ.get("K1X", "")
VGPR = 176
def read_list(ks):
    b = 32 + 16 * ks
    return [f"ds_read_b128 {vr(b,4)}, v{5+ks}",
            f"ds_read_b64_tr_b16 {vr(b+8,2)}, v13 offset:{ks*4096}",
            f"ds_read_b64_tr_b16 {vr(b+10,2)}, v13 offset:{ks*4096+1024}",
            f"ds_read_b64_tr_b16 {vr(b+12,2)}, v14 offset:{ks*4096}",
            f"ds_read_b64_tr_b16 {vr(b+14,2)}, v14 offset:{ks*4096+1024}",
            f"ds_read_b128 {vr(b+4,4)}, v{5+ks} offset:4096"]

def acc(i, j):
    return 96 + (2 * i + j) * 16

def mm(a, ks, vmode, extra=None):
    b = 32 + 16 * ks
    rd = read_list((ks + 2) % 4)
    rds = [rd[0:2], rd[2:4], rd[4:5], rd[5:6]]
    n = 0
    for i in range(2):
        for j in range(2):
            Xr = vr(b + 4 * i, 4); W = vr(b + 8 + 4 * j, 4); C = vr(acc(i, j), 16)
            if "nomm" in X: pass
            elif vmode: a(f"v_mfma_f32_32x32x16_bf16 {C}, {Xr}, {W}, {C}")
            else:     a(f"v_mfma_f32_32x32x16_bf16 {C}, {W}, {Xr}, {C}")
            for r in rds[n]:
                if "nox" in X and "b128" in r: r = "s_nop 0"
                if "now" in X and "tr_b16" in r: r = "s_nop 0"
                a(r)
            if extra:
                for e in extra[n]: a(e)
            n += 1
    if "nocs" not in X: a(f"v_mfma_f32_16x16x32_bf16 v[16:19], v[20:23], {vr(b+8,4)}, v[16:19]")

def stats_math(a, vsum, vsq, vmp, vsd, t0):
    a(f"v_mul_f32 v{vsum}, {f32(1.0/640)}, v{vsum}")
    a(f"v_mul_f32 v{vsq}, {f32(1.0/640)}, v{vsq}")
    a(f"v_fma_f32 v{vsq}, -v{vsum}, v{vsum}, v{vsq}")
    a(f"v_max_f32 v{vsq}, 0, v{vsq}")
    a(f"v_cvt_pk_bf16_f32 v{vmp}, v{vsum}, v{vsum}")
    a(f"v_cvt_pk_bf16_f32 v{t0}, v{vsq}, v{vsq}")
    a(f"v_and_b32 v{t0}, 0xffff0000, v{t0}")
    a(f"v_add_f32 v{t0}, {f32(1e-5)}, v{t0}")
    a(f"v_cvt_pk_bf16_f32 v{t0}, v{t0}, v{t0}")
    a(f"v_and_b32 v{t0}, 0xffff0000, v{t0}")
    a(f"v_sqrt_f32 v{t0}, v{t0}")
    a("s_nop 0")
    a(f"v_cvt_pk_bf16_f32 v{t0}, v{t0}, v{t0}")
    a(f"v_and_b32 v{vsd}, 0xffff0000, v{t0}")

def gemm_body(a, vmode):
    L = "k1v" if vmode else "k1q"
    stamp(a, 3)
    a("s_barrier")
    stamp(a, 4)
    for r in read_list(0) + read_list(1): a(r)
    a.label(f"{L}_loop")
    a("s_and_b32 s32, s27, 3")
    a("s_cmp_eq_u32 s32, 3")
    a("s_cselect_b32 s33, s35, s36")
    a("s_waitcnt lgkmcnt(6)")
    mm(a, 0, vmode, extra=[[], [], ["v_add_u32 v5, s33, v5"], ["v_add_u32 v6, s33, v6"]])
    a("s_waitcnt lgkmcnt(6)")
    mm(a, 1, vmode, extra=[[], [], ["v_add_u32 v7, s33, v7", "v_add_u32 v13, s33, v13"], ["v_add_u32 v14, s33, v14", "v_add_u32 v8, s33, v8"]])
    a("s_add_u32 s27, s27, 1")
    a("s_cmp_eq_u32 s27, 10")
    a("s_waitcnt lgkmcnt(6)")
    a(f"s_cbranch_scc1 {L}_nb")
    a("s_barrier")
    a.label(f"{L}_nb")
    mm(a, 2, vmode)
    a("s_waitcnt lgkmcnt(6)")
    mm(a, 3, vmode)
    a(f"s_cbranch_scc0 {L}_loop")
    stamp(a, 5)
    a("s_waitcnt vmcnt(0)")
    a("v_and_b32 v24, 31, v1")
    a("v_lshlrev_b32 v24, 2, v24")
    a("s_lshr_b32 s31, s24, 1")
    a("s_lshl_b32 s31, s31, 8")
    a(f"s_add_u32 s31, s31, {EX}")
    a("v_add_u32 v9, s31, v24")
    a("s_lshl_b32 s33, s38, 8")
    a(f"s_add_u32 s33, s33, {EX+1024}")
    a("v_lshl_add_u32 v10, v1, 2, s33")
    if vmode:
        a("v_lshrrev_b32 v11, 5, v1")
        a("v_lshl_add_u32 v11, v11, 4, s31")
    a("v_cvt_pk_bf16_f32 v26, v16, v16")
    a("v_mov_b32 v23, 0")
    a("v_and_b32 v26, 0xffff0000, v26")
    a("v_mov_b32 v25, 0")
    a("v_sub_f32 v16, v16, v26")
    a("v_mov_b32 v27, 0")
    a("v_cvt_pk_bf16_f32 v26, -v26, -v16")
    a("v_mov_b32 v29, 0")
    a("ds_write_b32 v10, v26")
    a("v_xor_b32 v10, 256, v10")
    a("s_lshl_b32 s42, s25, 2")
    a("s_and_b32 s43, s24, 2")
    a("s_waitcnt lgkmcnt(0)")
    a("s_barrier")
    a("ds_read_b32 v22, v9")
    a("ds_read_b32 v24, v9 offset:128")
    a("ds_read_b32 v28, v10")
    if not vmode:
        a("ds_read_b32 v30, v9 offset:512")
        a("ds_read_b32 v20, v9 offset:640")
        a("s_waitcnt lgkmcnt(2)")
    else:
        for g in range(8):
            a(f"ds_read_b128 {vr(32+4*g,4)}, v11 offset:{512+32*g}")
        a("s_waitcnt lgkmcnt(8)")
    def corr(i, j):
        M = vr(22 + 2 * i, 2); CS = vr(26 + 2 * j, 2); C = vr(acc(i, j), 16)
        if vmode: a(f"v_mfma_f32_32x32x8_bf16 {C}, {M}, {CS}, {C}")
        else:     a(f"v_mfma_f32_32x32x8_bf16 {C}, {CS}, {M}, {C}")
    corr(0, 0); corr(1, 0); corr(0, 1); corr(1, 1)
    if not vmode:
        a("v_lshrrev_b32 v18, 5, v1")
        a("v_lshlrev_b32 v18, 8, v18")
        a("v_and_b32 v19, 31, v1")
        a("v_lshl_add_u32 v18, v19, 3, v18")
    else:
        a("v_lshrrev_b32 v18, 5, v1")
        a("v_mul_u32_u24 v18, 10240, v18")
        a("v_and_b32 v19, 31, v1")
        a("v_lshl_add_u32 v18, v19, 4, v18")
    a("s_add_u32 s42, s42, s43")
    a(f"s_mul_i32 s42, s42, {TILE_B}")
    a(f"s_add_u32 s43, s42, {TILE_B}")
    a("s_lshl_b32 s44, s26, 2")
    a("s_add_u32 s44, s44, s38")
    a("s_xor_b32 s45, s44, 1")
    a("s_waitcnt lgkmcnt(0)")
    if not vmode:
        a("s_lshl_b32 s44, s44, 11")
        a("s_lshl_b32 s45, s45, 11")
    else:
        a("s_lshl_b32 s44, s44, 9")
        a("s_lshl_b32 s45, s45, 9")
        a(f"s_add_u32 s44, s44, {81920 - 40*512}")
        a(f"s_add_u32 s45, s45, {81920 - 40*512}")
    stamp(a, 6)
    for j in range(2):
        for i in range(2):
            c = acc(i, j)
            a(f"s_add_u32 s46, s{42+i}, s{44+j}")
            if vmode: a("s_add_u32 s47, s46, 20480")
            for p in range(8):
                if vmode:
                    a(f"v_pk_mul_f32 {vr(c+2*p,2)}, {vr(c+2*p,2)}, {vr(32+16*i+2*p,2)}")
                else:
                    rs = 30 if i == 0 else 20
                    a(f"v_pk_mul_f32 {vr(c+2*p,2)}, {vr(c+2*p,2)}, {vr(rs,2)} op_sel_hi:[1,0]")
            for p in range(8):
                a(f"v_cvt_pk_bf16_f32 v{c+p}, v{c+2*p}, v{c+2*p+1}")
            if vmode:
                a(f"buffer_store_dwordx4 {vr(c,4)}, v18, s[20:23], s46 offen {ST_FLAG}")
                a(f"buffer_store_dwordx4 {vr(c+4,4)}, v18, s[20:23], s47 offen {ST_FLAG}")
            else:
                for g in range(4):
                    a(f"buffer_store_dwordx2 {vr(c+2*g,2)}, v18, s[20:23], s46 offen offset:{g*512} {ST_FLAG}")
    stamp(a, 7)
    if STAMP: a("s_waitcnt vmcnt(0)")
    stamp_end(a, 0, 2)
    a("s_endpgm")

def loader(a):
    a.label("k1_loader")
    a("s_sub_u32 s39, s24, 4")
    a("v_lshrrev_b32 v5, 3, v1")
    a("v_mul_u32_u24 v5, 1280, v5")
    a("v_lshrrev_b32 v6, 4, v1")
    a("v_and_b32 v7, 7, v1")
    a("v_xor_b32 v7, v7, v6")
    a("v_lshl_add_u32 v2, v7, 4, v5")
    a("v_xor_b32 v3, 64, v2")
    a("v_mul_u32_u24 v5, 3840, v6")
    a("v_lshlrev_b32 v7, 2, v6")
    a("v_and_b32 v8, 15, v1")
    a("v_xor_b32 v7, v7, v8")
    a("v_lshl_add_u32 v4, v7, 4, v5")
    a("s_lshl_b32 s34, s25, 2")
    a("s_add_u32 s34, s34, s39")
    a("s_mul_i32 s34, s34, 40960")
    a("s_mul_i32 s35, s39, 61440")
    a("s_lshl_b32 s31, s26, 8")
    a("s_add_u32 s35, s35, s31")
    a("s_and_b32 s32, s25, 3")
    a("s_mul_i32 s32, s32, 3")
    a("s_add_u32 s32, s32, s26")
    a("s_sub_u32 s31, s32, 10")
    a("s_cselect_b32 s32, s32, s31")
    a("s_sub_u32 s31, s32, 10")
    a("s_cselect_b32 s32, s32, s31")
    if "norot" in X: a("s_mov_b32 s32, 0")
    a("s_lshl_b32 s28, s32, 7")
    a("s_add_u32 s28, s28, s34")
    a("s_mul_i32 s29, s32, 245760")
    a("s_add_u32 s29, s29, s35")
    a("s_lshl_b32 s30, s39, 12")
    a("s_mov_b32 s27, 0")
    a("s_waitcnt lgkmcnt(0)")
    srd(a, 12, 4, X_BYTES)
    srd(a, 16, 6, WQKV_BYTES)
    stamp(a, 1)
    a.label("k1l_loop")
    dma_stage(a)
    a("s_add_u32 s27, s27, 1")
    a("s_cmp_eq_u32 s27, 1")
    a("s_cbranch_scc1 k1l_loop")
    a("s_cmp_eq_u32 s27, 10")
    a("s_cbranch_scc1 k1l_tail")
    a("s_waitcnt vmcnt(8)")
    a("s_barrier")
    a("s_branch k1l_loop")
    a.label("k1l_tail")
    a("s_cmp_ge_u32 s39, 2")
    a("s_cbranch_scc0 k1l_st")
    a("s_waitcnt vmcnt(8)")
    a("s_barrier")
    a("s_waitcnt vmcnt(0)")
    a("s_barrier")
    a("s_endpgm")
    a.label("k1l_st")
    a("s_lshl_b32 s31, s25, 2")
    a("v_mov_b32 v5, s31")
    if "nostat" not in X: a("global_load_dword v8, v5, s[8:9] sc1")
    else: a("global_load_dword v8, v5, s[4:5]")
    a("s_waitcnt vmcnt(9)")
    a("s_barrier")
    stamp(a, 2)
    srd(a, 20, 10, WS_USED)
    a("s_lshl_b32 s33, s39, 6")
    a("v_add_u32 v6, s33, v1")
    a("v_lshlrev_b32 v7, 3, v6")
    a("v_lshlrev_b32 v6, 2, v6")
    a(f"v_add_u32 v6, {EX}, v6")
    a("s_lshl_b32 s33, s25, 10")
    a(f"s_add_u32 s33, s33, {ST_OFF}")
    a("s_cmp_lt_u32 s26, 5")
    a(f"s_cselect_b32 s37, {f32(QSCALE)}, 1.0")
    a("s_mov_b32 s27, 0")
    a("s_waitcnt vmcnt(1)")
    a("s_barrier")
    a.label("k1l_poll")
    a("s_waitcnt vmcnt(0)")
    a("v_readfirstlane_b32 s31, v8")
    a("s_add_u32 s27, s27, 1")
    a("s_cmp_lg_u32 s31, 0")
    a("s_cbranch_scc1 k1l_go")
    a("s_cmp_ge_u32 s27, 0x20000")
    a("s_cbranch_scc1 k1l_go")
    a("s_sleep 2")
    a("global_load_dword v8, v5, s[8:9] sc1")
    a("s_branch k1l_poll")
    a.label("k1l_go")
    stamp(a, 4)
    a("buffer_load_dwordx2 v[10:11], v7, s[20:23], s33 offen sc1")
    a("s_waitcnt vmcnt(0)")
    a("v_rcp_f32 v11, v11")
    a("v_lshrrev_b32 v9, 16, v10")
    a("v_or_b32 v10, v10, v9")
    a("v_mul_f32 v11, s37, v11")
    a("ds_write_b32 v6, v10")
    a("ds_write_b32 v6, v11 offset:512")
    a("s_waitcnt lgkmcnt(0)")
    stamp(a, 5)
    a("s_barrier")
    stamp(a, 3)
    stamp_end(a, 0, 2)
    a("s_endpgm")

def router(a):
    a.label("k1_router")
    a("s_load_dwordx2 s[6:7], s[0:1], 32")
    a("v_and_b32 v3, 15, v1")
    a("v_lshlrev_b32 v4, 4, v3")
    a("v_lshrrev_b32 v5, 4, v1")
    a("v_mul_u32_u24 v5, 1280, v5")
    a("v_add_u32 v5, v5, v4")
    a("s_lshl_b32 s28, s25, 3")
    a("s_add_u32 s28, s28, s24")
    a("s_mul_i32 s28, s28, 20480")
    a("s_waitcnt lgkmcnt(0)")
    srd(a, 12, 4, X_BYTES)
    srd(a, 16, 6, WR_BYTES)
    def xl(g):
        for i in range(5):
            a(f"buffer_load_dwordx4 {vr(44+20*g+4*i,4)}, v5, s[12:15], s28 offen offset:{i*256}")
        a("s_addk_i32 s28, 5120")
    xl(0)
    xl(1)
    srd(a, 20, 10, WS_USED)
    a("s_mov_b32 s34, 0x3f803f80")
    a("s_mov_b32 s40, 0x00010001")
    a("s_mov_b32 s41, 0x00010001")
    for r in (9, 10, 11, 12): a(f"v_mov_b32 v{r}, 0")
    stamp(a, 3)
    for g in range(4):
        for r in (6, 7, 8, 13): a(f"v_mov_b32 v{r}, 0")
        a("s_waitcnt vmcnt(5)")
        if g < 2: xl(g + 2)
        if g == 2:
            for i in range(5):
                a(f"buffer_load_dwordx4 {vr(24+4*i,4)}, v4, s[16:19], 0 offen offset:{i*256}")
        if g == 0: stamp(a, 4)
        for r in range(0, 20, 2):
            x = 44 + 20 * g + r
            a(f"v_dot2c_f32_bf16 v6, s34, v{x}")
            a(f"v_dot2c_f32_bf16 v7, v{x}, v{x}")
            a(f"v_dot2c_f32_bf16 v8, s34, v{x+1}")
            a(f"v_dot2c_f32_bf16 v13, v{x+1}, v{x+1}")
        a("s_nop 1")
        a("v_add_f32 v6, v6, v8")
        a("s_nop 0")
        a("v_add_f32 v7, v7, v13")
        for sh in (8, 4, 2, 1):
            a("s_nop 0")
            for r in (6, 7):
                a(f"v_add_f32_dpp v{r}, v{r}, v{r} row_ror:{sh} row_mask:0xf bank_mask:0xf")
        a("v_cndmask_b32 v10, v10, v6, s[40:41]")
        a("v_cndmask_b32 v11, v11, v7, s[40:41]")
        if g < 3: a("s_lshl_b64 s[40:41], s[40:41], 1")
    stamp(a, 5)
    stats_math(a, 10, 11, 14, 15, 16)
    a("v_and_b32 v14, 0xffff0000, v14")
    a("v_lshrrev_b32 v17, 4, v1")
    a("v_lshl_add_u32 v17, v3, 2, v17")
    a("s_lshl_b32 s31, s24, 4")
    a("v_add_u32 v17, s31, v17")
    a("s_lshl_b32 s31, s25, 7")
    a("v_add_u32 v18, s31, v17")
    a("v_lshlrev_b32 v21, 3, v18")
    a("s_mov_b32 s42, 0x000f000f")
    a("s_mov_b32 s43, 0x000f000f")
    a("s_mov_b64 exec, s[42:43]")
    a(f"s_mov_b32 s31, {ST_OFF}")
    a("buffer_store_dwordx2 v[14:15], v21, s[20:23], s31 offen sc1")
    a("s_mov_b64 exec, -1")
    a("s_waitcnt vmcnt(0)")
    a("s_barrier")
    a("s_cmp_lg_u32 s24, 0")
    a("s_cbranch_scc1 k1r_nf")
    a("s_lshl_b32 s31, s25, 2")
    a("v_mov_b32 v4, s31")
    a("v_mov_b32 v5, 1")
    a("s_mov_b64 exec, 1")
    a("global_store_dword v4, v5, s[8:9] sc1")
    a("s_mov_b64 exec, -1")
    a.label("k1r_nf")
    a("s_cmp_ge_u32 s24, 5")
    a("s_cbranch_scc1 k1r_nz")
    a("v_lshlrev_b32 v4, 4, v0")
    for r in range(4): a(f"v_mov_b32 v{124+r}, 0")
    a("s_mul_i32 s31, s25, 5120")
    a(f"s_add_u32 s31, s31, {PART_OFF}")
    a("buffer_store_dwordx4 v[124:127], v4, s[20:23], s31 offen")
    a.label("k1r_nz")
    a("s_cmp_lg_u32 s24, 5")
    a("s_cbranch_scc1 k1r_nc")
    a("v_lshlrev_b32 v4, 4, v1")
    for r in range(4): a(f"v_mov_b32 v{124+r}, 0")
    a("s_lshl_b32 s31, s25, 10")
    a(f"s_add_u32 s31, s31, {CNT_OFF}")
    a("buffer_store_dwordx4 v[124:127], v4, s[20:23], s31 offen")
    a.label("k1r_nc")
    a("s_load_dwordx2 s[48:49], s[0:1], 16")
    a("v_mul_u32_u24 v22, 6554, v0")
    a("v_lshrrev_b32 v22, 16, v22")
    a("v_mul_u32_u24 v23, 10, v22")
    a("v_sub_u32 v23, v0, v23")
    a("v_lshlrev_b32 v23, 4, v23")
    a("v_lshrrev_b32 v4, 3, v22")
    a("v_mul_u32_u24 v4, 160, v4")
    a("v_and_b32 v22, 7, v22")
    a("v_mul_u32_u24 v22, 0x19000, v22")
    a("v_add3_u32 v23, v23, v4, v22")
    a("v_lshlrev_b32 v22, 4, v0")
    a(f"s_mov_b32 s50, {WO_BYTES}")
    a("s_mov_b32 s51, 0x20000")
    a("s_mul_i32 s31, s25, 51200")
    a("s_waitcnt lgkmcnt(0)")
    a("s_cmp_ge_u32 s24, 5")
    a("s_cbranch_scc1 k1r_nw")
    for i in range(10):
        a(f"buffer_load_dwordx4 {vr(128+4*i,4)}, v22, s[48:51], s31 offen")
        if i < 9: a("s_addk_i32 s31, 5120")
    a.label("k1r_nw")
    if "notlb" not in X:
        a("s_lshl_b32 s31, s24, 2")
        a("s_lshr_b32 s31, 0x765a8aaa, s31")
        a("s_and_b32 s31, s31, 15")
        a("s_lshl_b32 s31, s31, 3")
        a("s_load_dwordx2 s[44:45], s[0:1], s31")
        a(f"s_mov_b32 s46, {WG_BYTES}")
        a("s_cmp_eq_u32 s24, 3")
        a(f"s_cselect_b32 s46, {X_BYTES}, s46")
        a("s_cmp_lt_u32 s24, 3")
        a(f"s_cselect_b32 s46, {WS_USED}, s46")
        a("s_cselect_b32 s31, s24, 0")
        a("s_lshl_b32 s31, s31, 22")
        a("s_mov_b32 s47, 0x20000")
        a("v_lshlrev_b32 v4, 16, v1")
        a("s_waitcnt lgkmcnt(0)")
        a("s_cmp_lg_u32 s24, 4")
        a("s_cbranch_scc1 k1r_tgo")
        a("s_getpc_b64 s[44:45]")
        a.label("k1r_tpc")
        a("s_add_u32 s44, s44, attn_kernel-k1r_tpc")
        a("s_addc_u32 s45, s45, 0")
        a("s_mov_b32 s46, code_end-attn_kernel")
        a("v_lshlrev_b32 v4, 7, v1")
        a.label("k1r_tgo")
        a("buffer_load_dword v168, v4, s[44:47], s31 offen")
        a("s_cmp_lg_u32 s24, 4")
        a("s_cbranch_scc1 k1r_tdone")
        a("s_movk_i32 s31, 0x2000")
        a("buffer_load_dword v168, v4, s[44:47], s31 offen")
        a.label("k1r_tdone")
    stamp(a, 6)
    for r in (6, 7, 8, 13): a(f"v_mov_b32 v{r}, 0")
    for r in range(20):
        for g, ac in enumerate((6, 7, 8, 13)):
            a(f"v_dot2c_f32_bf16 v{ac}, v{24+r}, v{44+20*g+r}")
        a(f"v_dot2c_f32_bf16 v9, s34, v{24+r}")
    a("s_mov_b32 s40, 0x00010001")
    a("s_mov_b32 s41, 0x00010001")
    a("s_nop 0")
    for sh in (8, 4, 2, 1):
        for r in (6, 7, 8, 13, 9):
            a(f"v_add_f32_dpp v{r}, v{r}, v{r} row_ror:{sh} row_mask:0xf bank_mask:0xf")
    for ac in (6, 7, 8, 13):
        a(f"v_cndmask_b32 v12, v12, v{ac}, s[40:41]")
        a("s_lshl_b64 s[40:41], s[40:41], 1")
    a("s_mov_b64 exec, s[42:43]")
    a("v_rcp_f32 v16, v15")
    a("v_fma_f32 v12, -v14, v9, v12")
    a("v_mul_f32 v12, v12, v16")
    a("v_cvt_pk_bf16_f32 v12, v12, v12")
    a("v_ashrrev_i32 v13, 31, v12")
    a("v_or_b32 v13, 0x80000000, v13")
    a("v_xor_b32 v12, v12, v13")
    a("v_and_b32 v12, 0xffff0000, v12")
    a("v_sub_u32 v19, 2047, v18")
    a("v_lshl_or_b32 v12, v19, 3, v12")
    a("v_lshlrev_b32 v19, 2, v17")
    a("v_lshlrev_b32 v20, 3, v17")
    a("ds_write_b32 v19, v12")
    a("ds_write_b64 v20, v[14:15] offset:512")
    a("s_mov_b64 exec, -1")
    a("v_lshlrev_b32 v2, 3, v1")
    a("s_waitcnt lgkmcnt(0)")
    a("s_barrier")
    a("ds_read_b64 v[6:7], v2")
    a("v_mov_b32 v9, 0")
    a("s_mov_b32 s27, 0")
    a("s_waitcnt lgkmcnt(0)")
    a.label("k1r_top")
    top8_rounds(a, 6, 7, 8, 31)
    a("s_or_b32 s33, s31, s27")
    a("s_mov_b32 m0, s27")
    a("v_cmp_ne_u32 s[40:41], s31, v6")
    a("v_cmp_ne_u32 s[42:43], s31, v7")
    a("v_writelane_b32 v9, s33, m0")
    a("s_add_u32 s27, s27, 1")
    a("v_cndmask_b32 v6, 0, v6, s[40:41]")
    a("v_cndmask_b32 v7, 0, v7, s[42:43]")
    a("s_cmp_le_u32 s27, s24")
    a("s_cbranch_scc1 k1r_top")
    a("s_lshl_b32 s35, s25, 3")
    a("s_add_u32 s35, s35, s24")
    a("s_bfe_u32 s31, s33, 0xb0003")
    a("s_sub_u32 s31, 2047, s31")
    a("s_and_b32 s36, s31, 127")
    a("s_lshl_b32 s36, s36, 3")
    a("v_mov_b32 v4, s36")
    a("ds_read_b64 v[14:15], v4 offset:512")
    a("s_mul_i32 s31, s31, 1280")
    a("v_lshlrev_b32 v6, 4, v1")
    a("v_lshlrev_b32 v7, 2, v1")
    a("buffer_load_dwordx4 v[32:35], v6, s[12:15], s31 offen")
    a("buffer_load_dword v36, v7, s[12:15], s31 offen offset:1024")
    a("s_lshl_b32 s36, s35, 2")
    a(f"s_add_u32 s36, s36, {CAND_OFF}")
    a("v_mov_b32 v4, 0")
    a("v_mov_b32 v5, s33")
    a("s_mov_b64 exec, 1")
    a("buffer_store_dword v5, v4, s[20:23], s36 offen")
    a("s_mov_b64 exec, -1")
    a("s_mul_i32 s35, s35, 1280")
    a(f"s_add_u32 s35, s35, {XS_OFF}")
    a("s_waitcnt lgkmcnt(0)")
    a("v_rcp_f32 v16, v15")
    a("v_sub_f32 v14, 0, v14")
    a("s_waitcnt vmcnt(1)")
    a("s_cmp_ge_u32 s24, 5")
    a("s_cbranch_scc1 k1r_nw2")
    a("s_mul_i32 s31, s25, 5120")
    a(f"s_add_u32 s31, s31, {WOP_OFF}")
    a("s_add_u32 s36, s31, 2560")
    a("s_lshr_b32 s37, s25, 2")
    a("s_mul_i32 s37, s37, 5120")
    a("s_and_b32 s38, s25, 3")
    a("s_mul_i32 s38, s38, 640")
    a("s_add_u32 s37, s37, s38")
    a(f"s_add_u32 s37, s37, {WOP_OFF + 16*5120}")
    for i in range(10):
        e, q = divmod(i, 5)
        if q < 4: a(f"buffer_store_dwordx4 {vr(128+4*i,4)}, v23, s[20:23], s{36 if q & 1 else 31} offen offset:{(2*e+(q>>1))*640}")
        else:     a(f"buffer_store_dwordx4 {vr(128+4*i,4)}, v23, s[20:23], s37 offen offset:{e*2560}")
    a.label("k1r_nw2")
    for r in range(5):
        norm_pair(a, 32 + r, 14, 16, 18)
    a("buffer_store_dwordx4 v[32:35], v6, s[20:23], s35 offen")
    a("buffer_store_dword v36, v7, s[20:23], s35 offen offset:1024")
    stamp(a, 7)
    if STAMP: a("s_waitcnt vmcnt(0)")
    stamp_end(a, 0, 2)
    a("s_endpgm")

def gen():
    a = Asm()
    a.raw(f".globl {NAME}\n.p2align 8\n.type {NAME},@function")
    a.label(NAME)
    a("s_cmp_ge_u32 s2, 256")
    a("s_cbranch_scc1 k1_exit")
    stamp(a, 0)
    a("s_load_dwordx4 s[4:7], s[0:1], 0")
    a("s_load_dwordx4 s[8:11], s[0:1], 72")
    a("v_lshrrev_b32 v2, 6, v0")
    a("v_and_b32 v1, 63, v0")
    a("s_and_b32 s28, s2, 7")
    a("v_readfirstlane_b32 s24, v2")
    a("s_lshr_b32 s29, s2, 3")
    a("s_lshr_b32 s30, s28, 1")
    a("s_and_b32 s28, s28, 1")
    a("s_lshl_b32 s30, s30, 2")
    a("s_cmp_lt_u32 s29, 2")
    a("s_cbranch_scc0 k1_gemm")
    a("s_lshl_b32 s28, s28, 1")
    a("s_add_u32 s25, s30, s28")
    a("s_add_u32 s25, s25, s29")
    a("s_waitcnt lgkmcnt(0)")
    a("s_branch k1_router")
    a.label("k1_exit")
    a("s_endpgm")
    a.label("k1_gemm")
    a("s_mul_i32 s28, s28, 30")
    a("s_add_u32 s28, s28, s29")
    a("s_sub_u32 s28, s28, 2")
    a("s_lshr_b32 s26, s28, 2")
    a("s_and_b32 s28, s28, 3")
    a("s_add_u32 s25, s30, s28")
    a("s_cmp_ge_u32 s24, 4")
    a("s_cbranch_scc0 k1_comp")
    loader(a)
    a.label("k1_comp")
    a("s_mov_b32 s27, 0")
    a(f"s_mov_b32 s35, {(-(NSLOT-1)*32768) & 0xffffffff}")
    a("s_mov_b32 s36, 0x8000")
    a("s_and_b32 s38, s24, 1")
    a("s_lshl_b32 s38, s38, 1")
    a("s_lshr_b32 s31, s24, 1")
    a("s_add_u32 s38, s38, s31")
    a("s_lshl_b32 s30, s31, 13")
    a("v_and_b32 v18, 31, v1")
    a("v_lshlrev_b32 v18, 7, v18")
    a("v_lshrrev_b32 v19, 5, v1")
    a("v_bfe_u32 v20, v1, 1, 3")
    a("v_xor_b32 v20, v20, v19")
    a("v_lshl_add_u32 v18, v20, 4, v18")
    a("v_add_u32 v5, s30, v18")
    for ks in range(1, 4):
        a(f"v_xor_b32 v{5+ks}, {ks<<5}, v5")
    a("v_bfe_u32 v20, v1, 2, 2")
    a("v_lshl_add_u32 v21, v19, 3, v20")
    a("v_lshlrev_b32 v21, 8, v21")
    a("v_xor_b32 v20, s38, v20")
    a("v_lshl_add_u32 v21, v20, 6, v21")
    a("v_bfe_u32 v20, v1, 4, 1")
    a("v_lshl_add_u32 v21, v20, 5, v21")
    a("v_and_b32 v20, 3, v1")
    a("v_lshl_add_u32 v21, v20, 3, v21")
    a("v_add_u32 v13, 0x4000, v21")
    a("v_xor_b32 v14, 64, v13")
    a("s_mov_b32 s40, 0x00100001")
    a("s_mov_b32 s41, 0x00100001")
    a("v_mov_b32 v24, 0x3f803f80")
    for r in range(4):
        a(f"v_mov_b32 v{16+r}, 0")
        a(f"v_cndmask_b32 v{20+r}, 0, v24, s[40:41]")
    for r in range(96, 160):
        a(f"v_mov_b32 v{r}, 0")
    a("s_waitcnt lgkmcnt(0)")
    if "pf" in X:
        srd(a, 12, 4, X_BYTES)
        srd(a, 16, 6, WQKV_BYTES)
        a("v_lshrrev_b32 v25, 5, v1")
        a("v_lshlrev_b32 v25, 6, v25")
        a("v_bfe_u32 v26, v1, 1, 4")
        a("v_add_u32 v25, v25, v26")
        a("v_mul_u32_u24 v25, 3840, v25")
        a("v_and_b32 v26, 1, v1")
        a("v_lshl_add_u32 v25, v26, 7, v25")
        a("s_lshl_b32 s31, s24, 3")
        a("s_and_b32 s33, s25, 3")
        a("s_add_u32 s31, s31, s33")
        a("s_add_u32 s31, s31, 8")
        a("s_mul_i32 s31, s31, 61440")
        a("s_lshl_b32 s33, s26, 8")
        a("s_add_u32 s31, s31, s33")
        a("buffer_load_dword v27, v25, s[16:19], s31 offen")
        a("v_and_b32 v25, 15, v1")
        a("v_mul_u32_u24 v25, 1280, v25")
        a("v_bfe_u32 v26, v1, 4, 1")
        a("v_lshl_add_u32 v25, v26, 7, v25")
        a("s_lshl_b32 s31, s25, 3")
        a("s_and_b32 s33, s26, 7")
        a("s_add_u32 s31, s31, s33")
        a("s_mul_i32 s31, s31, 20480")
        a("s_lshl_b32 s33, s24, 8")
        a("s_add_u32 s31, s31, s33")
        a("buffer_load_dword v31, v25, s[12:15], s31 offen offset:256")
    srd(a, 20, 10, WS_USED)
    a("s_cmp_ge_u32 s26, 10")
    a("s_cbranch_scc1 k1_vbody")
    gemm_body(a, False)
    a.label("k1_vbody")
    gemm_body(a, True)
    router(a)
    return a
```

```python
from common import *

NAME = "attn_kernel"
LDS = 81920
X = os.environ.get("K2X", "")
GRID = 256 + NMOE
if "nomoe" in X: GRID = 256
CH = 20480
GPRE = int(os.environ.get("GPRE", "4"))
SPECW = "specw" in X
OPRE = int(os.environ.get("OPRE", "4"))
SLEEP = int(os.environ.get("SLEEP", "1"))
APACE = int(os.environ.get("APACE", "8"))
PACE = 0 if "pace0" in X else 2 if "pace2" in X else 1
TOP = 2 if "top2" in X else 3
QLO = (8, 14); QHI = (12, 18)
KLO = (20, 26); KHI = (24, 30)
VV = (32, 40)
P = 48
SS = (56, 72)
OO = (88, 104)
T0 = 120

def dma_chunk(a, lab):
    a("s_mov_b32 m0, s30")
    a("s_nop 0")
    a("buffer_load_dwordx4 v2, s[20:23], s28 offen lds")
    a("s_addk_i32 m0, 10240")
    a("s_cmp_ge_u32 s24, 4")
    a("buffer_load_dwordx4 v3, s[20:23], s28 offen lds")
    a(f"s_cbranch_scc1 {lab}")
    a("s_add_u32 m0, s30, s39")
    a("s_nop 0")
    a("buffer_load_dwordx4 v4, s[20:23], s28 offen lds")
    a.label(lab)
    a("s_add_u32 s28, s28, s59")

def piece_split(a, p, run, d16, tb):
    a(f"v_mul_u32_u24 v{run}, 3277, v{p}")
    a(f"v_lshrrev_b32 v{run}, 16, v{run}")
    a(f"v_mul_u32_u24 v{d16}, 20, v{run}")
    a(f"v_sub_u32 v{d16}, v{p}, v{d16}")
    a(f"v_lshlrev_b32 v{d16}, 4, v{d16}")
    a(f"v_bfe_u32 v{tb}, v{run}, 2, 2")
    a(f"v_mad_u32_u24 v{d16}, v{tb}, s44, v{d16}")
    a(f"v_lshrrev_b32 v{tb}, 4, v{run}")
    a(f"v_mad_u32_u24 v{d16}, v{tb}, s52, v{d16}")
    a(f"v_and_b32 v{run}, 3, v{run}")

def vrow(a, r, t):
    a(f"v_lshrrev_b32 v{t}, 1, v{r}")
    a(f"v_xor_b32 v{t}, v{t}, v{r}")
    a(f"v_and_b32 v{t}, 4, v{t}")
    a(f"v_mul_u32_u24 v{t}, 3, v{t}")
    a(f"v_xor_b32 v{r}, v{r}, v{t}")

def kv_reads(i, koff, voff):
    kb = (i + 1) % 2; vb = i % 2
    L = ["s_mov_b64 exec, s[40:41]",
         f"ds_read_b128 {vr(VV[vb],4)}, v6 offset:{voff}",
         f"ds_read_b128 {vr(VV[vb]+4,4)}, v6 offset:{voff+640}"]
    if "khz" in X:
        L += ["s_mov_b64 exec, s[42:43]", f"ds_read_b64 {vr(KHI[kb],2)}, v5 offset:{koff+1024}", "s_mov_b64 exec, -1"]
    else:
        L += ["s_mov_b64 exec, -1", f"ds_read_b64 {vr(KHI[kb],2)}, v5 offset:{koff+1024}"]
    L += [f"ds_read_b64 {vr(KLO[kb],2)}, v5 offset:{koff}",
          f"ds_read_b64 {vr(KLO[kb]+2,2)}, v5 offset:{koff+256}"]
    return L

def unit(a, u):
    i = u // 2; b = u % 2
    cur = SS[b]; nxt = SS[1 - b]
    ob = OO[1 - b]
    vb = VV[(i - 1) % 2] if b == 0 else VV[i % 2]
    kb = i % 2 if b == 0 else (i + 1) % 2
    def grp(g, mf, pre=(), post=()):
        e = cur + 4 * g
        a(f"v_exp_f32 v{e}, v{e}")
        a(f"v_exp_f32 v{e+1}, v{e+1}")
        for s in pre: a(s)
        a(mf)
        for s in post:
            if callable(s): s()
            else: a(s)
        a(f"v_exp_f32 v{e+2}, v{e+2}")
        a(f"v_exp_f32 v{e+3}, v{e+3}")
        c = (cur + 4 * (g - 1)) if g > 0 else nxt + 12
        pd = P + 2 * ((g - 1) % 4)
        a(f"v_cvt_pk_bf16_f32 v{pd}, v{c}, v{c+1}")
        a(f"v_cvt_pk_bf16_f32 v{pd+1}, v{c+2}, v{c+3}")
    pre = [[], [], [], []]; post = [[], [], [], []]
    if b == 0:
        rd = kv_reads(i, ((i + 1) % 4) * 1280, i * 1280)
        if "nospread" in X:
            post[0] = rd
        else:
            n = len(rd) - 3
            post[0] = rd[:n]; post[1] = rd[n:n+2]; post[2] = rd[n+2:]
    else:
        pre[0] = ["s_waitcnt lgkmcnt(0)"]
    def dma_if(cond, lab):
        def f():
            a(cond)
            a(f"s_cbranch_scc1 {lab}_skip")
            dma_chunk(a, lab)
            a("s_add_u32 s30, s30, s34")
            a.label(f"{lab}_skip")
        return f
    if u == 5:
        post[0] = ["s_waitcnt vmcnt(2)", "s_barrier", f"s_setprio {TOP}"]
        if "itst" in X:
            post[0] = ["s_memtime s[92:93]", "s_waitcnt vmcnt(2)", "s_memtime s[94:95]", "s_barrier", "s_memtime s[96:97]", "s_lshl_b32 m0, s27, 2", "s_waitcnt lgkmcnt(0)",
                       "v_writelane_b32 v125, s92, m0", "s_add_u32 m0, m0, 1", "s_nop 0", "v_writelane_b32 v125, s94, m0", "s_add_u32 m0, m0, 1", "s_nop 0", "v_writelane_b32 v125, s96, m0", f"s_setprio {TOP}"]
        post[1] = [dma_if("s_cmp_ge_u32 s27, s55", "k2_dla")]
        post[2] = ["v_add_u32 v5, s33, v5"]
    if u == 7:
        def hook():
            a("s_cmp_ge_u32 s27, s58")
            a("s_cbranch_scc1 k2_hook")
            a.label("k2_nl")
        post[3] = [hook]
    LAD = {(0, 2): 2, (2, 2): 1, (4, 2): 0}
    if TOP == 2: LAD = {(1, 2): 1, (4, 2): 0}
    if "lad2" in X: LAD = {(7, 0): 2, (1, 0): 1, (3, 0): 0}
    if "lad3" in X: LAD = {(0, 2): 2, (3, 2): 1, (4, 3): 0}
    for (uu, g), pr in LAD.items():
        if uu == u: post[g] = post[g] + [f"s_setprio {pr}"]
    if u == 7:
        post[0] = post[0] + [dma_if("s_cmp_ge_u32 s27, s56", "k2_dlb")]
        post[1] = ["v_add_u32 v6, s33, v6", "s_mov_b32 s34, s33", "s_add_u32 s27, s27, 1"]
        post[2] = ["s_and_b32 s32, s27, 3", "s_cmp_eq_u32 s32, 3", "s_cselect_b32 s33, s35, s36"]
    if not post[2] and not post[3] and not pre[3]:
        post[3] = ["s_nop 0"]
    grp(0, f"v_mfma_f32_32x32x16_bf16 {vr(ob,16)}, {vr(vb,4)}, {vr(P,4)}, {vr(ob,16)}", pre[0], post[0])
    grp(1, f"v_mfma_f32_32x32x16_bf16 {vr(nxt,16)}, {vr(KLO[kb],4)}, {vr(QLO[1-b],4)}, 0", pre[1], post[1])
    grp(2, f"v_mfma_f32_32x32x8_bf16 {vr(nxt,16)}, {vr(KHI[kb],2)}, {vr(QHI[1-b],2)}, {vr(nxt,16)}", pre[2], post[2])
    grp(3, f"v_mfma_f32_32x32x16_bf16 {vr(ob,16)}, {vr(vb+4,4)}, {vr(P+4,4)}, {vr(ob,16)}", pre[3], post[3])

WBUF = (8, 28); ACC = 48; OFR = 68; GR = 108; XP = 120
def w_reads(st, j):
    b = WBUF[st]; off = (j % 4) * 10240
    L = []
    for T, (base, c) in enumerate(((4, 0), (4, 32), (5, 0), (6, 0), (6, 32))):
        L.append(f"ds_read_b64_tr_b16 {vr(b+4*T,2)}, v{base} offset:{off+c}")
        L.append(f"ds_read_b64_tr_b16 {vr(b+4*T+2,2)}, v{base} offset:{off+2560+c}")
    return L

def w_dma(a):
    for ii in range(4):
        a(f"buffer_load_dwordx4 v2, s[20:23], s28 offen offset:{ii*1024} lds")
    a("s_addk_i32 m0, 0x1000")
    a("s_addk_i32 s28, 0x1000")
    a("buffer_load_dwordx4 v2, s[20:23], s28 offen lds")

def spin(a, lab, vaddr, vdst, target, sleep):
    a("s_mov_b32 s27, 0")
    a.label(lab)
    a("s_waitcnt vmcnt(0)")
    a(f"v_readfirstlane_b32 s31, v{vdst}")
    a("s_add_u32 s27, s27, 1")
    a(f"s_cmp_ge_u32 s31, {target}")
    a(f"s_cbranch_scc1 {lab}_ok")
    a("s_cmp_ge_u32 s27, 0x20000")
    a(f"s_cbranch_scc1 {lab}_ok")
    if sleep: a(f"s_sleep {sleep}")
    a(f"global_load_dword v{vdst}, v{vaddr}, s[10:11] sc1")
    a(f"s_branch {lab}")
    a.label(f"{lab}_ok")

def sel_load(a):
    a("v_and_b32 v127, 7, v1")
    a("v_lshlrev_b32 v127, 2, v127")
    a("s_and_b32 s31, s2, 31")
    a("s_lshl_b32 s31, s31, 7")
    a(f"s_add_u32 s31, s31, {SEL_OFF}")
    a("buffer_load_dword v127, v127, s[20:23], s31 offen sc1")

def late(a):
    a.label("k2_hook")
    a("s_cmp_gt_u32 s27, 5")
    a("s_cbranch_scc1 k2_late")
    a("s_cmp_eq_u32 s27, 5")
    a("s_cbranch_scc1 k2_sw")
    a(f"buffer_load_dword v{T0+7}, v{T0+6}, s[12:15], s57 offen")
    a("s_mov_b32 s58, 5")
    a("s_branch k2_nl")
    a.label("k2_sw")
    a("v_lshlrev_b32 v2, 4, v0")
    a("v_add_u32 v3, 10240, v2")
    a("v_add_u32 v4, s39, v2")
    a("s_mul_i32 s28, s61, 102400")
    a(f"s_add_u32 s28, s28, {WOP_OFF}")
    a(f"s_movk_i32 s59, {CH}")
    a("s_branch k2_nl")
    a.label("k2_late")
    a("s_cmp_eq_u32 s27, 7")
    a("s_cbranch_scc1 k2_late7")
    a("s_and_b32 s38, s24, 3")
    a("s_lshl_b32 s49, s60, 2")
    a("s_add_u32 s49, s49, s38")
    a("v_and_b32 v0, 15, v1")
    a("v_lshrrev_b32 v125, 4, v1")
    a("v_mul_u32_u24 v126, 1280, v0")
    a("v_lshl_add_u32 v126, v125, 3, v126")
    a("s_mul_i32 s37, s49, 20480")
    a("s_mul_i32 s50, s61, 160")
    a("s_add_u32 s37, s37, s50")
    a("s_mul_i32 s48, s53, 96")
    a("s_add_u32 s38, s37, s48")
    srd(a, 12, 4, X_BYTES)
    a(f"buffer_load_dwordx2 {vr(XP,2)}, v126, s[12:15], s38 offen")
    a(f"buffer_load_dwordx2 {vr(XP+2,2)}, v126, s[12:15], s38 offen offset:32")
    a(f"buffer_load_dwordx2 {vr(XP+4,2)}, v126, s[12:15], s37 offen offset:64")
    sel_load(a)
    a("s_branch k2_nl")
    a.label("k2_late7")
    a("s_movk_i32 s58, 99")
    a("v_lshlrev_b32 v2, 3, v0")
    a("s_lshl_b32 s31, s49, 7")
    a(f"s_add_u32 s31, s31, {ST_OFF}")
    a("buffer_load_dwordx2 v[2:3], v2, s[20:23], s31 offen")
    a("s_branch k2_nl")

def project(a):
    UR = OFR; TM = OFR + 8
    a("v_lshrrev_b32 v7, 4, v1")
    a("v_mov_b32 v3, v126")
    a("s_mov_b32 s41, s47")
    a("s_and_b32 s46, s47, s47")
    a("s_cbranch_scc1 pj_hit0")
    a.label("pj_ret0")
    a("v_lshrrev_b32 v5, 2, v1")
    a("v_mul_u32_u24 v5, 160, v5")
    a("v_and_b32 v4, 3, v1")
    a("v_lshl_add_u32 v5, v4, 3, v5")
    a("s_mul_i32 s31, s53, 5120")
    a("v_add_u32 v5, s31, v5")
    a("v_add_u32 v4, s48, v5")
    a("s_sub_u32 s31, 96, s48")
    a("v_add_u32 v6, s31, v5")
    a("v_add_u32 v5, 64, v5")
    for r in w_reads(0, 0): a(r)
    srd(a, 12, 8, X_BYTES)
    a(f"v_lshlrev_b32 v{ACC}, 16, v0")
    a(f"v_and_b32 v{ACC+1}, 0xffff0000, v0")
    a(f"v_rcp_f32 v{ACC+1}, v{ACC+1}")
    a("v_and_b32 v0, 15, v1")
    a("s_waitcnt lgkmcnt(4)")
    for r in w_reads(1, 1): a(r)
    for p in range(6): a(f"v_mov_b32 v{UR+p}, 0")
    a(f"v_mov_b32 v{ACC+4}, {f32(-math.log2(math.e))}")
    a(f"v_mov_b32 v{ACC+5}, 0xffff0000")
    a("s_cmp_lg_u32 s46, 0")
    a("s_cbranch_scc1 pj_ret1")
    a.label("pj_gate")
    def gate(p, t):
        g = GR + 2 * p; x = XP + p; d = UR + p; M = ACC; R = ACC + 1; NL = ACC + 4; MK = ACC + 5
        return [f"v_lshlrev_b32 v{g}, 16, v{x}",
                f"v_and_b32 v{g+1}, v{MK}, v{x}",
                f"v_sub_f32 v{g}, v{g}, v{M}",
                f"v_sub_f32 v{g+1}, v{g+1}, v{M}",
                f"v_cvt_pk_bf16_f32 v{t}, v{g}, v{g+1}",
                f"v_lshlrev_b32 v{g}, 16, v{t}",
                f"v_and_b32 v{g+1}, v{MK}, v{t}",
                f"v_mul_f32 v{g}, v{g}, v{R}",
                f"v_mul_f32 v{g+1}, v{g+1}, v{R}",
                f"v_cvt_pk_bf16_f32 v{t}, v{g}, v{g+1}",
                f"v_lshlrev_b32 v{g}, 16, v{t}",
                f"v_and_b32 v{g+1}, v{MK}, v{t}",
                f"v_lshlrev_b32 v{t}, 16, v{d}",
                f"v_and_b32 v{t+1}, v{MK}, v{d}",
                f"v_add_f32 v{g}, v{g}, v{t}",
                f"v_add_f32 v{g+1}, v{g+1}, v{t+1}",
                f"v_mul_f32 v{t}, v{NL}, v{g}",
                f"v_mul_f32 v{t+1}, v{NL}, v{g+1}",
                f"v_exp_f32 v{t}, v{t}",
                f"v_exp_f32 v{t+1}, v{t+1}",
                f"v_add_f32 v{t}, 1.0, v{t}",
                f"v_add_f32 v{t+1}, 1.0, v{t+1}",
                f"v_rcp_f32 v{t}, v{t}",
                f"v_rcp_f32 v{t+1}, v{t+1}",
                f"v_mul_f32 v{g}, v{g}, v{t}",
                f"v_mul_f32 v{g+1}, v{g+1}, v{t+1}"]
    for p in range(0, GPRE, 2):
        for x, y in zip(gate(p, TM), gate(p + 1, TM + 2)): a(x); a(y)
    a("s_cmp_lg_u32 s46, 0")
    a("s_cbranch_scc1 pj_ret2")
    a.label("pj_ret1")
    a("s_lshl_b32 s31, s26, 8")
    a(f"s_add_u32 s31, s31, {CNT_OFF}")
    a(f"v_mov_b32 v{ACC+2}, s31")
    a(f"v_mov_b32 v{ACC+3}, 1")
    a("s_mul_i32 s30, s24, 5120")
    a("s_mul_i32 s28, s61, 102400")
    a("s_add_u32 s28, s28, s30")
    a(f"s_add_u32 s28, s28, {WOP_OFF + 40960}")
    a("s_add_u32 m0, s30, 40960")
    stamp(a, 7)
    a("s_waitcnt vmcnt(0) lgkmcnt(0)")
    a("s_barrier")
    a("s_cmp_lg_u32 s24, 7")
    a("s_cbranch_scc1 pj_nosig")
    a("s_mov_b64 exec, 1")
    a(f"global_atomic_add v{ACC+2}, v{ACC+3}, s[10:11]")
    a("s_mov_b64 exec, -1")
    a.label("pj_nosig")
    stamp(a, 8)
    w_dma(a)
    a("s_cmp_ge_u32 s24, 4")
    a("s_cbranch_scc1 pj_noc")
    a("s_mov_b32 m0, s30")
    a(f"s_add_u32 s28, s28, {40960 - 4096}")
    w_dma(a)
    a.label("pj_noc")
    if "nospec" not in X:
        a("s_cmp_ge_u32 s24, 5")
        a("s_cbranch_scc1 pj_nsp")
        a("s_mul_i32 s31, s60, 81920")
        a("s_lshl_b32 s33, s24, 14")
        a("s_add_u32 s31, s31, s33")
        a(f"s_add_u32 s31, s31, {O_OFF}")
        a("v_lshlrev_b32 v74, 7, v1")
        if SPECW: a("s_waitcnt vmcnt(0)")
        a("buffer_load_dword v75, v74, s[20:23], s31 offen sc1")
        a("s_addk_i32 s31, 0x2000")
        a("buffer_load_dword v75, v74, s[20:23], s31 offen sc1")
        a.label("pj_nsp")
    a("s_cmp_lg_u32 s46, 0")
    a("s_cbranch_scc1 pj_hit")
    a.label("pj_ret2")
    for p in range(GPRE, 6, 2):
        for x, y in zip(gate(p, TM), gate(p + 1, TM + 2)): a(x); a(y)
    a("v_lshlrev_b32 v2, 9, v7")
    a("v_lshl_add_u32 v2, v0, 4, v2")
    a("s_lshr_b32 s29, s49, 1")
    a("s_mul_i32 s29, s29, 40960")
    a("s_and_b32 s31, s49, 1")
    a("s_lshl_b32 s31, s31, 8")
    a("s_add_u32 s29, s29, s31")
    a(f"s_add_u32 s29, s29, {O_OFF}")
    a("s_lshl_b32 s28, s53, 11")
    a("s_add_u32 s28, s28, s29")
    a("s_cmp_lg_u32 s24, 7")
    a("s_cbranch_scc1 pj_wait")
    a(f"global_load_dword v127, v{ACC+2}, s[10:11] sc1")
    spin(a, "pj_grp", ACC + 2, 127, 32, SLEEP)
    a.label("pj_wait")
    a("s_waitcnt vmcnt(0)")
    a("s_barrier")
    stamp(a, 9)
    def oload(j):
        a(f"buffer_load_dwordx4 {vr(OFR+4*j,4)}, v2, s[20:23], s28 offen sc1")
        if j < 9: a("s_addk_i32 s28, 0x1000")
    for j in range(OPRE): oload(j)
    if "fine" in X: stamp(a, 1)
    a("s_mul_i32 s31, s24, 3072")
    a("s_add_u32 s31, s31, 20480")
    a("v_lshl_add_u32 v126, v1, 4, s31")
    a("s_xor_b32 s31, s24, 4")
    a("s_mul_i32 s31, s31, 3072")
    a("s_add_u32 s31, s31, 20480")
    a("v_lshl_add_u32 v127, v1, 4, s31")
    for j in range(10):
        nj = j + 2
        b = WBUF[j % 2]
        if j in (2, 6):
            for r in (4, 5, 6): a(f"v_add_u32 v{r}, {40960 if j == 2 else -40960 & 0xffffffff}, v{r}")
        if j == 8: a("s_barrier")
        rd = w_reads(j % 2, nj) if nj < 10 else []
        if j + OPRE < 10: oload(j + OPRE)
        a(f"s_waitcnt vmcnt({min(9, j + OPRE) - j})")
        if "fine" in X and j == 0: stamp(a, 2)
        if "fine" in X and j == 9: stamp(a, 3)
        for T in range(5):
            c = vr(ACC + 4 * T, 4)
            if j >= 1: a(f"s_waitcnt lgkmcnt({lg(j, T)})")
            a(f"v_mfma_f32_16x16x32_bf16 {c}, {vr(b+4*T,4)}, {vr(OFR+4*j,4)}, " + ("0" if j == 0 else c))
            for r in rd[2*T:2*T+2]: a(r)
    a("s_nop 4")
    a(f"ds_write_b128 v126, {vr(ACC+8,4)} offset:2048")
    a(f"ds_write_b128 v126, {vr(ACC+12,4)}")
    a("s_nop 0")
    a(f"ds_write_b128 v126, {vr(ACC+16,4)} offset:1024")
    for p in range(6):
        a(f"v_lshlrev_b32 v{8+2*p}, 16, v{XP+p}")
        a(f"v_and_b32 v{9+2*p}, 0xffff0000, v{XP+p}")
    a("s_waitcnt lgkmcnt(0)")
    a("s_barrier")
    for T in range(3):
        a(f"ds_read_b128 {vr(OFR+4*T,4)}, v127 offset:{T*1024}")
    for T in range(3):
        c = ACC + 4 * T
        a(f"s_waitcnt lgkmcnt({2-T})")
        for r in range(4): a(f"v_add_f32 v{c+r}, v{c+r}, v{OFR+4*T+r}")
        for r in range(4): a(f"v_fma_f32 v{c+r}, v{c+r}, v{GR+4*T+r}, v{8+4*T+r}")
        a(f"v_cvt_pk_bf16_f32 v{c}, v{c}, v{c+1}")
        a(f"v_cvt_pk_bf16_f32 v{c+1}, v{c+2}, v{c+3}")
        if T < 2:
            a(f"buffer_store_dwordx2 {vr(c,2)}, v3, s[12:15], s38 offen offset:{T*32}")
            if T == 1 and not (STAMP or DIAG):
                a("s_cmp_lg_u32 s53, 0")
                a("s_cbranch_scc1 k2_exit")
        else:
            a(f"buffer_store_dwordx2 {vr(c,2)}, v3, s[12:15], s37 offen offset:64")
    stamp(a, 10)
    if STAMP: a("s_waitcnt vmcnt(0)")
    stamp_end(a, 1, 2)
    a("s_endpgm")
    HB = [OFR + 28, OFR + 8, ACC + 8]
    a.label("pj_nokey")
    a("s_mov_b32 s27, 0")
    a.label("pj_nk")
    a("s_sleep 2")
    sel_load(a)
    a("s_add_u32 s27, s27, 1")
    a("s_cmp_ge_u32 s27, 0x20000")
    a("s_waitcnt vmcnt(0)")
    a("s_cbranch_scc1 pj_sel")
    a("v_cmp_eq_u32 vcc, 0, v127")
    a("s_cbranch_vccnz pj_nk")
    a("s_branch pj_sel")
    a.label("pj_hit0")
    a("s_waitcnt vmcnt(2)")
    a("v_readfirstlane_b32 s31, v31")
    a(f"s_cmp_ge_u32 s31, {2*NMOE}")
    a("s_cbranch_scc1 pj_moe_ok")
    spin(a, "pj_moe", 30, 31, 2 * NMOE, 4)
    a("s_ff1_i32_b32 s42, s41")
    a("s_bitset0_b32 s41, s42")
    a("v_readlane_b32 s43, v127, s42")
    a("v_lshlrev_b32 v126, 4, v7")
    a("s_mul_i32 s31, s42, 2560")
    a("s_lshl_b32 s44, s50, 1")
    a("s_add_u32 s31, s31, s44")
    a(f"s_add_u32 s31, s31, {PART_OFF}")
    a("s_lshl_b32 s44, s48, 1")
    a("s_add_u32 s44, s44, s31")
    for h in range(NREP):
        d = GR if h == 0 else HB[h - 1]
        a(f"buffer_load_dwordx4 {vr(d,4)}, v126, s[20:23], s44 offen sc1")
        a(f"buffer_load_dwordx4 {vr(d+4,4)}, v126, s[20:23], s44 offen offset:64 sc1")
        a(f"buffer_load_dwordx4 {vr(d+8,4)}, v126, s[20:23], s31 offen offset:128 sc1")
        if h < NREP - 1:
            a("s_addk_i32 s31, 20480")
            a("s_addk_i32 s44, 20480")
    a("s_bitcmp1_b32 s46, 8")
    a("s_bitset1_b32 s46, 8")
    a("s_cbranch_scc0 pj_ret0")
    a.label("pj_hit")
    a("s_and_b32 s31, s43, 0xffff0000")
    a("s_ashr_i32 s44, s31, 31")
    a("s_orn2_b32 s44, 0x80000000, s44")
    a("s_xor_b32 s31, s31, s44")
    a("s_and_b32 s31, s31, 0xffff0000")
    a(f"v_mul_f32 v126, s31, v{ACC+4}")
    a("v_exp_f32 v126, v126")
    a("s_bfe_u32 s31, s43, 0x40003")
    a("s_sub_u32 s31, 15, s31")
    a("v_add_f32 v126, 1.0, v126")
    a("v_rcp_f32 v126, v126")
    a("v_cmp_eq_u32 s[44:45], s31, v0")
    a("v_cvt_pk_bf16_f32 v126, v126, v126")
    a("v_and_b32 v126, 0xffff0000, v126")
    a("s_bitcmp1_b32 s46, 9")
    a("s_bitset1_b32 s46, 9")
    a("s_cbranch_scc0 pj_nw")
    a("s_waitcnt vmcnt(0)")
    a.label("pj_nw")
    for h in range(NREP - 1):
        for r in range(12): a(f"v_add_f32 v{GR+r}, v{GR+r}, v{HB[h]+r}")
    for p in range(6):
        c = GR + 2 * p
        a(f"v_cvt_pk_bf16_f32 v{c}, v{c}, v{c+1}")
        a(f"v_and_b32 v{c+1}, 0xffff0000, v{c}")
        a(f"v_lshlrev_b32 v{c}, 16, v{c}")
        a(f"v_mul_f32 v{c+1}, v{c+1}, v126")
        a(f"v_mul_f32 v{c}, v{c}, v126")
        a(f"v_cvt_pk_bf16_f32 v{c}, v{c}, v{c+1}")
        a(f"v_cndmask_b32 v{UR+p}, v{UR+p}, v{c}, s[44:45]")
    a("s_cmp_lg_u32 s41, 0")
    a("s_cbranch_scc1 pj_moe_ok")
    a("s_branch pj_gate")
    late(a)

def lg(j, T):
    n = 2 * (4 - T) + (10 if j + 1 < 10 else 0) + (2 * T if j + 2 < 10 else 0)
    return min(n, 12)

def touch_setup(a):
    a("s_cmp_ge_u32 s24, 6")
    a("s_cselect_b32 s12, s10, s4")
    a("s_cselect_b32 s13, s11, s5")
    a(f"s_mov_b32 s14, {X_BYTES}")
    a(f"s_cselect_b32 s14, {WS_USED}, s14")
    a("s_cselect_b32 s62, 5, 10")
    a("s_lshl_b32 s62, s62, 7")
    a("s_mov_b32 s15, 0x20000")
    a("s_and_b32 s58, s2, 1")
    a("s_lshr_b32 s63, s2, 3")
    a("s_lshl_b32 s57, s58, 5")
    a("s_add_u32 s57, s57, s63")
    a("s_mul_i32 s57, s57, 12800")
    a(f"s_add_u32 s57, s57, {WOP_OFF}")
    a("s_lshl_b32 s31, s60, 2")
    a("s_and_b32 s63, s25, 3")
    a("s_add_u32 s31, s31, s63")
    a("s_mul_i32 s31, s31, 20480")
    a("s_mul_i32 s63, s58, 640")
    a("s_add_u32 s31, s31, s63")
    a("s_cmp_ge_u32 s24, 6")
    a("s_cselect_b32 s57, s57, s31")
    a("s_and_b32 s31, s24, 1")
    a("s_mul_i32 s31, s31, s62")
    a("s_mul_i32 s31, s31, 12")
    a("s_add_u32 s57, s57, s31")
    a("s_sub_u32 s58, 8, s24")
    a("s_min_u32 s58, s58, 5")
    a(f"v_mul_u32_u24 v{T0+4}, 13108, v1")
    a(f"v_lshrrev_b32 v{T0+4}, 16, v{T0+4}")
    a(f"v_mul_u32_u24 v{T0+5}, 5, v{T0+4}")
    a(f"v_sub_u32 v{T0+5}, v1, v{T0+5}")
    a(f"v_mul_u32_u24 v{T0+6}, s62, v{T0+4}")
    a(f"v_lshl_add_u32 v{T0+6}, v{T0+5}, 7, v{T0+6}")

def attention(a):
    a("s_and_b32 s25, s2, 7")
    a("s_lshl_b32 s25, s25, 2")
    a("s_lshr_b32 s26, s2, 6")
    a("s_add_u32 s25, s25, s26")
    a("s_bfe_u32 s26, s2, 0x30003")
    a("s_load_dwordx2 s[4:5], s[0:1], 0")
    a("s_load_dwordx2 s[8:9], s[0:1], 64")
    a("s_lshl_b32 s60, s26, 2")
    a("s_lshr_b32 s61, s25, 3")
    a("s_add_u32 s60, s60, s61")
    a("s_and_b32 s61, s25, 7")
    a(f"s_mov_b32 s44, {TILE_B}")
    a(f"s_mov_b32 s52, {32*TILE_B}")
    a("s_mul_i32 s45, s25, 1280")
    a("s_add_u32 s45, s45, 40960")
    a("s_mul_i32 s46, s25, 320")
    a("s_add_u32 s46, s46, 81920")
    a("s_movk_i32 s47, 320")
    a("s_movk_i32 s48, 10240")
    piece_split(a, 0, T0, T0 + 1, T0 + 2)
    a(f"v_mad_u32_u24 v2, v{T0}, s47, v{T0+1}")
    a(f"v_mad_u32_u24 v3, v{T0}, s48, v{T0+1}")
    a("v_add_u32 v2, s45, v2")
    a("v_add_u32 v3, s46, v3")
    a("s_cmp_lt_u32 s24, 2")
    a("s_cselect_b32 s49, s47, s48")
    a("s_cselect_b32 s50, s45, s46")
    a("s_cselect_b32 s39, 8, 16")
    a("s_lshl_b32 s39, s39, 10")
    a(f"v_and_b32 v{T0+3}, 127, v0")
    a(f"v_add_u32 v{T0+3}, 512, v{T0+3}")
    piece_split(a, T0 + 3, T0, T0 + 1, T0 + 2)
    a(f"v_mad_u32_u24 v4, v{T0}, s49, v{T0+1}")
    a("v_add_u32 v4, s50, v4")
    a("s_mov_b32 s28, 0")
    a(f"s_mov_b32 s59, {4*TILE_B}")
    a("s_lshl_b32 s30, s24, 10")
    a(f"v_lshrrev_b32 v{T0}, 5, v1")
    a(f"v_and_b32 v{T0+1}, 31, v1")
    a(f"v_lshlrev_b32 v5, 9, v{T0}")
    a(f"v_lshl_add_u32 v5, v{T0+1}, 3, v5")
    a(f"v_lshlrev_b32 v{T0+2}, 31, v{T0}")
    a(f"v_or_b32 v{T0+2}, v{T0+2}, v5")
    a("s_lshl_b32 s51, s26, 3")
    a("s_and_b32 s31, s24, 3")
    a("s_lshl_b32 s31, s31, 1")
    a("s_add_u32 s51, s51, s31")
    a("s_lshr_b32 s53, s24, 2")
    a("s_add_u32 s51, s51, s53")
    a("s_xor_b32 s37, s51, 1")
    a("s_mul_i32 s31, s51, s44")
    a("s_mul_i32 s37, s37, s44")
    a("s_mul_i32 s29, s25, 1280")
    a("s_add_u32 s31, s31, s29")
    a("s_add_u32 s37, s37, s29")
    a("s_waitcnt lgkmcnt(0)")
    srd(a, 20, 10, WS_USED)
    stamp(a, 1)
    dma_chunk(a, "k2_d0")
    for sl, so in ((0, 31), (1, 37)):
        a(f"buffer_load_dwordx2 {vr(QLO[sl],2)}, v5, s[20:23], s{so} offen")
        a(f"buffer_load_dwordx2 {vr(QLO[sl]+2,2)}, v5, s[20:23], s{so} offen offset:256")
        a(f"buffer_load_dwordx2 {vr(QHI[sl],2)}, v{T0+2}, s[20:23], s{so} offen offset:1024")
    a(f"s_add_u32 s30, s30, {CH}")
    touch_setup(a)
    a("s_mul_i32 s31, s53, 5120")
    a("v_add_u32 v5, s31, v5")
    vrow(a, T0 + 1, T0 + 3)
    a(f"v_mul_u32_u24 v6, 320, v{T0}")
    a(f"v_lshl_add_u32 v6, v{T0+1}, 4, v6")
    a("s_add_u32 s31, s31, 10240")
    a("v_add_u32 v6, s31, v6")
    a("s_mov_b32 s40, 0x000fffff")
    a("s_mov_b32 s41, 0x000fffff")
    a("s_mov_b32 s27, 0")
    a(f"s_mov_b32 s35, {(-3*CH) & 0xffffffff}")
    a(f"s_mov_b32 s36, {CH}")
    a("s_mov_b32 s33, s36")
    a("s_mov_b32 s34, s35")
    a("s_mul_i32 s56, s53, 7")
    a("s_sub_u32 s55, 7, s56")
    a("s_mov_b32 s42, 0x11000000")
    a("s_mov_b32 s43, 0x11000000")
    a(f"v_mov_b32 v{T0+3}, 0x3f803f80")
    a(f"v_cndmask_b32 v{VV[0]}, 0, v{T0+3}, s[42:43]")
    for r in range(1, 16): a(f"v_mov_b32 v{VV[0]+r}, v{VV[0]}")
    for r in range(8): a(f"v_mov_b32 v{P+r}, 0")
    for r in range(32): a(f"v_mov_b32 v{OO[0]+r}, 0")
    for r in range(4): a(f"v_mov_b32 v{SS[1]+12+r}, 0")
    for st in range(2):
        for r in range(2): a(f"v_mov_b32 v{KHI[st]+r}, 0")
    a("s_mov_b32 s42, -1")
    a("s_mov_b32 s43, 0")
    stamp(a, 2)
    a("s_waitcnt vmcnt(0)")
    a("s_barrier")
    stamp(a, 3)
    a(f"ds_read_b64 {vr(KLO[0],2)}, v5")
    a(f"ds_read_b64 {vr(KLO[0]+2,2)}, v5 offset:256")
    a("s_mov_b64 exec, s[42:43]")
    a(f"ds_read_b64 {vr(KHI[0],2)}, v5 offset:1024")
    a("s_mov_b64 exec, -1")
    dma_chunk(a, "k2_d1")
    a(f"s_add_u32 s30, s30, {CH}")
    a("s_waitcnt lgkmcnt(0)")
    a(f"v_mfma_f32_32x32x16_bf16 {vr(SS[0],16)}, {vr(KLO[0],4)}, {vr(QLO[0],4)}, 0")
    a(f"v_mfma_f32_32x32x8_bf16 {vr(SS[0],16)}, {vr(KHI[0],2)}, {vr(QHI[0],2)}, {vr(SS[0],16)}")
    dma_chunk(a, "k2_d2")
    a(f"s_add_u32 s30, s30, {CH}")
    a(f"s_setprio {TOP}")
    a("s_nop 1")
    stamp(a, 4)
    a.raw(".p2align 3")
    a.label("k2_loop")
    for u in range(8): unit(a, u)
    a("s_cmp_lt_u32 s27, 8")
    a("s_cbranch_scc1 k2_loop")
    stamp(a, 5)
    if "itst" in X:
        a("s_lshl_b32 s96, s2, 3")
        a("s_add_u32 s96, s96, s24")
        a("s_lshl_b32 s96, s96, 8")
        a(f"s_add_u32 s96, s96, {STAMP_OFF + (3<<20)}")
        a("v_lshl_add_u32 v124, v1, 2, s96")
        a("global_store_dword v124, v125, s[10:11]")
    O = OO[0]
    a(f"v_mfma_f32_32x32x16_bf16 {vr(OO[1],16)}, {vr(VV[1],4)}, {vr(P,4)}, {vr(OO[1],16)}")
    a(f"v_cvt_pk_bf16_f32 v{P+6}, v{SS[1]+12}, v{SS[1]+13}")
    a(f"v_cvt_pk_bf16_f32 v{P+7}, v{SS[1]+14}, v{SS[1]+15}")
    a("s_mul_i32 s31, s24, 3328")
    a("s_xor_b32 s33, s24, 4")
    a(f"v_mfma_f32_32x32x16_bf16 {vr(OO[1],16)}, {vr(VV[1]+4,4)}, {vr(P+4,4)}, {vr(OO[1],16)}")
    a("s_mul_i32 s33, s33, 3328")
    a("s_add_u32 s31, s31, 40960")
    a("s_add_u32 s33, s33, 40960")
    a("v_lshl_add_u32 v26, v1, 4, s31")
    a("v_lshl_add_u32 v27, v1, 2, s31")
    a("v_lshl_add_u32 v28, v1, 4, s33")
    a("v_lshl_add_u32 v29, v1, 2, s33")
    a("s_mul_i32 s29, s51, 40960")
    a(f"s_add_u32 s29, s29, {O_OFF}")
    a("s_lshr_b32 s31, s25, 1")
    a("s_lshl_b32 s31, s31, 9")
    a("s_add_u32 s30, s29, s31")
    for g in range(3):
        a(f"ds_write_b128 v26, {vr(OO[1]+4*g,4)} offset:{g*1024}")
    a(f"ds_write_b32 v27, v{OO[1]+12} offset:3072")
    a("s_and_b32 s31, s25, 1")
    a("s_lshl_b32 s31, s31, 3")
    a("s_add_u32 s30, s30, s31")
    a("s_add_u32 s30, s30, 32768")
    a("s_lshl_b32 s31, s25, 10")
    a("s_add_u32 s29, s29, s31")
    a("s_setprio 0")
    a("s_waitcnt vmcnt(0)")
    a("v_cmp_eq_u32 vcc, 0, v127")
    a("s_cbranch_vccnz pj_nokey")
    a.label("pj_sel")
    a("s_sub_u32 s31, 127, s49")
    a("v_bfe_u32 v30, v127, 7, 7")
    a("v_cmp_eq_u32 vcc, s31, v30")
    a("s_and_b32 s47, vcc_lo, 0xff")
    a("s_cbranch_scc0 pj_nh")
    a(f"v_mov_b32 v30, {MOE_CNT}")
    a("global_load_dword v31, v30, s[10:11] sc1")
    a.label("pj_nh")
    a("s_waitcnt lgkmcnt(0)")
    a("s_barrier")
    for g in range(3):
        a(f"ds_read_b128 {vr(SS[0]+4*g,4)}, v28 offset:{g*1024}")
    a(f"ds_read_b32 v{SS[0]+12}, v29 offset:3072")
    a("v_lshrrev_b32 v2, 16, v2")
    a("v_or_b32 v0, v2, v3")
    a("v_lshlrev_b32 v2, 4, v1")
    a("s_waitcnt lgkmcnt(0)")
    a(f"v_add_f32 v{O+12}, v{O+12}, v{SS[0]+12}")
    for p in range(6):
        a(f"v_pk_add_f32 {vr(O+2*p,2)}, {vr(O+2*p,2)}, {vr(SS[0]+2*p,2)}")
    a(f"v_med3_f32 v3, v{O+12}, v7, s54")
    a(f"v_cmp_neq_f32 vcc, v{O+12}, v3")
    a("s_cbranch_vccnz k2_slow")
    a.label("k2_fin")
    a(f"v_rcp_f32 v4, v{O+12}")
    a("s_nop 0")
    for p in range(6):
        a(f"v_pk_mul_f32 {vr(O+2*p,2)}, {vr(O+2*p,2)}, v[4:5] op_sel_hi:[1,0]")
    for p in range(6):
        a(f"v_cvt_pk_bf16_f32 v{O+p}, v{O+2*p}, v{O+2*p+1}")
    a(f"buffer_store_dwordx4 {vr(O,4)}, v2, s[20:23], s29 offen sc1")
    a("s_mov_b32 exec_hi, 0")
    a(f"buffer_store_dwordx2 {vr(O+4,2)}, v2, s[20:23], s30 offen sc1")
    a("s_mov_b64 exec, -1")
    stamp(a, 6)
    project(a)
    TS = OO[1]
    C = SS[1]; M = TS + 3
    a.label("k2_slow")
    a(f"v_lshrrev_b32 v{TS}, 5, v1")
    a(f"v_and_b32 v{TS+1}, 31, v1")
    a(f"v_lshlrev_b32 v5, 9, v{TS}")
    a(f"v_lshl_add_u32 v5, v{TS+1}, 3, v5")
    a("v_add_u32 v5, s45, v5")
    vrow(a, TS + 1, TS + 2)
    a(f"v_mul_u32_u24 v6, 10240, v{TS}")
    a(f"v_lshl_add_u32 v6, v{TS+1}, 4, v6")
    a("v_add_u32 v6, s46, v6")
    a("v_add_u32 v4, 20480, v6")
    for r in range(16): a(f"v_mov_b32 v{C+r}, 0")
    a(f"v_mov_b32 v{M}, 0xff800000")
    a("s_mov_b32 s32, 0")
    a.label("k2_s_pass")
    a("s_mov_b32 s28, 0")
    a.label("k2_s_loop")
    a(f"buffer_load_dwordx2 {vr(KLO[0],2)}, v5, s[20:23], s28 offen")
    a(f"buffer_load_dwordx2 {vr(KLO[0]+2,2)}, v5, s[20:23], s28 offen offset:256")
    a(f"buffer_load_dwordx2 {vr(KHI[0],2)}, v5, s[20:23], s28 offen offset:1024")
    a("s_mov_b64 exec, s[40:41]")
    a(f"buffer_load_dwordx4 {vr(VV[0],4)}, v6, s[20:23], s28 offen")
    a(f"buffer_load_dwordx4 {vr(VV[0]+4,4)}, v4, s[20:23], s28 offen")
    a("s_mov_b64 exec, -1")
    a("s_waitcnt vmcnt(0)")
    a(f"v_mfma_f32_32x32x16_bf16 {vr(SS[0],16)}, {vr(KLO[0],4)}, {vr(QLO[0],4)}, {vr(C,16)}")
    a(f"v_mfma_f32_32x32x8_bf16 {vr(SS[0],16)}, {vr(KHI[0],2)}, {vr(QHI[0],2)}, {vr(SS[0],16)}")
    a("s_nop 11")
    a("s_cmp_eq_u32 s32, 0")
    a("s_cbranch_scc0 k2_s_p2")
    for i in range(0, 16, 2):
        a(f"v_max3_f32 v{M}, v{SS[0]+i}, v{SS[0]+i+1}, v{M}")
    a("s_branch k2_s_next")
    a.label("k2_s_p2")
    for r in range(16): a(f"v_exp_f32 v{SS[0]+r}, v{SS[0]+r}")
    a("s_nop 0")
    for r in range(8): a(f"v_cvt_pk_bf16_f32 v{P+r}, v{SS[0]+2*r}, v{SS[0]+2*r+1}")
    a("s_nop 1")
    a(f"v_mfma_f32_32x32x16_bf16 {vr(O,16)}, {vr(VV[0],4)}, {vr(P,4)}, {vr(O,16)}")
    a(f"v_mfma_f32_32x32x16_bf16 {vr(O,16)}, {vr(VV[0]+4,4)}, {vr(P+4,4)}, {vr(O,16)}")
    a.label("k2_s_next")
    a(f"s_add_u32 s28, s28, {TILE_B}")
    a(f"s_cmp_lt_u32 s28, {64*TILE_B}")
    a("s_cbranch_scc1 k2_s_loop")
    a("s_nop 11")
    a("s_cmp_eq_u32 s32, 0")
    a("s_cbranch_scc0 k2_fin")
    a(f"v_mov_b32 v{TS+7}, v{M}")
    a("s_nop 1")
    a(f"v_permlane32_swap_b32 v{M}, v{TS+7}")
    a(f"v_max_f32 v{M}, v{M}, v{TS+7}")
    for r in range(16): a(f"v_sub_f32 v{C+r}, 0, v{M}")
    for r in range(16): a(f"v_mov_b32 v{O+r}, 0")
    a("s_mov_b32 s32, 1")
    a("s_branch k2_s_pass")

def silu_bf16(a, x, t):
    a(f"v_mul_f32 v{t}, {f32(-math.log2(math.e))}, v{x}")
    a(f"v_exp_f32 v{t}, v{t}")
    a("s_nop 0")
    a(f"v_add_f32 v{t}, 1.0, v{t}")
    a(f"v_rcp_f32 v{t}, v{t}")
    a("s_nop 0")
    a(f"v_mul_f32 v{x}, v{x}, v{t}")
    a(f"v_cvt_pk_bf16_f32 v{x}, v{x}, v{x}")
    a(f"v_and_b32 v{x}, 0xffff0000, v{x}")

def rnd_bf16(a, x):
    a(f"v_cvt_pk_bf16_f32 v{x}, v{x}, v{x}")
    a(f"v_and_b32 v{x}, 0xffff0000, v{x}")

XSL = 61440
UL = XSL + 10368
KL = UL + 1536

def moe(a):
    a("s_load_dwordx4 s[4:7], s[0:1], 40")
    a("s_load_dwordx2 s[8:9], s[0:1], 56")
    a("s_sub_u32 s25, s2, 256")
    a("s_and_b32 s26, s25, 7")
    a("s_mul_i32 s26, s26, 12")
    a("s_lshr_b32 s27, s25, 3")
    a("s_add_u32 s26, s26, s27")
    a("v_lshrrev_b32 v7, 4, v1")
    a("v_and_b32 v4, 15, v1")
    a("v_lshlrev_b32 v5, 4, v1")
    a("s_waitcnt lgkmcnt(0)")
    srd(a, 20, 10, WS_USED)
    a("s_cmp_lt_u32 s24, 4")
    a("s_cbranch_scc1 moe_c")
    a("s_cmp_eq_u32 s24, 7")
    a("s_cbranch_scc1 k2_exit")
    a("s_cmp_eq_u32 s24, 5")
    a("s_cselect_b32 s12, s6, s4")
    a("s_cselect_b32 s13, s7, s5")
    a("v_lshrrev_b32 v2, 1, v1")
    a("v_mul_u32_u24 v2, 3072, v2")
    a("v_and_b32 v3, 1, v1")
    a("v_lshl_add_u32 v2, v3, 4, v2")
    a("s_lshl_b32 s28, s26, 5")
    a(f"s_mov_b32 s29, {32*3072}")
    a("s_cmp_lg_u32 s24, 6")
    a("s_cbranch_scc1 moe_st")
    a("s_mov_b32 s12, s8")
    a("s_mov_b32 s13, s9")
    a("v_mov_b32 v2, v5")
    a("s_mul_i32 s28, s26, 20480")
    a("s_movk_i32 s29, 1024")
    a.label("moe_st")
    a(f"s_mov_b32 s14, {WG_BYTES}")
    a("s_mov_b32 s15, 0x20000")
    a("s_sub_u32 s30, s24, 4")
    a("s_mul_i32 s30, s30, 20480")
    a("s_and_b32 s27, s26, 3")
    a("s_mul_i32 s27, s27, 5")
    a("s_mov_b32 s33, 0")
    a("s_setprio 0")
    a("s_barrier")
    a.label("moe_stl")
    a("s_lshl_b32 s31, s27, 10")
    a("s_add_u32 m0, s30, s31")
    a("s_mul_i32 s31, s27, s29")
    a("s_add_u32 s31, s31, s28")
    a("buffer_load_dwordx4 v2, s[12:15], s31 offen lds")
    a("s_add_u32 s27, s27, 1")
    a("s_cmp_eq_u32 s27, 20")
    a("s_cselect_b32 s27, 0, s27")
    a("s_add_u32 s33, s33, 1")
    a("s_cmp_lt_u32 s33, 20")
    a(f"s_waitcnt vmcnt({PACE})")
    a("s_cbranch_scc1 moe_stl")
    a("s_waitcnt vmcnt(0)")
    a("s_barrier")
    a("s_endpgm")
    a.label("moe_c")
    a("s_cmp_lg_u32 s24, 3")
    a("s_cbranch_scc1 moe_w0")
    a("v_lshlrev_b32 v3, 3, v1")
    a(f"s_mov_b32 s31, {CAND_OFF}")
    a("buffer_load_dwordx2 v[10:11], v3, s[20:23], s31 offen")
    a("v_mov_b32 v9, 0")
    a("s_mov_b32 s27, 0")
    a("s_waitcnt vmcnt(0)")
    a.label("moe_top")
    top8_rounds(a, 10, 11, 8, 31)
    a("s_mov_b32 m0, s27")
    a("s_add_u32 s27, s27, 1")
    a("v_cmp_ne_u32 s[40:41], s31, v10")
    a("v_cmp_ne_u32 s[42:43], s31, v11")
    a("v_writelane_b32 v9, s31, m0")
    a("s_cmp_lt_u32 s27, 8")
    a("v_cndmask_b32 v10, 0, v10, s[40:41]")
    a("v_cndmask_b32 v11, 0, v11, s[42:43]")
    a("s_cbranch_scc1 moe_top")
    a("s_cmp_ge_u32 s25, 32")
    a("s_cbranch_scc1 moe_nk")
    a("v_lshlrev_b32 v3, 2, v1")
    a("s_mov_b64 exec, 0xff")
    a("s_lshl_b32 s31, s25, 7")
    a(f"s_add_u32 s31, s31, {SEL_OFF}")
    a("buffer_store_dword v9, v3, s[20:23], s31 offen sc1")
    a("s_mov_b64 exec, -1")
    a.label("moe_nk")
    stamp(a, 1)
    a("s_mov_b32 s27, 0")
    a(f"s_mov_b32 s30, {XSL}")
    a.label("moe_xs")
    a("v_readlane_b32 s31, v9, s27")
    a("s_mov_b32 m0, s30")
    a("s_bfe_u32 s33, s31, 0x4000a")
    a("s_sub_u32 s33, 15, s33")
    a("s_lshl_b32 s33, s33, 3")
    a("s_and_b32 s31, s31, 7")
    a("s_or_b32 s33, s33, s31")
    a("s_mul_i32 s33, s33, 1280")
    a(f"s_add_u32 s33, s33, {XS_OFF}")
    a("buffer_load_dwordx4 v5, s[20:23], s33 offen lds")
    a("s_mov_b64 exec, 0xffff")
    a("buffer_load_dwordx4 v5, s[20:23], s33 offen offset:1024 lds")
    a("s_mov_b64 exec, -1")
    a("s_addk_i32 s30, 1296")
    a("s_add_u32 s27, s27, 1")
    a("s_cmp_lt_u32 s27, 8")
    a("s_cbranch_scc1 moe_xs")
    a("s_waitcnt vmcnt(0)")
    a("s_barrier")
    a("s_branch moe_dn")
    a.label("moe_w0")
    a("s_barrier")
    a("s_cmp_ge_u32 s24, 2")
    a("s_cbranch_scc1 moe_dn")
    a("v_lshlrev_b32 v6, 3, v4")
    a("v_lshl_add_u32 v6, v7, 8, v6")
    a("s_mul_i32 s31, s24, 20480")
    a("v_add_u32 v6, s31, v6")
    a("v_bfe_u32 v9, v1, 2, 2")
    a("v_and_b32 v8, 1, v1")
    a("v_lshl_add_u32 v9, v9, 1, v8")
    a("v_mul_u32_u24 v8, 1296, v9")
    a("v_lshl_add_u32 v8, v7, 4, v8")
    a(f"v_add_u32 v8, {XSL}, v8")
    a(f"v_add_u32 v5, {UL}, v5")
    a("s_setprio 0")
    a("s_waitcnt vmcnt(0)")
    a("s_barrier")
    stamp(a, 2)
    for half in range(2):
        for k in range(10):
            ks = half * 10 + k
            a(f"ds_read_b64_tr_b16 {vr(16+8*k,2)}, v6 offset:{ks*1024}")
            a(f"ds_read_b64_tr_b16 {vr(18+8*k,2)}, v6 offset:{ks*1024+128}")
            a(f"ds_read_b128 {vr(20+8*k,4)}, v8 offset:{ks*64}")
            if k in (4, 7): a("s_waitcnt lgkmcnt(6)")
        a("s_waitcnt lgkmcnt(0)")
        a("s_setprio 3")
        for k in range(10):
            a(f"v_mfma_f32_16x16x32_bf16 v[12:15], {vr(16+8*k,4)}, {vr(20+8*k,4)}, " + ("0" if half == 0 and k == 0 else "v[12:15]"))
        if half == 0: a("s_setprio 0")
    a("s_cmp_eq_u32 s24, 0")
    a("s_nop 6")
    a("s_cbranch_scc1 moe_g")
    a("ds_write_b128 v5, v[12:15]")
    a("s_waitcnt lgkmcnt(0)")
    a("s_barrier")
    a("s_endpgm")
    a.label("moe_g")
    for r in range(4): a(f"v_mul_f32 v{16+r}, {f32(-math.log2(math.e))}, v{12+r}")
    for r in range(4): a(f"v_exp_f32 v{16+r}, v{16+r}")
    for r in range(4): a(f"v_add_f32 v{16+r}, 1.0, v{16+r}")
    for r in range(4): a(f"v_rcp_f32 v{16+r}, v{16+r}")
    a("s_barrier")
    a("ds_read_b128 v[20:23], v5")
    for r in range(4): a(f"v_mul_f32 v{12+r}, v{12+r}, v{16+r}")
    a("v_lshlrev_b32 v5, 3, v1")
    a("s_waitcnt lgkmcnt(0)")
    for r in range(4): a(f"v_mul_f32 v{12+r}, v{12+r}, v{20+r}")
    a(f"v_add_u32 v5, {UL+1024}, v5")
    a("v_cvt_pk_bf16_f32 v12, v12, v13")
    a("v_cvt_pk_bf16_f32 v13, v14, v15")
    a("ds_write_b64 v5, v[12:13]")
    a("s_waitcnt lgkmcnt(0)")
    a("s_barrier")
    a("s_endpgm")
    a.label("moe_dn")
    a("v_lshrrev_b32 v6, 2, v1")
    a("v_mul_u32_u24 v6, 1280, v6")
    a("v_and_b32 v8, 3, v1")
    a("v_lshl_add_u32 v6, v8, 3, v6")
    a("s_sub_u32 s27, s24, 2")
    a("s_mul_i32 s31, s27, 640")
    a("s_add_u32 s31, s31, 40960")
    a("v_add_u32 v6, s31, v6")
    a("v_mul_u32_u24 v10, 5120, v7")
    a("v_lshl_add_u32 v10, v4, 2, v10")
    a("s_mul_i32 s34, s27, 1280")
    a("s_and_b32 s31, s26, 3")
    a("s_mul_i32 s31, s31, 20480")
    a("s_add_u32 s34, s34, s31")
    a(f"s_add_u32 s34, s34, {PART_OFF}")
    a("v_lshlrev_b32 v5, 3, v1")
    a(f"v_add_u32 v5, {UL+1024}, v5")
    a("s_setprio 0")
    a("s_waitcnt vmcnt(0)")
    a("s_barrier")
    for k in range(20):
        a(f"ds_read_b64_tr_b16 {vr(16+2*k,2)}, v6 offset:{k*32}")
        if k == 13: a("s_waitcnt lgkmcnt(4)")
    a("s_barrier")
    a("s_barrier")
    a("ds_read_b64 v[12:13], v5")
    a("s_waitcnt lgkmcnt(0)")
    stamp(a, 2)
    a("s_setprio 3")
    dreg = lambda k: 56 + 4 * k if k < 18 else 16 + 4 * (k - 18)
    for k in range(20):
        a(f"v_mfma_f32_16x16x16_bf16 {vr(dreg(k),4)}, v[12:13], {vr(16+2*k,2)}, 0")
    a("s_setprio 0")
    for k in range(20):
        a(f"buffer_atomic_add_f32 v{dreg(k)}, v10, s[20:23], s34 offen offset:{k*64}")
        a(f"buffer_atomic_add_f32 v{dreg(k)+1}, v10, s[20:23], s34 offen offset:{2560+k*64}")
        if 2*k+2 > APACE and k < 19: a(f"s_waitcnt vmcnt({APACE})")
    a(f"v_mov_b32 v2, {MOE_CNT}")
    a("v_mov_b32 v3, 1")
    a("s_mov_b64 exec, 1")
    a("s_waitcnt vmcnt(0)")
    a("global_atomic_add v2, v3, s[10:11]")
    stamp_end(a, 1, 2)
    a.label("k2_exit")
    a("s_endpgm")

def gen():
    a = Asm()
    a.raw(f".globl {NAME}\n.p2align 8\n.type {NAME},@function")
    a.label(NAME)
    stamp(a, 0)
    a("s_load_dwordx2 s[10:11], s[0:1], 80")
    a("v_lshrrev_b32 v2, 6, v0")
    a("v_and_b32 v1, 63, v0")
    a(f"v_mov_b32 v7, {f32(2.0**64)}")
    a(f"s_mov_b32 s54, {f32(2.0**-64)}")
    a("v_readfirstlane_b32 s24, v2")
    a("s_cmp_ge_u32 s2, 256")
    a("s_cbranch_scc1 k2_other")
    attention(a)
    a.label("k2_other")
    a("s_setprio 3")
    a(f"s_cmp_ge_u32 s2, {GRID}")
    a("s_cbranch_scc1 k2_exit")
    moe(a)
    return a
```

```python
import sys, importlib
from common import *
import k1
parts = [("qkv_kernel", k1, (256,1,1), k1.BLOCK, k1.LDS, k1.VGPR, 64)]
try:
    import k2
    parts.append(("attn_kernel", k2, (k2.GRID,1,1), 512, k2.LDS, 128, 80))
except ImportError: pass
if DIAG:
    class dg:
        @staticmethod
        def gen():
            ia, ib = [int(x) for x in DIAG.split(",")]
            a = Asm()
            a.raw(".globl diag_kernel\n.p2align 8\n.type diag_kernel,@function")
            a.label("diag_kernel")
            a("s_memrealtime s[20:21]")
            a("s_load_dwordx2 s[10:11], s[0:1], 80")
            a("s_cmp_lg_u32 s2, 0")
            a("s_cbranch_scc1 diag_end")
            a("s_waitcnt lgkmcnt(0)")
            a(f"s_add_u32 s10, s10, {STAMP_OFF}")
            a("s_addc_u32 s11, s11, 0")
            a(f"s_load_dword s12, s[10:11], {ia*4}")
            a(f"s_load_dword s13, s[10:11], {(ib if ib < 48 else 0)*4}")
            a("s_waitcnt lgkmcnt(0)")
            if ib >= 48: a("s_mov_b32 s13, s20")
            a("s_sub_u32 s13, s13, s12")
            a("s_min_u32 s13, s13, 10000")
            a("s_lshl_b32 s13, s13, 2")
            a("s_add_u32 s13, s13, s20")
            a.label("diag_spin")
            a("s_memrealtime s[22:23]")
            a("s_waitcnt lgkmcnt(0)")
            a("s_sub_u32 s14, s22, s13")
            a("s_cmp_lt_i32 s14, 0")
            a("s_cbranch_scc1 diag_spin")
            a.label("diag_end")
            a("s_endpgm")
            return a
    parts.append(("diag_kernel", dg, (1,1,1), 64, 0, 8, 32))
hdr = open("recurrent_scan__mha_block__moe_arch_mod__prompt.s.ref").read().split("\n")
out = [l for l in hdr[:12]]
for name, mod, g, b, lds, vg, sg in parts:
    out.append(f"; @launch kernel={name} grid=({g[0]},{g[1]},{g[2]}) block=({b},1,1) lds={lds}")
out.append('.amdgcn_target "amdgcn-amd-amdhsa--gfx950"')
out.append(".text")
txt = "\n".join(out) + "\n"
for name, mod, g, b, lds, vg, sg in parts:
    txt += mod.gen().text()
txt += "code_end:\n    s_endpgm\n"
txt += '.section .rodata,"a"\n'
for name, mod, g, b, lds, vg, sg in parts:
    txt += desc(name, vg, 100 if (STAMP or DIAG) else sg)
dst = sys.argv[1] if len(sys.argv) > 1 else "recurrent_scan__mha_block__moe_arch_mod__prompt.s"
open(dst, "w").write(txt)
print("wrote", dst, len(txt))
```

```python
from common import *

NAME = "qkv_kernel"
NSLOT = 4
EX = NSLOT * 32768
LDS = EX + 2048
BLOCK = 512
ST_FLAG = os.environ.get("K1ST", "")

def dma_stage(a, fill=None):
    seq = [("s_mov_b32 m0, s30", "s_add_u32 s31, s28, 10240", "buffer_load_dwordx4 v2, s[12:15], s28 offen lds"),
           ("s_addk_i32 m0, 0x4000", "s_add_u32 s33, s29, 15360", "buffer_load_dwordx4 v4, s[16:19], s29 offen lds"),
           (f"s_addk_i32 m0, {0x400-0x4000}", "s_addk_i32 s28, 128", "buffer_load_dwordx4 v3, s[12:15], s31 offen lds"),
           ("s_addk_i32 m0, 0x4000", "s_addk_i32 s31, 10240", "buffer_load_dwordx4 v4, s[16:19], s33 offen lds"),
           (f"s_addk_i32 m0, {0x400-0x4000}", "s_addk_i32 s33, 15360", "buffer_load_dwordx4 v2, s[12:15], s31 offen lds"),
           ("s_addk_i32 m0, 0x4000", "s_addk_i32 s31, 10240", "buffer_load_dwordx4 v4, s[16:19], s33 offen lds"),
           (f"s_addk_i32 m0, {0x400-0x4000}", "s_addk_i32 s33, 15360", "buffer_load_dwordx4 v3, s[12:15], s31 offen lds"),
           ("s_addk_i32 m0, 0x4000", "s_add_u32 s29, s29, 245760", "buffer_load_dwordx4 v4, s[16:19], s33 offen lds")]
    for n, g in enumerate(seq):
        for x in g: a(x)
        if fill:
            for x in fill[n]: a(x)
    a("s_add_u32 s30, s30, 0x8000")
    a(f"s_and_b32 s30, s30, {NSLOT*32768-1}")
    a("s_add_u32 s32, s32, 1")
    a("s_cmp_eq_u32 s32, 10")
    a("s_cselect_b32 s28, s34, s28")
    a("s_cselect_b32 s29, s35, s29")

def cs_reads():
    return [f"ds_read_b128 {vr(32+4*i,4)}, v12 offset:{i*1024}" for i in range(4)] + \
           ["v_add_u32 v12, 0x8000, v12", f"v_and_b32 v12, {NSLOT*32768-1}, v12"]
def cs_ops():
    G = []
    for i in range(4):
        L = []
        for d in range(4):
            L.append(f"v_lshlrev_b32 v{24+2*d}, 16, v{32+4*i+d}")
            L.append(f"v_and_b32 v{25+2*d}, v15, v{32+4*i+d}")
        for d in range(8):
            L.append(f"v_add_f32 v{16+d}, v{16+d}, v{24+d}")
        G.append(L)
    return G

X = os.environ.get("K1X", "")
VGPR = 176
def read_list(ks):
    b = 32 + 16 * ks
    return [f"ds_read_b128 {vr(b,4)}, v{5+ks}",
            f"ds_read_b64_tr_b16 {vr(b+8,2)}, v13 offset:{ks*4096}",
            f"ds_read_b64_tr_b16 {vr(b+10,2)}, v13 offset:{ks*4096+1024}",
            f"ds_read_b64_tr_b16 {vr(b+12,2)}, v14 offset:{ks*4096}",
            f"ds_read_b64_tr_b16 {vr(b+14,2)}, v14 offset:{ks*4096+1024}",
            f"ds_read_b128 {vr(b+4,4)}, v{5+ks} offset:4096"]

def acc(i, j):
    return 96 + (2 * i + j) * 16

def mm(a, ks, vmode, extra=None):
    b = 32 + 16 * ks
    rd = read_list((ks + 2) % 4)
    rds = [rd[0:2], rd[2:4], rd[4:5], rd[5:6]]
    n = 0
    for i in range(2):
        for j in range(2):
            Xr = vr(b + 4 * i, 4); W = vr(b + 8 + 4 * j, 4); C = vr(acc(i, j), 16)
            if "nomm" in X: pass
            elif vmode: a(f"v_mfma_f32_32x32x16_bf16 {C}, {Xr}, {W}, {C}")
            else:     a(f"v_mfma_f32_32x32x16_bf16 {C}, {W}, {Xr}, {C}")
            for r in rds[n]:
                if "nox" in X and "b128" in r: r = "s_nop 0"
                if "now" in X and "tr_b16" in r: r = "s_nop 0"
                a(r)
            if extra:
                for e in extra[n]: a(e)
            n += 1
    if "nocs" not in X: a(f"v_mfma_f32_16x16x32_bf16 v[16:19], v[20:23], {vr(b+8,4)}, v[16:19]")

def stats_math(a, vsum, vsq, vmp, vsd, t0):
    a(f"v_mul_f32 v{vsum}, {f32(1.0/640)}, v{vsum}")
    a(f"v_mul_f32 v{vsq}, {f32(1.0/640)}, v{vsq}")
    a(f"v_fma_f32 v{vsq}, -v{vsum}, v{vsum}, v{vsq}")
    a(f"v_max_f32 v{vsq}, 0, v{vsq}")
    a(f"v_cvt_pk_bf16_f32 v{vmp}, v{vsum}, v{vsum}")
    a(f"v_cvt_pk_bf16_f32 v{t0}, v{vsq}, v{vsq}")
    a(f"v_and_b32 v{t0}, 0xffff0000, v{t0}")
    a(f"v_add_f32 v{t0}, {f32(1e-5)}, v{t0}")
    a(f"v_cvt_pk_bf16_f32 v{t0}, v{t0}, v{t0}")
    a(f"v_and_b32 v{t0}, 0xffff0000, v{t0}")
    a(f"v_sqrt_f32 v{t0}, v{t0}")
    a("s_nop 0")
    a(f"v_cvt_pk_bf16_f32 v{t0}, v{t0}, v{t0}")
    a(f"v_and_b32 v{vsd}, 0xffff0000, v{t0}")

def gemm_body(a, vmode):
    L = "k1v" if vmode else "k1q"
    stamp(a, 3)
    a("s_barrier")
    stamp(a, 4)
    for r in read_list(0) + read_list(1): a(r)
    a.label(f"{L}_loop")
    a("s_and_b32 s32, s27, 3")
    a("s_cmp_eq_u32 s32, 3")
    a("s_cselect_b32 s33, s35, s36")
    a("s_waitcnt lgkmcnt(6)")
    mm(a, 0, vmode, extra=[[], [], ["v_add_u32 v5, s33, v5"], ["v_add_u32 v6, s33, v6"]])
    a("s_waitcnt lgkmcnt(6)")
    mm(a, 1, vmode, extra=[[], [], ["v_add_u32 v7, s33, v7", "v_add_u32 v13, s33, v13"], ["v_add_u32 v14, s33, v14", "v_add_u32 v8, s33, v8"]])
    a("s_add_u32 s27, s27, 1")
    a("s_cmp_eq_u32 s27, 10")
    a("s_waitcnt lgkmcnt(6)")
    a(f"s_cbranch_scc1 {L}_nb")
    a("s_barrier")
    a.label(f"{L}_nb")
    mm(a, 2, vmode)
    a("s_waitcnt lgkmcnt(6)")
    mm(a, 3, vmode)
    a(f"s_cbranch_scc0 {L}_loop")
    stamp(a, 5)
    a("s_waitcnt vmcnt(0)")
    a("v_and_b32 v24, 31, v1")
    a("v_lshlrev_b32 v24, 2, v24")
    a("s_lshr_b32 s31, s24, 1")
    a("s_lshl_b32 s31, s31, 8")
    a(f"s_add_u32 s31, s31, {EX}")
    a("v_add_u32 v9, s31, v24")
    a("s_lshl_b32 s33, s38, 8")
    a(f"s_add_u32 s33, s33, {EX+1024}")
    a("v_lshl_add_u32 v10, v1, 2, s33")
    if vmode:
        a("v_lshrrev_b32 v11, 5, v1")
        a("v_lshl_add_u32 v11, v11, 4, s31")
    a("v_cvt_pk_bf16_f32 v26, v16, v16")
    a("v_mov_b32 v23, 0")
    a("v_and_b32 v26, 0xffff0000, v26")
    a("v_mov_b32 v25, 0")
    a("v_sub_f32 v16, v16, v26")
    a("v_mov_b32 v27, 0")
    a("v_cvt_pk_bf16_f32 v26, -v26, -v16")
    a("v_mov_b32 v29, 0")
    a("ds_write_b32 v10, v26")
    a("v_xor_b32 v10, 256, v10")
    a("s_lshl_b32 s42, s25, 2")
    a("s_and_b32 s43, s24, 2")
    a("s_waitcnt lgkmcnt(0)")
    a("s_barrier")
    a("ds_read_b32 v22, v9")
    a("ds_read_b32 v24, v9 offset:128")
    a("ds_read_b32 v28, v10")
    if not vmode:
        a("ds_read_b32 v30, v9 offset:512")
        a("ds_read_b32 v20, v9 offset:640")
        a("s_waitcnt lgkmcnt(2)")
    else:
        for g in range(8):
            a(f"ds_read_b128 {vr(32+4*g,4)}, v11 offset:{512+32*g}")
        a("s_waitcnt lgkmcnt(8)")
    def corr(i, j):
        M = vr(22 + 2 * i, 2); CS = vr(26 + 2 * j, 2); C = vr(acc(i, j), 16)
        if vmode: a(f"v_mfma_f32_32x32x8_bf16 {C}, {M}, {CS}, {C}")
        else:     a(f"v_mfma_f32_32x32x8_bf16 {C}, {CS}, {M}, {C}")
    corr(0, 0); corr(1, 0); corr(0, 1); corr(1, 1)
    if not vmode:
        a("v_lshrrev_b32 v18, 5, v1")
        a("v_lshlrev_b32 v18, 8, v18")
        a("v_and_b32 v19, 31, v1")
        a("v_lshl_add_u32 v18, v19, 3, v18")
    else:
        a("v_lshrrev_b32 v18, 5, v1")
        a("v_mul_u32_u24 v18, 10240, v18")
        a("v_and_b32 v19, 31, v1")
        a("v_lshl_add_u32 v18, v19, 4, v18")
    a("s_add_u32 s42, s42, s43")
    a(f"s_mul_i32 s42, s42, {TILE_B}")
    a(f"s_add_u32 s43, s42, {TILE_B}")
    a("s_lshl_b32 s44, s26, 2")
    a("s_add_u32 s44, s44, s38")
    a("s_xor_b32 s45, s44, 1")
    a("s_waitcnt lgkmcnt(0)")
    if not vmode:
        a("s_lshl_b32 s44, s44, 11")
        a("s_lshl_b32 s45, s45, 11")
    else:
        a("s_lshl_b32 s44, s44, 9")
        a("s_lshl_b32 s45, s45, 9")
        a(f"s_add_u32 s44, s44, {81920 - 40*512}")
        a(f"s_add_u32 s45, s45, {81920 - 40*512}")
    stamp(a, 6)
    for j in range(2):
        for i in range(2):
            c = acc(i, j)
            a(f"s_add_u32 s46, s{42+i}, s{44+j}")
            if vmode: a("s_add_u32 s47, s46, 20480")
            for p in range(8):
                if vmode:
                    a(f"v_pk_mul_f32 {vr(c+2*p,2)}, {vr(c+2*p,2)}, {vr(32+16*i+2*p,2)}")
                else:
                    rs = 30 if i == 0 else 20
                    a(f"v_pk_mul_f32 {vr(c+2*p,2)}, {vr(c+2*p,2)}, {vr(rs,2)} op_sel_hi:[1,0]")
            for p in range(8):
                a(f"v_cvt_pk_bf16_f32 v{c+p}, v{c+2*p}, v{c+2*p+1}")
            if vmode:
                a(f"buffer_store_dwordx4 {vr(c,4)}, v18, s[20:23], s46 offen {ST_FLAG}")
                a(f"buffer_store_dwordx4 {vr(c+4,4)}, v18, s[20:23], s47 offen {ST_FLAG}")
            else:
                for g in range(4):
                    a(f"buffer_store_dwordx2 {vr(c+2*g,2)}, v18, s[20:23], s46 offen offset:{g*512} {ST_FLAG}")
    stamp(a, 7)
    if STAMP: a("s_waitcnt vmcnt(0)")
    stamp_end(a, 0, 2)
    a("s_endpgm")

def loader(a):
    a.label("k1_loader")
    a("s_sub_u32 s39, s24, 4")
    a("v_lshrrev_b32 v5, 3, v1")
    a("v_mul_u32_u24 v5, 1280, v5")
    a("v_lshrrev_b32 v6, 4, v1")
    a("v_and_b32 v7, 7, v1")
    a("v_xor_b32 v7, v7, v6")
    a("v_lshl_add_u32 v2, v7, 4, v5")
    a("v_xor_b32 v3, 64, v2")
    a("v_mul_u32_u24 v5, 3840, v6")
    a("v_lshlrev_b32 v7, 2, v6")
    a("v_and_b32 v8, 15, v1")
    a("v_xor_b32 v7, v7, v8")
    a("v_lshl_add_u32 v4, v7, 4, v5")
    a("s_lshl_b32 s34, s25, 2")
    a("s_add_u32 s34, s34, s39")
    a("s_mul_i32 s34, s34, 40960")
    a("s_mul_i32 s35, s39, 61440")
    a("s_lshl_b32 s31, s26, 8")
    a("s_add_u32 s35, s35, s31")
    a("s_and_b32 s32, s25, 3")
    a("s_mul_i32 s32, s32, 3")
    a("s_add_u32 s32, s32, s26")
    a("s_sub_u32 s31, s32, 10")
    a("s_cselect_b32 s32, s32, s31")
    a("s_sub_u32 s31, s32, 10")
    a("s_cselect_b32 s32, s32, s31")
    if "norot" in X: a("s_mov_b32 s32, 0")
    PH = {"p3": [0, 3, 7], "p4": [0, 2, 5, 7], "p5": [0, 2, 4, 6, 8], "p2": [0, 5]}
    for k, tab in PH.items():
        if k in X:
            n = len(tab)
            a("s_and_b32 s32, s25, 3")
            a("s_add_u32 s32, s32, s26")
            a(f"s_mul_i32 s31, s32, {(256 + n - 1) // n}")
            a("s_lshr_b32 s31, s31, 8")
            a(f"s_mul_i32 s31, s31, {n}")
            a("s_sub_u32 s32, s32, s31")
            a("s_lshl_b32 s32, s32, 2")
            a(f"s_lshr_b32 s32, {hex(sum(v << (4*i) for i, v in enumerate(tab)))}, s32")
            a("s_and_b32 s32, s32, 15")
    a("s_lshl_b32 s28, s32, 7")
    a("s_add_u32 s28, s28, s34")
    a("s_mul_i32 s29, s32, 245760")
    a("s_add_u32 s29, s29, s35")
    a("s_lshl_b32 s30, s39, 12")
    a("s_mov_b32 s27, 0")
    a("s_waitcnt lgkmcnt(0)")
    srd(a, 12, 4, X_BYTES)
    srd(a, 16, 6, WQKV_BYTES)
    stamp(a, 1)
    a.label("k1l_loop")
    dma_stage(a)
    a("s_add_u32 s27, s27, 1")
    a("s_cmp_eq_u32 s27, 1")
    a("s_cbranch_scc1 k1l_loop")
    a("s_cmp_eq_u32 s27, 10")
    a("s_cbranch_scc1 k1l_tail")
    a("s_waitcnt vmcnt(8)")
    a("s_barrier")
    a("s_branch k1l_loop")
    a.label("k1l_tail")
    a("s_cmp_ge_u32 s39, 2")
    a("s_cbranch_scc0 k1l_st")
    a("s_waitcnt vmcnt(8)")
    a("s_barrier")
    a("s_waitcnt vmcnt(0)")
    a("s_barrier")
    a("s_endpgm")
    a.label("k1l_st")
    a("s_lshl_b32 s31, s25, 2")
    a("v_mov_b32 v5, s31")
    if "nostat" not in X: a("global_load_dword v8, v5, s[8:9] sc1")
    else: a("global_load_dword v8, v5, s[4:5]")
    a("s_waitcnt vmcnt(9)")
    a("s_barrier")
    stamp(a, 2)
    srd(a, 20, 10, WS_USED)
    a("s_lshl_b32 s33, s39, 6")
    a("v_add_u32 v6, s33, v1")
    a("v_lshlrev_b32 v7, 3, v6")
    a("v_lshlrev_b32 v6, 2, v6")
    a(f"v_add_u32 v6, {EX}, v6")
    a("s_lshl_b32 s33, s25, 10")
    a(f"s_add_u32 s33, s33, {ST_OFF}")
    a("s_cmp_lt_u32 s26, 5")
    a(f"s_cselect_b32 s37, {f32(QSCALE)}, 1.0")
    a("s_mov_b32 s27, 0")
    a("s_waitcnt vmcnt(1)")
    a("s_barrier")
    a.label("k1l_poll")
    a("s_waitcnt vmcnt(0)")
    a("v_readfirstlane_b32 s31, v8")
    a("s_add_u32 s27, s27, 1")
    a("s_cmp_lg_u32 s31, 0")
    a("s_cbranch_scc1 k1l_go")
    a("s_cmp_ge_u32 s27, 0x20000")
    a("s_cbranch_scc1 k1l_go")
    a("s_sleep 2")
    a("global_load_dword v8, v5, s[8:9] sc1")
    a("s_branch k1l_poll")
    a.label("k1l_go")
    stamp(a, 4)
    a("buffer_load_dwordx2 v[10:11], v7, s[20:23], s33 offen sc1")
    a("s_waitcnt vmcnt(0)")
    a("v_rcp_f32 v11, v11")
    a("v_lshrrev_b32 v9, 16, v10")
    a("v_or_b32 v10, v10, v9")
    a("v_mul_f32 v11, s37, v11")
    a("ds_write_b32 v6, v10")
    a("ds_write_b32 v6, v11 offset:512")
    a("s_waitcnt lgkmcnt(0)")
    stamp(a, 5)
    a("s_barrier")
    stamp(a, 3)
    stamp_end(a, 0, 2)
    a("s_endpgm")

def router(a):
    a.label("k1_router")
    a("s_load_dwordx2 s[6:7], s[0:1], 32")
    a("v_and_b32 v3, 15, v1")
    a("v_lshlrev_b32 v4, 4, v3")
    a("v_lshrrev_b32 v5, 4, v1")
    a("v_mul_u32_u24 v5, 1280, v5")
    a("v_add_u32 v5, v5, v4")
    a("s_lshl_b32 s28, s25, 3")
    a("s_add_u32 s28, s28, s24")
    a("s_mul_i32 s28, s28, 20480")
    a("s_waitcnt lgkmcnt(0)")
    srd(a, 12, 4, X_BYTES)
    srd(a, 16, 6, WR_BYTES)
    def xl(g):
        for i in range(5):
            a(f"buffer_load_dwordx4 {vr(44+20*g+4*i,4)}, v5, s[12:15], s28 offen offset:{i*256}")
        a("s_addk_i32 s28, 5120")
    xl(0)
    xl(1)
    srd(a, 20, 10, WS_USED)
    a("s_mov_b32 s34, 0x3f803f80")
    a("s_mov_b32 s40, 0x00010001")
    a("s_mov_b32 s41, 0x00010001")
    for r in (9, 10, 11, 12): a(f"v_mov_b32 v{r}, 0")
    stamp(a, 3)
    for g in range(4):
        for r in (6, 7, 8, 13): a(f"v_mov_b32 v{r}, 0")
        a("s_waitcnt vmcnt(5)")
        if g < 2: xl(g + 2)
        if g == 2:
            for i in range(5):
                a(f"buffer_load_dwordx4 {vr(24+4*i,4)}, v4, s[16:19], 0 offen offset:{i*256}")
        if g == 0: stamp(a, 4)
        for r in range(0, 20, 2):
            x = 44 + 20 * g + r
            a(f"v_dot2c_f32_bf16 v6, s34, v{x}")
            a(f"v_dot2c_f32_bf16 v7, v{x}, v{x}")
            a(f"v_dot2c_f32_bf16 v8, s34, v{x+1}")
            a(f"v_dot2c_f32_bf16 v13, v{x+1}, v{x+1}")
        a("s_nop 1")
        a("v_add_f32 v6, v6, v8")
        a("s_nop 0")
        a("v_add_f32 v7, v7, v13")
        for sh in (8, 4, 2, 1):
            a("s_nop 0")
            for r in (6, 7):
                a(f"v_add_f32_dpp v{r}, v{r}, v{r} row_ror:{sh} row_mask:0xf bank_mask:0xf")
        a("v_cndmask_b32 v10, v10, v6, s[40:41]")
        a("v_cndmask_b32 v11, v11, v7, s[40:41]")
        if g < 3: a("s_lshl_b64 s[40:41], s[40:41], 1")
    stamp(a, 5)
    stats_math(a, 10, 11, 14, 15, 16)
    a("v_and_b32 v14, 0xffff0000, v14")
    a("v_lshrrev_b32 v17, 4, v1")
    a("v_lshl_add_u32 v17, v3, 2, v17")
    a("s_lshl_b32 s31, s24, 4")
    a("v_add_u32 v17, s31, v17")
    a("s_lshl_b32 s31, s25, 7")
    a("v_add_u32 v18, s31, v17")
    a("v_lshlrev_b32 v21, 3, v18")
    a("s_mov_b32 s42, 0x000f000f")
    a("s_mov_b32 s43, 0x000f000f")
    a("s_mov_b64 exec, s[42:43]")
    a(f"s_mov_b32 s31, {ST_OFF}")
    a("buffer_store_dwordx2 v[14:15], v21, s[20:23], s31 offen sc1")
    a("s_mov_b64 exec, -1")
    a("s_waitcnt vmcnt(1)")
    for r in (6, 7, 8, 13): a(f"v_mov_b32 v{r}, 0")
    for r in range(20):
        for g, ac in enumerate((6, 7, 8, 13)):
            a(f"v_dot2c_f32_bf16 v{ac}, v{24+r}, v{44+20*g+r}")
        a(f"v_dot2c_f32_bf16 v9, s34, v{24+r}")
    a("s_mov_b32 s40, 0x00010001")
    a("s_mov_b32 s41, 0x00010001")
    a("s_nop 0")
    for sh in (8, 4, 2, 1):
        for r in (6, 7, 8, 13, 9):
            a(f"v_add_f32_dpp v{r}, v{r}, v{r} row_ror:{sh} row_mask:0xf bank_mask:0xf")
    for ac in (6, 7, 8, 13):
        a(f"v_cndmask_b32 v12, v12, v{ac}, s[40:41]")
        a("s_lshl_b64 s[40:41], s[40:41], 1")
    a("s_mov_b64 exec, s[42:43]")
    a("v_rcp_f32 v16, v15")
    a("v_fma_f32 v12, -v14, v9, v12")
    a("v_mul_f32 v12, v12, v16")
    a("v_cvt_pk_bf16_f32 v12, v12, v12")
    a("v_ashrrev_i32 v13, 31, v12")
    a("v_or_b32 v13, 0x80000000, v13")
    a("v_xor_b32 v12, v12, v13")
    a("v_and_b32 v12, 0xffff0000, v12")
    a("v_sub_u32 v19, 2047, v18")
    a("v_lshl_or_b32 v12, v19, 3, v12")
    a("v_lshlrev_b32 v19, 2, v17")
    a("v_lshlrev_b32 v20, 3, v17")
    a("ds_write_b32 v19, v12")
    a("ds_write_b64 v20, v[14:15] offset:512")
    a("s_mov_b64 exec, -1")
    a("v_lshlrev_b32 v2, 3, v1")
    a("s_waitcnt vmcnt(0) lgkmcnt(0)")
    a("s_barrier")
    a("ds_read_b64 v[6:7], v2")
    stamp(a, 6)
    a("s_cmp_lg_u32 s24, 0")
    a("s_cbranch_scc1 k1r_nf")
    a("s_lshl_b32 s31, s25, 2")
    a("v_mov_b32 v4, s31")
    a("v_mov_b32 v5, 1")
    a("s_mov_b64 exec, 1")
    a("global_store_dword v4, v5, s[8:9] sc1")
    a("s_mov_b64 exec, -1")
    a.label("k1r_nf")
    a("s_cmp_ge_u32 s24, 5")
    a("s_cbranch_scc1 k1r_nz")
    a("v_lshlrev_b32 v4, 4, v0")
    for r in range(4): a(f"v_mov_b32 v{124+r}, 0")
    a("s_mul_i32 s31, s25, 5120")
    a(f"s_add_u32 s31, s31, {PART_OFF}")
    a("buffer_store_dwordx4 v[124:127], v4, s[20:23], s31 offen")
    a.label("k1r_nz")
    a("s_cmp_lg_u32 s24, 5")
    a("s_cbranch_scc1 k1r_nc")
    a("v_lshlrev_b32 v4, 4, v1")
    for r in range(4): a(f"v_mov_b32 v{124+r}, 0")
    a("s_lshl_b32 s31, s25, 10")
    a(f"s_add_u32 s31, s31, {CNT_OFF}")
    a("buffer_store_dwordx4 v[124:127], v4, s[20:23], s31 offen")
    a.label("k1r_nc")
    a("s_load_dwordx2 s[48:49], s[0:1], 16")
    a("v_mul_u32_u24 v22, 6554, v0")
    a("v_lshrrev_b32 v22, 16, v22")
    a("v_mul_u32_u24 v23, 10, v22")
    a("v_sub_u32 v23, v0, v23")
    a("v_lshlrev_b32 v23, 4, v23")
    a("v_lshrrev_b32 v4, 3, v22")
    a("v_mul_u32_u24 v4, 160, v4")
    a("v_and_b32 v22, 7, v22")
    a("v_mul_u32_u24 v22, 0x19000, v22")
    a("v_add3_u32 v23, v23, v4, v22")
    a("v_lshlrev_b32 v22, 4, v0")
    a(f"s_mov_b32 s50, {WO_BYTES}")
    a("s_mov_b32 s51, 0x20000")
    a("s_mul_i32 s31, s25, 51200")
    a("s_waitcnt lgkmcnt(0)")
    a("s_cmp_ge_u32 s24, 5")
    a("s_cbranch_scc1 k1r_nw")
    for i in range(10):
        a(f"buffer_load_dwordx4 {vr(128+4*i,4)}, v22, s[48:51], s31 offen")
        if i < 9: a("s_addk_i32 s31, 5120")
    a.label("k1r_nw")
    if "notlb" not in X:
        a("s_lshl_b32 s31, s24, 2")
        a("s_lshr_b32 s31, 0x765a8aaa, s31")
        a("s_and_b32 s31, s31, 15")
        a("s_lshl_b32 s31, s31, 3")
        a("s_load_dwordx2 s[44:45], s[0:1], s31")
        a(f"s_mov_b32 s46, {WG_BYTES}")
        a("s_cmp_eq_u32 s24, 3")
        a(f"s_cselect_b32 s46, {X_BYTES}, s46")
        a("s_cmp_lt_u32 s24, 3")
        a(f"s_cselect_b32 s46, {WS_USED}, s46")
        a("s_cselect_b32 s31, s24, 0")
        a("s_lshl_b32 s31, s31, 22")
        a("s_mov_b32 s47, 0x20000")
        a("v_lshlrev_b32 v4, 16, v1")
        a("s_waitcnt lgkmcnt(0)")
        a("s_cmp_lg_u32 s24, 4")
        a("s_cbranch_scc1 " + ("k1r_tdone" if "codeonly" in X else "k1r_tgo"))
        a("s_getpc_b64 s[44:45]")
        a.label("k1r_tpc")
        a("s_add_u32 s44, s44, attn_kernel-k1r_tpc")
        a("s_addc_u32 s45, s45, 0")
        a("s_mov_b32 s46, code_end-attn_kernel")
        a("v_lshlrev_b32 v4, 7, v1")
        a.label("k1r_tgo")
        a("buffer_load_dword v168, v4, s[44:47], s31 offen")
        a("s_cmp_lg_u32 s24, 4")
        a("s_cbranch_scc1 k1r_tdone")
        a("s_movk_i32 s31, 0x2000")
        a("buffer_load_dword v168, v4, s[44:47], s31 offen")
        a.label("k1r_tdone")
    a("v_mov_b32 v9, 0")
    a("s_mov_b32 s27, 0")
    a("s_waitcnt lgkmcnt(0)")
    a.label("k1r_top")
    top8_rounds(a, 6, 7, 8, 31)
    a("s_or_b32 s33, s31, s27")
    a("s_mov_b32 m0, s27")
    a("v_cmp_ne_u32 s[40:41], s31, v6")
    a("v_cmp_ne_u32 s[42:43], s31, v7")
    a("v_writelane_b32 v9, s33, m0")
    a("s_add_u32 s27, s27, 1")
    a("v_cndmask_b32 v6, 0, v6, s[40:41]")
    a("v_cndmask_b32 v7, 0, v7, s[42:43]")
    a("s_cmp_le_u32 s27, s24")
    a("s_cbranch_scc1 k1r_top")
    a("s_lshl_b32 s35, s25, 3")
    a("s_add_u32 s35, s35, s24")
    a("s_bfe_u32 s31, s33, 0xb0003")
    a("s_sub_u32 s31, 2047, s31")
    a("s_and_b32 s36, s31, 127")
    a("s_lshl_b32 s36, s36, 3")
    a("v_mov_b32 v4, s36")
    a("ds_read_b64 v[14:15], v4 offset:512")
    a("s_mul_i32 s31, s31, 1280")
    a("v_lshlrev_b32 v6, 4, v1")
    a("v_lshlrev_b32 v7, 2, v1")
    a("buffer_load_dwordx4 v[32:35], v6, s[12:15], s31 offen")
    a("buffer_load_dword v36, v7, s[12:15], s31 offen offset:1024")
    a("s_lshl_b32 s36, s35, 2")
    a(f"s_add_u32 s36, s36, {CAND_OFF}")
    a("v_mov_b32 v4, 0")
    a("v_mov_b32 v5, s33")
    a("s_mov_b64 exec, 1")
    a("buffer_store_dword v5, v4, s[20:23], s36 offen")
    a("s_mov_b64 exec, -1")
    a("s_mul_i32 s35, s35, 1280")
    a(f"s_add_u32 s35, s35, {XS_OFF}")
    a("s_waitcnt lgkmcnt(0)")
    a("v_rcp_f32 v16, v15")
    a("v_sub_f32 v14, 0, v14")
    a("s_waitcnt vmcnt(1)")
    a("s_cmp_ge_u32 s24, 5")
    a("s_cbranch_scc1 k1r_nw2")
    a("s_mul_i32 s31, s25, 5120")
    a(f"s_add_u32 s31, s31, {WOP_OFF}")
    a("s_add_u32 s36, s31, 2560")
    a("s_lshr_b32 s37, s25, 2")
    a("s_mul_i32 s37, s37, 5120")
    a("s_and_b32 s38, s25, 3")
    a("s_mul_i32 s38, s38, 640")
    a("s_add_u32 s37, s37, s38")
    a(f"s_add_u32 s37, s37, {WOP_OFF + 16*5120}")
    for i in range(10):
        e, q = divmod(i, 5)
        if q < 4: a(f"buffer_store_dwordx4 {vr(128+4*i,4)}, v23, s[20:23], s{36 if q & 1 else 31} offen offset:{(2*e+(q>>1))*640}")
        else:     a(f"buffer_store_dwordx4 {vr(128+4*i,4)}, v23, s[20:23], s37 offen offset:{e*2560}")
    a.label("k1r_nw2")
    for r in range(5):
        norm_pair(a, 32 + r, 14, 16, 18)
    a("buffer_store_dwordx4 v[32:35], v6, s[20:23], s35 offen")
    a("buffer_store_dword v36, v7, s[20:23], s35 offen offset:1024")
    stamp(a, 7)
    if STAMP: a("s_waitcnt vmcnt(0)")
    stamp_end(a, 0, 2)
    a("s_endpgm")

def gen():
    a = Asm()
    a.raw(f".globl {NAME}\n.p2align 8\n.type {NAME},@function")
    a.label(NAME)
    a("s_cmp_ge_u32 s2, 256")
    a("s_cbranch_scc1 k1_exit")
    stamp(a, 0)
    a("s_load_dwordx4 s[4:7], s[0:1], 0")
    a("s_load_dwordx4 s[8:11], s[0:1], 72")
    if "nocp" not in X:
        a("s_getpc_b64 s[40:41]")
        a("v_lshlrev_b32 v3, 7, v0")
        a("v_cmp_gt_u32 vcc, attn_kernel-qkv_kernel-1024, v3")
        a("s_and_saveexec_b64 s[42:43], vcc")
        a("s_cbranch_execz k1_ncp")
        a("global_load_dword v175, v3, s[40:41]")
        a.label("k1_ncp")
        a("s_mov_b64 exec, s[42:43]")
    a("v_lshrrev_b32 v2, 6, v0")
    a("v_and_b32 v1, 63, v0")
    a("s_and_b32 s28, s2, 7")
    a("v_readfirstlane_b32 s24, v2")
    a("s_lshr_b32 s29, s2, 3")
    a("s_lshr_b32 s30, s28, 1")
    a("s_and_b32 s28, s28, 1")
    a("s_lshl_b32 s30, s30, 2")
    a("s_cmp_lt_u32 s29, 2")
    a("s_cbranch_scc0 k1_gemm")
    a("s_lshl_b32 s28, s28, 1")
    a("s_add_u32 s25, s30, s28")
    a("s_add_u32 s25, s25, s29")
    a("s_waitcnt lgkmcnt(0)")
    a("s_branch k1_router")
    a.label("k1_exit")
    a("s_endpgm")
    a.label("k1_gemm")
    a("s_mul_i32 s28, s28, 30")
    a("s_add_u32 s28, s28, s29")
    a("s_sub_u32 s28, s28, 2")
    a("s_lshr_b32 s26, s28, 2")
    a("s_and_b32 s28, s28, 3")
    a("s_add_u32 s25, s30, s28")
    a("s_cmp_ge_u32 s24, 4")
    a("s_cbranch_scc0 k1_comp")
    loader(a)
    a.label("k1_comp")
    a("s_mov_b32 s27, 0")
    a(f"s_mov_b32 s35, {(-(NSLOT-1)*32768) & 0xffffffff}")
    a("s_mov_b32 s36, 0x8000")
    a("s_and_b32 s38, s24, 1")
    a("s_lshl_b32 s38, s38, 1")
    a("s_lshr_b32 s31, s24, 1")
    a("s_add_u32 s38, s38, s31")
    a("s_lshl_b32 s30, s31, 13")
    a("v_and_b32 v18, 31, v1")
    a("v_lshlrev_b32 v18, 7, v18")
    a("v_lshrrev_b32 v19, 5, v1")
    a("v_bfe_u32 v20, v1, 1, 3")
    a("v_xor_b32 v20, v20, v19")
    a("v_lshl_add_u32 v18, v20, 4, v18")
    a("v_add_u32 v5, s30, v18")
    for ks in range(1, 4):
        a(f"v_xor_b32 v{5+ks}, {ks<<5}, v5")
    a("v_bfe_u32 v20, v1, 2, 2")
    a("v_lshl_add_u32 v21, v19, 3, v20")
    a("v_lshlrev_b32 v21, 8, v21")
    a("v_xor_b32 v20, s38, v20")
    a("v_lshl_add_u32 v21, v20, 6, v21")
    a("v_bfe_u32 v20, v1, 4, 1")
    a("v_lshl_add_u32 v21, v20, 5, v21")
    a("v_and_b32 v20, 3, v1")
    a("v_lshl_add_u32 v21, v20, 3, v21")
    a("v_add_u32 v13, 0x4000, v21")
    a("v_xor_b32 v14, 64, v13")
    a("s_mov_b32 s40, 0x00100001")
    a("s_mov_b32 s41, 0x00100001")
    a("v_mov_b32 v24, 0x3f803f80")
    for r in range(4):
        a(f"v_mov_b32 v{16+r}, 0")
        a(f"v_cndmask_b32 v{20+r}, 0, v24, s[40:41]")
    for r in range(96, 160):
        a(f"v_mov_b32 v{r}, 0")
    a("s_waitcnt lgkmcnt(0)")
    if "pf" in X:
        srd(a, 12, 4, X_BYTES)
        srd(a, 16, 6, WQKV_BYTES)
        a("v_lshrrev_b32 v25, 5, v1")
        a("v_lshlrev_b32 v25, 6, v25")
        a("v_bfe_u32 v26, v1, 1, 4")
        a("v_add_u32 v25, v25, v26")
        a("v_mul_u32_u24 v25, 3840, v25")
        a("v_and_b32 v26, 1, v1")
        a("v_lshl_add_u32 v25, v26, 7, v25")
        a("s_lshl_b32 s31, s24, 3")
        a("s_and_b32 s33, s25, 3")
        a("s_add_u32 s31, s31, s33")
        a("s_add_u32 s31, s31, 8")
        a("s_mul_i32 s31, s31, 61440")
        a("s_lshl_b32 s33, s26, 8")
        a("s_add_u32 s31, s31, s33")
        a("buffer_load_dword v27, v25, s[16:19], s31 offen")
        a("v_and_b32 v25, 15, v1")
        a("v_mul_u32_u24 v25, 1280, v25")
        a("v_bfe_u32 v26, v1, 4, 1")
        a("v_lshl_add_u32 v25, v26, 7, v25")
        a("s_lshl_b32 s31, s25, 3")
        a("s_and_b32 s33, s26, 7")
        a("s_add_u32 s31, s31, s33")
        a("s_mul_i32 s31, s31, 20480")
        a("s_lshl_b32 s33, s24, 8")
        a("s_add_u32 s31, s31, s33")
        a("buffer_load_dword v31, v25, s[12:15], s31 offen offset:256")
    srd(a, 20, 10, WS_USED)
    a("s_cmp_ge_u32 s26, 10")
    a("s_cbranch_scc1 k1_vbody")
    gemm_body(a, False)
    a.label("k1_vbody")
    gemm_body(a, True)
    router(a)
    return a
```

```python
from common import *

NAME = "qkv_kernel"
NSLOT = 4
EX = NSLOT * 32768
LDS = EX + 2048
BLOCK = 512
ST_FLAG = os.environ.get("K1ST", "")

def dma_stage(a, fill=None):
    seq = [("s_mov_b32 m0, s30", "s_add_u32 s31, s28, 10240", "buffer_load_dwordx4 v2, s[12:15], s28 offen lds"),
           ("s_addk_i32 m0, 0x4000", "s_add_u32 s33, s29, 15360", "buffer_load_dwordx4 v4, s[16:19], s29 offen lds"),
           (f"s_addk_i32 m0, {0x400-0x4000}", "s_addk_i32 s28, 128", "buffer_load_dwordx4 v3, s[12:15], s31 offen lds"),
           ("s_addk_i32 m0, 0x4000", "s_addk_i32 s31, 10240", "buffer_load_dwordx4 v4, s[16:19], s33 offen lds"),
           (f"s_addk_i32 m0, {0x400-0x4000}", "s_addk_i32 s33, 15360", "buffer_load_dwordx4 v2, s[12:15], s31 offen lds"),
           ("s_addk_i32 m0, 0x4000", "s_addk_i32 s31, 10240", "buffer_load_dwordx4 v4, s[16:19], s33 offen lds"),
           (f"s_addk_i32 m0, {0x400-0x4000}", "s_addk_i32 s33, 15360", "buffer_load_dwordx4 v3, s[12:15], s31 offen lds"),
           ("s_addk_i32 m0, 0x4000", "s_add_u32 s29, s29, 245760", "buffer_load_dwordx4 v4, s[16:19], s33 offen lds")]
    for n, g in enumerate(seq):
        for x in g: a(x)
        if fill:
            for x in fill[n]: a(x)
    a("s_add_u32 s30, s30, 0x8000")
    a(f"s_and_b32 s30, s30, {NSLOT*32768-1}")
    a("s_add_u32 s32, s32, 1")
    a("s_cmp_eq_u32 s32, 10")
    a("s_cselect_b32 s28, s34, s28")
    a("s_cselect_b32 s29, s35, s29")

def cs_reads():
    return [f"ds_read_b128 {vr(32+4*i,4)}, v12 offset:{i*1024}" for i in range(4)] + \
           ["v_add_u32 v12, 0x8000, v12", f"v_and_b32 v12, {NSLOT*32768-1}, v12"]
def cs_ops():
    G = []
    for i in range(4):
        L = []
        for d in range(4):
            L.append(f"v_lshlrev_b32 v{24+2*d}, 16, v{32+4*i+d}")
            L.append(f"v_and_b32 v{25+2*d}, v15, v{32+4*i+d}")
        for d in range(8):
            L.append(f"v_add_f32 v{16+d}, v{16+d}, v{24+d}")
        G.append(L)
    return G

X = os.environ.get("K1X", "")
VGPR = 160
def read_list(ks):
    b = 32 + 16 * ks
    return [f"ds_read_b128 {vr(b,4)}, v{5+ks}",
            f"ds_read_b64_tr_b16 {vr(b+8,2)}, v13 offset:{ks*4096}",
            f"ds_read_b64_tr_b16 {vr(b+10,2)}, v13 offset:{ks*4096+1024}",
            f"ds_read_b64_tr_b16 {vr(b+12,2)}, v14 offset:{ks*4096}",
            f"ds_read_b64_tr_b16 {vr(b+14,2)}, v14 offset:{ks*4096+1024}",
            f"ds_read_b128 {vr(b+4,4)}, v{5+ks} offset:4096"]

def acc(i, j):
    return 96 + (2 * i + j) * 16

def mm(a, ks, vmode, extra=None):
    b = 32 + 16 * ks
    rd = read_list((ks + 2) % 4)
    rds = [rd[0:2], rd[2:4], rd[4:5], rd[5:6]]
    n = 0
    for i in range(2):
        for j in range(2):
            Xr = vr(b + 4 * i, 4); W = vr(b + 8 + 4 * j, 4); C = vr(acc(i, j), 16)
            if "nomm" in X: pass
            elif vmode: a(f"v_mfma_f32_32x32x16_bf16 {C}, {Xr}, {W}, {C}")
            else:     a(f"v_mfma_f32_32x32x16_bf16 {C}, {W}, {Xr}, {C}")
            for r in rds[n]:
                if "nox" in X and "b128" in r: r = "s_nop 0"
                if "now" in X and "tr_b16" in r: r = "s_nop 0"
                a(r)
            if extra:
                for e in extra[n]: a(e)
            n += 1
    if "nocs" not in X: a(f"v_mfma_f32_16x16x32_bf16 v[16:19], v[20:23], {vr(b+8,4)}, v[16:19]")

def stats_math(a, vsum, vsq, vmp, vsd, t0):
    a(f"v_mul_f32 v{vsum}, {f32(1.0/640)}, v{vsum}")
    a(f"v_mul_f32 v{vsq}, {f32(1.0/640)}, v{vsq}")
    a(f"v_fma_f32 v{vsq}, -v{vsum}, v{vsum}, v{vsq}")
    a(f"v_max_f32 v{vsq}, 0, v{vsq}")
    a(f"v_cvt_pk_bf16_f32 v{vmp}, v{vsum}, v{vsum}")
    a(f"v_cvt_pk_bf16_f32 v{t0}, v{vsq}, v{vsq}")
    a(f"v_and_b32 v{t0}, 0xffff0000, v{t0}")
    a(f"v_add_f32 v{t0}, {f32(1e-5)}, v{t0}")
    a(f"v_cvt_pk_bf16_f32 v{t0}, v{t0}, v{t0}")
    a(f"v_and_b32 v{t0}, 0xffff0000, v{t0}")
    a(f"v_sqrt_f32 v{t0}, v{t0}")
    a("s_nop 0")
    a(f"v_cvt_pk_bf16_f32 v{t0}, v{t0}, v{t0}")
    a(f"v_and_b32 v{vsd}, 0xffff0000, v{t0}")

def gemm_body(a, vmode):
    L = "k1v" if vmode else "k1q"
    stamp(a, 3)
    a("s_barrier")
    stamp(a, 4)
    for r in read_list(0) + read_list(1): a(r)
    a.label(f"{L}_loop")
    a("s_and_b32 s32, s27, 3")
    a("s_cmp_eq_u32 s32, 3")
    a("s_cselect_b32 s33, s35, s36")
    a("s_waitcnt lgkmcnt(6)")
    mm(a, 0, vmode, extra=[[], [], ["v_add_u32 v5, s33, v5"], ["v_add_u32 v6, s33, v6"]])
    a("s_waitcnt lgkmcnt(6)")
    mm(a, 1, vmode, extra=[[], [], ["v_add_u32 v7, s33, v7", "v_add_u32 v13, s33, v13"], ["v_add_u32 v14, s33, v14", "v_add_u32 v8, s33, v8"]])
    a("s_add_u32 s27, s27, 1")
    a("s_cmp_eq_u32 s27, 10")
    a("s_waitcnt lgkmcnt(6)")
    a(f"s_cbranch_scc1 {L}_nb")
    a("s_barrier")
    a.label(f"{L}_nb")
    mm(a, 2, vmode)
    a("s_waitcnt lgkmcnt(6)")
    mm(a, 3, vmode)
    a(f"s_cbranch_scc0 {L}_loop")
    stamp(a, 5)
    a("s_waitcnt vmcnt(0)")
    a("v_and_b32 v24, 31, v1")
    a("v_lshlrev_b32 v24, 2, v24")
    a("s_lshr_b32 s31, s24, 1")
    a("s_lshl_b32 s31, s31, 8")
    a(f"s_add_u32 s31, s31, {EX}")
    a("v_add_u32 v9, s31, v24")
    a("s_lshl_b32 s33, s38, 8")
    a(f"s_add_u32 s33, s33, {EX+1024}")
    a("v_lshl_add_u32 v10, v1, 2, s33")
    if vmode:
        a("v_lshrrev_b32 v11, 5, v1")
        a("v_lshl_add_u32 v11, v11, 4, s31")
    a("v_cvt_pk_bf16_f32 v26, v16, v16")
    a("v_mov_b32 v23, 0")
    a("v_and_b32 v26, 0xffff0000, v26")
    a("v_mov_b32 v25, 0")
    a("v_sub_f32 v16, v16, v26")
    a("v_mov_b32 v27, 0")
    a("v_cvt_pk_bf16_f32 v26, -v26, -v16")
    a("v_mov_b32 v29, 0")
    a("ds_write_b32 v10, v26")
    a("v_xor_b32 v10, 256, v10")
    a("s_lshl_b32 s42, s25, 2")
    a("s_and_b32 s43, s24, 2")
    a("s_waitcnt lgkmcnt(0)")
    a("s_barrier")
    a("ds_read_b32 v22, v9")
    a("ds_read_b32 v24, v9 offset:128")
    a("ds_read_b32 v28, v10")
    if not vmode:
        a("ds_read_b32 v30, v9 offset:512")
        a("ds_read_b32 v20, v9 offset:640")
        a("s_waitcnt lgkmcnt(2)")
    else:
        for g in range(8):
            a(f"ds_read_b128 {vr(32+4*g,4)}, v11 offset:{512+32*g}")
        a("s_waitcnt lgkmcnt(8)")
    def corr(i, j):
        M = vr(22 + 2 * i, 2); CS = vr(26 + 2 * j, 2); C = vr(acc(i, j), 16)
        if vmode: a(f"v_mfma_f32_32x32x8_bf16 {C}, {M}, {CS}, {C}")
        else:     a(f"v_mfma_f32_32x32x8_bf16 {C}, {CS}, {M}, {C}")
    corr(0, 0); corr(1, 0); corr(0, 1); corr(1, 1)
    if not vmode:
        a("v_lshrrev_b32 v18, 5, v1")
        a("v_lshlrev_b32 v18, 8, v18")
        a("v_and_b32 v19, 31, v1")
        a("v_lshl_add_u32 v18, v19, 3, v18")
    else:
        a("v_lshrrev_b32 v18, 5, v1")
        a("v_mul_u32_u24 v18, 10240, v18")
        a("v_and_b32 v19, 31, v1")
        a("v_lshl_add_u32 v18, v19, 4, v18")
    a("s_add_u32 s42, s42, s43")
    a(f"s_mul_i32 s42, s42, {TILE_B}")
    a(f"s_add_u32 s43, s42, {TILE_B}")
    a("s_lshl_b32 s44, s26, 2")
    a("s_add_u32 s44, s44, s38")
    a("s_xor_b32 s45, s44, 1")
    a("s_waitcnt lgkmcnt(0)")
    if not vmode:
        a("s_lshl_b32 s44, s44, 11")
        a("s_lshl_b32 s45, s45, 11")
    else:
        a("s_lshl_b32 s44, s44, 9")
        a("s_lshl_b32 s45, s45, 9")
        a(f"s_add_u32 s44, s44, {81920 - 40*512}")
        a(f"s_add_u32 s45, s45, {81920 - 40*512}")
    stamp(a, 6)
    for j in range(2):
        for i in range(2):
            c = acc(i, j)
            a(f"s_add_u32 s46, s{42+i}, s{44+j}")
            if vmode: a("s_add_u32 s47, s46, 20480")
            for p in range(8):
                if vmode:
                    a(f"v_pk_mul_f32 {vr(c+2*p,2)}, {vr(c+2*p,2)}, {vr(32+16*i+2*p,2)}")
                else:
                    rs = 30 if i == 0 else 20
                    a(f"v_pk_mul_f32 {vr(c+2*p,2)}, {vr(c+2*p,2)}, {vr(rs,2)} op_sel_hi:[1,0]")
            for p in range(8):
                a(f"v_cvt_pk_bf16_f32 v{c+p}, v{c+2*p}, v{c+2*p+1}")
            if vmode:
                a(f"buffer_store_dwordx4 {vr(c,4)}, v18, s[20:23], s46 offen {ST_FLAG}")
                a(f"buffer_store_dwordx4 {vr(c+4,4)}, v18, s[20:23], s47 offen {ST_FLAG}")
            else:
                for g in range(4):
                    a(f"buffer_store_dwordx2 {vr(c+2*g,2)}, v18, s[20:23], s46 offen offset:{g*512} {ST_FLAG}")
    stamp(a, 7)
    if STAMP: a("s_waitcnt vmcnt(0)")
    stamp_end(a, 0, 2)
    a("s_endpgm")

def loader(a):
    a.label("k1_loader")
    a("s_load_dwordx2 s[48:49], s[0:1], 16")
    a("s_sub_u32 s39, s24, 4")
    a("s_sub_u32 s36, s2, 16")
    a("v_lshrrev_b32 v5, 3, v1")
    a("v_mul_u32_u24 v5, 1280, v5")
    a("v_lshrrev_b32 v6, 4, v1")
    a("v_and_b32 v7, 7, v1")
    a("v_xor_b32 v7, v7, v6")
    a("v_lshl_add_u32 v2, v7, 4, v5")
    a("v_xor_b32 v3, 64, v2")
    a("v_mul_u32_u24 v5, 3840, v6")
    a("v_lshlrev_b32 v7, 2, v6")
    a("v_and_b32 v8, 15, v1")
    a("v_xor_b32 v7, v7, v8")
    a("v_lshl_add_u32 v4, v7, 4, v5")
    a("s_lshl_b32 s34, s25, 2")
    a("s_add_u32 s34, s34, s39")
    a("s_mul_i32 s34, s34, 40960")
    a("s_mul_i32 s35, s39, 61440")
    a("s_lshl_b32 s31, s26, 8")
    a("s_add_u32 s35, s35, s31")
    a("s_and_b32 s32, s25, 3")
    a("s_mul_i32 s32, s32, 3")
    a("s_add_u32 s32, s32, s26")
    a("s_sub_u32 s31, s32, 10")
    a("s_cselect_b32 s32, s32, s31")
    a("s_sub_u32 s31, s32, 10")
    a("s_cselect_b32 s32, s32, s31")
    if "norot" in X: a("s_mov_b32 s32, 0")
    PH = {"p3": [0, 3, 7], "p4": [0, 2, 5, 7], "p5": [0, 2, 4, 6, 8], "p2": [0, 5]}
    for k, tab in PH.items():
        if k in X:
            n = len(tab)
            a("s_and_b32 s32, s25, 3")
            a("s_add_u32 s32, s32, s26")
            a(f"s_mul_i32 s31, s32, {(256 + n - 1) // n}")
            a("s_lshr_b32 s31, s31, 8")
            a(f"s_mul_i32 s31, s31, {n}")
            a("s_sub_u32 s32, s32, s31")
            a("s_lshl_b32 s32, s32, 2")
            a(f"s_lshr_b32 s32, {hex(sum(v << (4*i) for i, v in enumerate(tab)))}, s32")
            a("s_and_b32 s32, s32, 15")
    a("s_lshl_b32 s28, s32, 7")
    a("s_add_u32 s28, s28, s34")
    a("s_mul_i32 s29, s32, 245760")
    a("s_add_u32 s29, s29, s35")
    a("s_lshl_b32 s30, s39, 12")
    a("s_mov_b32 s27, 0")
    a("s_waitcnt lgkmcnt(0)")
    srd(a, 12, 4, X_BYTES)
    srd(a, 16, 6, WQKV_BYTES)
    stamp(a, 1)
    a.label("k1l_loop")
    dma_stage(a)
    a("s_add_u32 s27, s27, 1")
    a("s_cmp_eq_u32 s27, 1")
    a("s_cbranch_scc1 k1l_loop")
    a("s_cmp_eq_u32 s27, 10")
    a("s_cbranch_scc1 k1l_tail")
    a("s_waitcnt vmcnt(8)")
    a("s_barrier")
    a("s_cmp_lg_u32 s27, 6")
    a("s_cbranch_scc1 k1l_loop")
    a("s_min_u32 s31, s36, 159")
    a("s_lshl_b32 s31, s31, 2")
    a("s_add_u32 s31, s31, s39")
    a("s_mul_i32 s31, s31, 1280")
    a("s_add_u32 s40, s48, s31")
    a("s_addc_u32 s41, s49, 0")
    for i in range(10): a(f"s_load_dword s{52+i}, s[40:41], {i*128}")
    a("s_branch k1l_loop")
    a.label("k1l_tail")
    a("s_cmp_ge_u32 s39, 2")
    a("s_cbranch_scc0 k1l_st")
    srd(a, 20, 10, WS_USED)
    a("v_and_b32 v5, 127, v0")
    a("s_cmp_ge_u32 s36, 160")
    a("s_cbranch_scc1 k1l_hk2")
    a(f"s_mov_b32 s50, {WO_BYTES}")
    a("s_mov_b32 s51, 0x20000")
    a("s_mul_i32 s31, s36, 5120")
    a("v_lshlrev_b32 v6, 4, v5")
    a("buffer_load_dwordx4 v[16:19], v6, s[48:51], s31 offen")
    a("buffer_load_dwordx4 v[20:23], v6, s[48:51], s31 offen offset:2048")
    a("s_addk_i32 s31, 4096")
    a("buffer_load_dwordx4 v[24:27], v6, s[48:51], s31 offen")
    for i in range(3):
        a(f"v_add_u32 v6, {128*i}, v5")
        a("v_mul_u32_u24 v7, 6554, v6")
        a("v_lshrrev_b32 v7, 16, v7")
        a("v_mul_u32_u24 v8, 10, v7")
        a("v_sub_u32 v8, v6, v8")
        a("v_lshlrev_b32 v8, 4, v8")
        a("v_lshrrev_b32 v9, 3, v7")
        a("v_mul_u32_u24 v9, 160, v9")
        a("v_and_b32 v7, 7, v7")
        a("v_mul_u32_u24 v7, 0x19000, v7")
        a(f"v_add3_u32 v{10+i}, v8, v9, v7")
    a("s_mul_i32 s33, s36, 205")
    a("s_lshr_b32 s33, s33, 10")
    a("s_mul_i32 s31, s33, 5")
    a("s_sub_u32 s31, s36, s31")
    a("s_lshl_b32 s37, s33, 2")
    a("s_add_u32 s37, s37, s31")
    a("s_add_u32 s33, s33, 128")
    a("s_cmp_eq_u32 s31, 4")
    a("s_cselect_b32 s37, s33, s37")
    a("s_lshr_b32 s31, s37, 3")
    a("s_mul_i32 s31, s31, 5120")
    a("s_bfe_u32 s33, s37, 0x20001")
    a("s_mul_i32 s33, s33, 640")
    a("s_add_u32 s31, s31, s33")
    a("s_and_b32 s33, s37, 1")
    a("s_mul_i32 s33, s33, 2560")
    a("s_add_u32 s31, s31, s33")
    a(f"s_add_u32 s31, s31, {WOP_OFF}")
    a("s_waitcnt vmcnt(11)")
    a("s_barrier")
    a("s_waitcnt vmcnt(3)")
    a("s_barrier")
    a("s_waitcnt vmcnt(0)")
    a("buffer_store_dwordx4 v[16:19], v10, s[20:23], s31 offen")
    a("buffer_store_dwordx4 v[20:23], v11, s[20:23], s31 offen")
    a("s_cmp_eq_u32 s39, 3")
    a("s_cbranch_scc1 k1_exit")
    a("buffer_store_dwordx4 v[24:27], v12, s[20:23], s31 offen")
    a("s_endpgm")
    a.label("k1l_hk2")
    a("s_waitcnt vmcnt(8)")
    a("s_barrier")
    a("s_waitcnt vmcnt(0)")
    a("s_barrier")
    a("s_cmp_ge_u32 s36, 232")
    a("s_cbranch_scc1 k1l_hk3")
    a("s_cmp_ge_u32 s36, 208")
    a("s_cbranch_scc1 k1_exit")
    for r in range(4): a(f"v_mov_b32 v{16+r}, 0")
    a("v_lshlrev_b32 v6, 4, v5")
    a("s_lshl_b32 s31, s36, 11")
    a(f"s_add_u32 s31, s31, {CNT_OFF - 160*2048}")
    a("buffer_store_dwordx4 v[16:19], v6, s[20:23], s31 offen")
    a("s_endpgm")
    a.label("k1l_hk3")
    a("s_getpc_b64 s[44:45]")
    a.label("k1l_pc")
    a("s_add_u32 s44, s44, attn_kernel-k1l_pc")
    a("s_addc_u32 s45, s45, 0")
    a("s_mov_b32 s46, code_end-attn_kernel")
    a("s_mov_b32 s47, 0x20000")
    a("v_lshlrev_b32 v6, 7, v5")
    a("buffer_load_dword v7, v6, s[44:47], 0 offen")
    a("s_endpgm")
    a.label("k1l_st")
    a("s_lshl_b32 s31, s25, 2")
    a("v_mov_b32 v5, s31")
    if "nostat" not in X: a("global_load_dword v8, v5, s[8:9] sc1")
    else: a("global_load_dword v8, v5, s[4:5]")
    a("s_waitcnt vmcnt(9)")
    a("s_barrier")
    stamp(a, 2)
    srd(a, 20, 10, WS_USED)
    a("s_lshl_b32 s33, s39, 6")
    a("v_add_u32 v6, s33, v1")
    a("v_lshlrev_b32 v7, 3, v6")
    a("v_lshlrev_b32 v6, 2, v6")
    a(f"v_add_u32 v6, {EX}, v6")
    a("s_lshl_b32 s33, s25, 10")
    a(f"s_add_u32 s33, s33, {ST_OFF}")
    a("s_cmp_lt_u32 s26, 5")
    a(f"s_cselect_b32 s37, {f32(QSCALE)}, 1.0")
    a("s_mov_b32 s27, 0")
    a("s_waitcnt vmcnt(1)")
    a("s_barrier")
    a.label("k1l_poll")
    a("s_waitcnt vmcnt(0)")
    a("v_readfirstlane_b32 s31, v8")
    a("s_add_u32 s27, s27, 1")
    a("s_cmp_lg_u32 s31, 0")
    a("s_cbranch_scc1 k1l_go")
    a("s_cmp_ge_u32 s27, 0x20000")
    a("s_cbranch_scc1 k1l_go")
    a("s_sleep 2")
    a("global_load_dword v8, v5, s[8:9] sc1")
    a("s_branch k1l_poll")
    a.label("k1l_go")
    stamp(a, 4)
    a("buffer_load_dwordx2 v[10:11], v7, s[20:23], s33 offen sc1")
    a("s_waitcnt vmcnt(0)")
    a("v_rcp_f32 v11, v11")
    a("v_lshrrev_b32 v9, 16, v10")
    a("v_or_b32 v10, v10, v9")
    a("v_mul_f32 v11, s37, v11")
    a("ds_write_b32 v6, v10")
    a("ds_write_b32 v6, v11 offset:512")
    a("s_waitcnt lgkmcnt(0)")
    stamp(a, 5)
    a("s_barrier")
    stamp(a, 3)
    stamp_end(a, 0, 2)
    a("s_endpgm")

def router(a):
    a.label("k1_router")
    a("s_load_dwordx2 s[6:7], s[0:1], 32")
    a("v_and_b32 v3, 15, v1")
    a("v_lshlrev_b32 v4, 4, v3")
    a("v_lshrrev_b32 v5, 4, v1")
    a("v_mul_u32_u24 v5, 1280, v5")
    a("v_add_u32 v5, v5, v4")
    a("s_lshl_b32 s28, s25, 3")
    a("s_add_u32 s28, s28, s24")
    a("s_mul_i32 s28, s28, 20480")
    a("s_waitcnt lgkmcnt(0)")
    srd(a, 12, 4, X_BYTES)
    srd(a, 16, 6, WR_BYTES)
    def xl(g):
        for i in range(5):
            a(f"buffer_load_dwordx4 {vr(44+20*g+4*i,4)}, v5, s[12:15], s28 offen offset:{i*256}")
        a("s_addk_i32 s28, 5120")
    xl(0)
    xl(1)
    srd(a, 20, 10, WS_USED)
    a("s_mov_b32 s34, 0x3f803f80")
    a("s_mov_b32 s40, 0x00010001")
    a("s_mov_b32 s41, 0x00010001")
    for r in (9, 10, 11, 12): a(f"v_mov_b32 v{r}, 0")
    stamp(a, 3)
    for g in range(4):
        for r in (6, 7, 8, 13): a(f"v_mov_b32 v{r}, 0")
        a("s_waitcnt vmcnt(5)")
        if g < 2: xl(g + 2)
        if g == 2:
            for i in range(5):
                a(f"buffer_load_dwordx4 {vr(24+4*i,4)}, v4, s[16:19], 0 offen offset:{i*256}")
        if g == 0: stamp(a, 4)
        for r in range(0, 20, 2):
            x = 44 + 20 * g + r
            a(f"v_dot2c_f32_bf16 v6, s34, v{x}")
            a(f"v_dot2c_f32_bf16 v7, v{x}, v{x}")
            a(f"v_dot2c_f32_bf16 v8, s34, v{x+1}")
            a(f"v_dot2c_f32_bf16 v13, v{x+1}, v{x+1}")
        a("s_nop 1")
        a("v_add_f32 v6, v6, v8")
        a("s_nop 0")
        a("v_add_f32 v7, v7, v13")
        for sh in (8, 4, 2, 1):
            a("s_nop 0")
            for r in (6, 7):
                a(f"v_add_f32_dpp v{r}, v{r}, v{r} row_ror:{sh} row_mask:0xf bank_mask:0xf")
        a("v_cndmask_b32 v10, v10, v6, s[40:41]")
        a("v_cndmask_b32 v11, v11, v7, s[40:41]")
        if g < 3: a("s_lshl_b64 s[40:41], s[40:41], 1")
    stamp(a, 5)
    stats_math(a, 10, 11, 14, 15, 16)
    a("v_and_b32 v14, 0xffff0000, v14")
    a("v_lshrrev_b32 v17, 4, v1")
    a("v_lshl_add_u32 v17, v3, 2, v17")
    a("s_lshl_b32 s31, s24, 4")
    a("v_add_u32 v17, s31, v17")
    a("s_lshl_b32 s31, s25, 7")
    a("v_add_u32 v18, s31, v17")
    a("v_lshlrev_b32 v21, 3, v18")
    a("s_mov_b32 s42, 0x000f000f")
    a("s_mov_b32 s43, 0x000f000f")
    a("s_mov_b64 exec, s[42:43]")
    a(f"s_mov_b32 s31, {ST_OFF}")
    a("buffer_store_dwordx2 v[14:15], v21, s[20:23], s31 offen sc1")
    a("s_mov_b64 exec, -1")
    a("s_waitcnt vmcnt(0)")
    a("s_barrier")
    a("s_cmp_lg_u32 s24, 0")
    a("s_cbranch_scc1 k1r_nf")
    a("s_lshl_b32 s31, s25, 2")
    a("v_mov_b32 v4, s31")
    a("v_mov_b32 v5, 1")
    a("s_mov_b64 exec, 1")
    a("global_store_dword v4, v5, s[8:9] sc1")
    a("s_mov_b64 exec, -1")
    a.label("k1r_nf")
    stamp(a, 6)
    for r in (6, 7, 8, 13): a(f"v_mov_b32 v{r}, 0")
    for r in range(20):
        for g, ac in enumerate((6, 7, 8, 13)):
            a(f"v_dot2c_f32_bf16 v{ac}, v{24+r}, v{44+20*g+r}")
        a(f"v_dot2c_f32_bf16 v9, s34, v{24+r}")
    a("s_mov_b32 s40, 0x00010001")
    a("s_mov_b32 s41, 0x00010001")
    a("s_nop 0")
    for sh in (8, 4, 2, 1):
        for r in (6, 7, 8, 13, 9):
            a(f"v_add_f32_dpp v{r}, v{r}, v{r} row_ror:{sh} row_mask:0xf bank_mask:0xf")
    for ac in (6, 7, 8, 13):
        a(f"v_cndmask_b32 v12, v12, v{ac}, s[40:41]")
        a("s_lshl_b64 s[40:41], s[40:41], 1")
    a("s_mov_b64 exec, s[42:43]")
    a("v_rcp_f32 v16, v15")
    a("v_fma_f32 v12, -v14, v9, v12")
    a("v_mul_f32 v12, v12, v16")
    a("v_cvt_pk_bf16_f32 v12, v12, v12")
    a("v_ashrrev_i32 v13, 31, v12")
    a("v_or_b32 v13, 0x80000000, v13")
    a("v_xor_b32 v12, v12, v13")
    a("v_and_b32 v12, 0xffff0000, v12")
    a("v_sub_u32 v19, 2047, v18")
    a("v_lshl_or_b32 v12, v19, 3, v12")
    a("v_lshlrev_b32 v19, 2, v17")
    a("v_lshlrev_b32 v20, 3, v17")
    a("ds_write_b32 v19, v12")
    a("ds_write_b64 v20, v[14:15] offset:512")
    a("s_mov_b64 exec, -1")
    a("v_lshlrev_b32 v2, 3, v1")
    a("s_waitcnt lgkmcnt(0)")
    a("s_barrier")
    a("ds_read_b64 v[6:7], v2")
    a("v_mov_b32 v9, 0")
    a("s_mov_b32 s27, 0")
    a("s_waitcnt lgkmcnt(0)")
    a.label("k1r_top")
    top8_rounds(a, 6, 7, 8, 31)
    a("s_or_b32 s33, s31, s27")
    a("s_mov_b32 m0, s27")
    a("v_cmp_ne_u32 s[40:41], s31, v6")
    a("v_cmp_ne_u32 s[42:43], s31, v7")
    a("v_writelane_b32 v9, s33, m0")
    a("s_add_u32 s27, s27, 1")
    a("v_cndmask_b32 v6, 0, v6, s[40:41]")
    a("v_cndmask_b32 v7, 0, v7, s[42:43]")
    a("s_cmp_le_u32 s27, s24")
    a("s_cbranch_scc1 k1r_top")
    a("s_lshl_b32 s35, s25, 3")
    a("s_add_u32 s35, s35, s24")
    a("s_bfe_u32 s31, s33, 0xb0003")
    a("s_sub_u32 s31, 2047, s31")
    a("s_and_b32 s36, s31, 127")
    a("s_lshl_b32 s36, s36, 3")
    a("v_mov_b32 v4, s36")
    a("ds_read_b64 v[14:15], v4 offset:512")
    a("s_mul_i32 s31, s31, 1280")
    a("v_lshlrev_b32 v6, 4, v1")
    a("v_lshlrev_b32 v7, 2, v1")
    a("buffer_load_dwordx4 v[32:35], v6, s[12:15], s31 offen")
    a("buffer_load_dword v36, v7, s[12:15], s31 offen offset:1024")
    a("s_lshl_b32 s36, s35, 2")
    a(f"s_add_u32 s36, s36, {CAND_OFF}")
    a("v_mov_b32 v4, 0")
    a("v_mov_b32 v5, s33")
    a("s_mov_b64 exec, 1")
    a("buffer_store_dword v5, v4, s[20:23], s36 offen")
    a("s_mov_b64 exec, -1")
    a("s_mul_i32 s35, s35, 1280")
    a(f"s_add_u32 s35, s35, {XS_OFF}")
    a("s_waitcnt lgkmcnt(0)")
    a("v_rcp_f32 v16, v15")
    a("v_sub_f32 v14, 0, v14")
    a("s_waitcnt vmcnt(1)")
    for r in range(5):
        norm_pair(a, 32 + r, 14, 16, 18)
    a("buffer_store_dwordx4 v[32:35], v6, s[20:23], s35 offen")
    a("buffer_store_dword v36, v7, s[20:23], s35 offen offset:1024")
    stamp(a, 7)
    if STAMP: a("s_waitcnt vmcnt(0)")
    stamp_end(a, 0, 2)
    a("s_endpgm")

def gen():
    a = Asm()
    a.raw(f".globl {NAME}\n.p2align 8\n.type {NAME},@function")
    a.label(NAME)
    a("s_cmp_ge_u32 s2, 256")
    a("s_cbranch_scc1 k1_exit")
    stamp(a, 0)
    a("s_load_dwordx4 s[4:7], s[0:1], 0")
    a("s_load_dwordx4 s[8:11], s[0:1], 72")
    if "nocp" not in X:
        a("s_getpc_b64 s[40:41]")
        a("v_lshlrev_b32 v3, 7, v0")
        a("v_cmp_gt_u32 vcc, attn_kernel-qkv_kernel-1024, v3")
        a("s_and_saveexec_b64 s[42:43], vcc")
        a("s_cbranch_execz k1_ncp")
        a("global_load_dword v31, v3, s[40:41]")
        a.label("k1_ncp")
        a("s_mov_b64 exec, s[42:43]")
    a("v_lshrrev_b32 v2, 6, v0")
    a("v_and_b32 v1, 63, v0")
    a("s_and_b32 s28, s2, 7")
    a("v_readfirstlane_b32 s24, v2")
    a("s_lshr_b32 s29, s2, 3")
    a("s_lshr_b32 s30, s28, 1")
    a("s_and_b32 s28, s28, 1")
    a("s_lshl_b32 s30, s30, 2")
    a("s_cmp_lt_u32 s29, 2")
    a("s_cbranch_scc0 k1_gemm")
    a("s_lshl_b32 s28, s28, 1")
    a("s_add_u32 s25, s30, s28")
    a("s_add_u32 s25, s25, s29")
    a("s_waitcnt lgkmcnt(0)")
    a("s_branch k1_router")
    a.label("k1_exit")
    a("s_endpgm")
    a.label("k1_gemm")
    a("s_mul_i32 s28, s28, 30")
    a("s_add_u32 s28, s28, s29")
    a("s_sub_u32 s28, s28, 2")
    a("s_lshr_b32 s26, s28, 2")
    a("s_and_b32 s28, s28, 3")
    a("s_add_u32 s25, s30, s28")
    a("s_cmp_ge_u32 s24, 4")
    a("s_cbranch_scc0 k1_comp")
    loader(a)
    a.label("k1_comp")
    a("s_mov_b32 s27, 0")
    a(f"s_mov_b32 s35, {(-(NSLOT-1)*32768) & 0xffffffff}")
    a("s_mov_b32 s36, 0x8000")
    a("s_and_b32 s38, s24, 1")
    a("s_lshl_b32 s38, s38, 1")
    a("s_lshr_b32 s31, s24, 1")
    a("s_add_u32 s38, s38, s31")
    a("s_lshl_b32 s30, s31, 13")
    a("v_and_b32 v18, 31, v1")
    a("v_lshlrev_b32 v18, 7, v18")
    a("v_lshrrev_b32 v19, 5, v1")
    a("v_bfe_u32 v20, v1, 1, 3")
    a("v_xor_b32 v20, v20, v19")
    a("v_lshl_add_u32 v18, v20, 4, v18")
    a("v_add_u32 v5, s30, v18")
    for ks in range(1, 4):
        a(f"v_xor_b32 v{5+ks}, {ks<<5}, v5")
    a("v_bfe_u32 v20, v1, 2, 2")
    a("v_lshl_add_u32 v21, v19, 3, v20")
    a("v_lshlrev_b32 v21, 8, v21")
    a("v_xor_b32 v20, s38, v20")
    a("v_lshl_add_u32 v21, v20, 6, v21")
    a("v_bfe_u32 v20, v1, 4, 1")
    a("v_lshl_add_u32 v21, v20, 5, v21")
    a("v_and_b32 v20, 3, v1")
    a("v_lshl_add_u32 v21, v20, 3, v21")
    a("v_add_u32 v13, 0x4000, v21")
    a("v_xor_b32 v14, 64, v13")
    a("s_mov_b32 s40, 0x00100001")
    a("s_mov_b32 s41, 0x00100001")
    a("v_mov_b32 v24, 0x3f803f80")
    for r in range(4):
        a(f"v_mov_b32 v{16+r}, 0")
        a(f"v_cndmask_b32 v{20+r}, 0, v24, s[40:41]")
    for r in range(96, 160):
        a(f"v_mov_b32 v{r}, 0")
    a("s_waitcnt lgkmcnt(0)")
    if "pf" in X:
        srd(a, 12, 4, X_BYTES)
        srd(a, 16, 6, WQKV_BYTES)
        a("v_lshrrev_b32 v25, 5, v1")
        a("v_lshlrev_b32 v25, 6, v25")
        a("v_bfe_u32 v26, v1, 1, 4")
        a("v_add_u32 v25, v25, v26")
        a("v_mul_u32_u24 v25, 3840, v25")
        a("v_and_b32 v26, 1, v1")
        a("v_lshl_add_u32 v25, v26, 7, v25")
        a("s_lshl_b32 s31, s24, 3")
        a("s_and_b32 s33, s25, 3")
        a("s_add_u32 s31, s31, s33")
        a("s_add_u32 s31, s31, 8")
        a("s_mul_i32 s31, s31, 61440")
        a("s_lshl_b32 s33, s26, 8")
        a("s_add_u32 s31, s31, s33")
        a("buffer_load_dword v27, v25, s[16:19], s31 offen")
        a("v_and_b32 v25, 15, v1")
        a("v_mul_u32_u24 v25, 1280, v25")
        a("v_bfe_u32 v26, v1, 4, 1")
        a("v_lshl_add_u32 v25, v26, 7, v25")
        a("s_lshl_b32 s31, s25, 3")
        a("s_and_b32 s33, s26, 7")
        a("s_add_u32 s31, s31, s33")
        a("s_mul_i32 s31, s31, 20480")
        a("s_lshl_b32 s33, s24, 8")
        a("s_add_u32 s31, s31, s33")
        a("buffer_load_dword v31, v25, s[12:15], s31 offen offset:256")
    srd(a, 20, 10, WS_USED)
    a("s_cmp_ge_u32 s26, 10")
    a("s_cbranch_scc1 k1_vbody")
    gemm_body(a, False)
    a.label("k1_vbody")
    gemm_body(a, True)
    router(a)
    return a
```

```python
from common import *

NAME = "qkv_kernel"
NSLOT = 4
EX = NSLOT * 32768
LDS = EX + 2048
BLOCK = 512
ST_FLAG = os.environ.get("K1ST", "sc1")

def dma_stage(a, fill=None):
    seq = [("s_mov_b32 m0, s30", "s_add_u32 s31, s28, 10240", "buffer_load_dwordx4 v2, s[12:15], s28 offen lds"),
           ("s_addk_i32 m0, 0x4000", "s_add_u32 s33, s29, 15360", "buffer_load_dwordx4 v4, s[16:19], s29 offen lds"),
           (f"s_addk_i32 m0, {0x400-0x4000}", "s_addk_i32 s28, 128", "buffer_load_dwordx4 v3, s[12:15], s31 offen lds"),
           ("s_addk_i32 m0, 0x4000", "s_addk_i32 s31, 10240", "buffer_load_dwordx4 v4, s[16:19], s33 offen lds"),
           (f"s_addk_i32 m0, {0x400-0x4000}", "s_addk_i32 s33, 15360", "buffer_load_dwordx4 v2, s[12:15], s31 offen lds"),
           ("s_addk_i32 m0, 0x4000", "s_addk_i32 s31, 10240", "buffer_load_dwordx4 v4, s[16:19], s33 offen lds"),
           (f"s_addk_i32 m0, {0x400-0x4000}", "s_addk_i32 s33, 15360", "buffer_load_dwordx4 v3, s[12:15], s31 offen lds"),
           ("s_addk_i32 m0, 0x4000", "s_add_u32 s29, s29, 245760", "buffer_load_dwordx4 v4, s[16:19], s33 offen lds")]
    for n, g in enumerate(seq):
        for x in g: a(x)
        if fill:
            for x in fill[n]: a(x)
    a("s_add_u32 s30, s30, 0x8000")
    a(f"s_and_b32 s30, s30, {NSLOT*32768-1}")
    a("s_add_u32 s32, s32, 1")
    a("s_cmp_eq_u32 s32, 10")
    a("s_cselect_b32 s28, s34, s28")
    a("s_cselect_b32 s29, s35, s29")

def cs_reads():
    return [f"ds_read_b128 {vr(32+4*i,4)}, v12 offset:{i*1024}" for i in range(4)] + \
           ["v_add_u32 v12, 0x8000, v12", f"v_and_b32 v12, {NSLOT*32768-1}, v12"]
def cs_ops():
    G = []
    for i in range(4):
        L = []
        for d in range(4):
            L.append(f"v_lshlrev_b32 v{24+2*d}, 16, v{32+4*i+d}")
            L.append(f"v_and_b32 v{25+2*d}, v15, v{32+4*i+d}")
        for d in range(8):
            L.append(f"v_add_f32 v{16+d}, v{16+d}, v{24+d}")
        G.append(L)
    return G

X = os.environ.get("K1X", "p3")
VGPR = 160
def read_list(ks):
    b = 32 + 16 * ks
    return [f"ds_read_b128 {vr(b,4)}, v{5+ks}",
            f"ds_read_b64_tr_b16 {vr(b+8,2)}, v13 offset:{ks*4096}",
            f"ds_read_b64_tr_b16 {vr(b+10,2)}, v13 offset:{ks*4096+1024}",
            f"ds_read_b64_tr_b16 {vr(b+12,2)}, v14 offset:{ks*4096}",
            f"ds_read_b64_tr_b16 {vr(b+14,2)}, v14 offset:{ks*4096+1024}",
            f"ds_read_b128 {vr(b+4,4)}, v{5+ks} offset:4096"]

def acc(i, j):
    return 96 + (2 * i + j) * 16

def mm(a, ks, vmode, extra=None):
    b = 32 + 16 * ks
    rd = read_list((ks + 2) % 4)
    rds = [rd[0:2], rd[2:4], rd[4:5], rd[5:6]]
    n = 0
    for i in range(2):
        for j in range(2):
            Xr = vr(b + 4 * i, 4); W = vr(b + 8 + 4 * j, 4); C = vr(acc(i, j), 16)
            if "nomm" in X: pass
            elif vmode: a(f"v_mfma_f32_32x32x16_bf16 {C}, {Xr}, {W}, {C}")
            else:     a(f"v_mfma_f32_32x32x16_bf16 {C}, {W}, {Xr}, {C}")
            for r in rds[n]:
                if "nox" in X and "b128" in r: r = "s_nop 0"
                if "now" in X and "tr_b16" in r: r = "s_nop 0"
                a(r)
            if extra:
                for e in extra[n]: a(e)
            n += 1
    if "nocs" not in X: a(f"v_mfma_f32_16x16x32_bf16 v[16:19], v[20:23], {vr(b+8,4)}, v[16:19]")

def stats_math(a, vsum, vsq, vmp, vsd, t0):
    a(f"v_mul_f32 v{vsum}, {f32(1.0/640)}, v{vsum}")
    a(f"v_mul_f32 v{vsq}, {f32(1.0/640)}, v{vsq}")
    a(f"v_fma_f32 v{vsq}, -v{vsum}, v{vsum}, v{vsq}")
    a(f"v_max_f32 v{vsq}, 0, v{vsq}")
    a(f"v_cvt_pk_bf16_f32 v{vmp}, v{vsum}, v{vsum}")
    a(f"v_cvt_pk_bf16_f32 v{t0}, v{vsq}, v{vsq}")
    a(f"v_and_b32 v{t0}, 0xffff0000, v{t0}")
    a(f"v_add_f32 v{t0}, {f32(1e-5)}, v{t0}")
    a(f"v_cvt_pk_bf16_f32 v{t0}, v{t0}, v{t0}")
    a(f"v_and_b32 v{t0}, 0xffff0000, v{t0}")
    a(f"v_sqrt_f32 v{t0}, v{t0}")
    a("s_nop 0")
    a(f"v_cvt_pk_bf16_f32 v{t0}, v{t0}, v{t0}")
    a(f"v_and_b32 v{vsd}, 0xffff0000, v{t0}")

def gemm_body(a, vmode):
    L = "k1v" if vmode else "k1q"
    stamp(a, 3)
    a("s_barrier")
    stamp(a, 4)
    for r in read_list(0) + read_list(1): a(r)
    a.label(f"{L}_loop")
    a("s_and_b32 s32, s27, 3")
    a("s_cmp_eq_u32 s32, 3")
    a("s_cselect_b32 s33, s35, s36")
    a("s_waitcnt lgkmcnt(6)")
    mm(a, 0, vmode, extra=[[], [], ["v_add_u32 v5, s33, v5"], ["v_add_u32 v6, s33, v6"]])
    a("s_waitcnt lgkmcnt(6)")
    mm(a, 1, vmode, extra=[[], [], ["v_add_u32 v7, s33, v7", "v_add_u32 v13, s33, v13"], ["v_add_u32 v14, s33, v14", "v_add_u32 v8, s33, v8"]])
    a("s_add_u32 s27, s27, 1")
    a("s_cmp_eq_u32 s27, 10")
    a("s_waitcnt lgkmcnt(6)")
    a(f"s_cbranch_scc1 {L}_nb")
    a("s_barrier")
    a.label(f"{L}_nb")
    mm(a, 2, vmode)
    a("s_waitcnt lgkmcnt(6)")
    mm(a, 3, vmode)
    a(f"s_cbranch_scc0 {L}_loop")
    stamp(a, 5)
    a("s_waitcnt vmcnt(0)")
    a("v_and_b32 v24, 31, v1")
    a("v_lshlrev_b32 v24, 2, v24")
    a("s_lshr_b32 s31, s24, 1")
    a("s_lshl_b32 s31, s31, 8")
    a(f"s_add_u32 s31, s31, {EX}")
    a("v_add_u32 v9, s31, v24")
    a("s_lshl_b32 s33, s38, 8")
    a(f"s_add_u32 s33, s33, {EX+1024}")
    a("v_lshl_add_u32 v10, v1, 2, s33")
    if vmode:
        a("v_lshrrev_b32 v11, 5, v1")
        a("v_lshl_add_u32 v11, v11, 4, s31")
    a("v_cvt_pk_bf16_f32 v26, v16, v16")
    a("v_mov_b32 v23, 0")
    a("v_and_b32 v26, 0xffff0000, v26")
    a("v_mov_b32 v25, 0")
    a("v_sub_f32 v16, v16, v26")
    a("v_mov_b32 v27, 0")
    a("v_cvt_pk_bf16_f32 v26, -v26, -v16")
    a("v_mov_b32 v29, 0")
    a("ds_write_b32 v10, v26")
    a("v_xor_b32 v10, 256, v10")
    a("s_lshl_b32 s42, s25, 2")
    a("s_and_b32 s43, s24, 2")
    a("s_waitcnt lgkmcnt(0)")
    a("s_barrier")
    a("ds_read_b32 v22, v9")
    a("ds_read_b32 v24, v9 offset:128")
    a("ds_read_b32 v28, v10")
    if not vmode:
        a("ds_read_b32 v30, v9 offset:512")
        a("ds_read_b32 v20, v9 offset:640")
        a("s_waitcnt lgkmcnt(2)")
    else:
        for g in range(8):
            a(f"ds_read_b128 {vr(32+4*g,4)}, v11 offset:{512+32*g}")
        a("s_waitcnt lgkmcnt(8)")
    def corr(i, j):
        M = vr(22 + 2 * i, 2); CS = vr(26 + 2 * j, 2); C = vr(acc(i, j), 16)
        if vmode: a(f"v_mfma_f32_32x32x8_bf16 {C}, {M}, {CS}, {C}")
        else:     a(f"v_mfma_f32_32x32x8_bf16 {C}, {CS}, {M}, {C}")
    corr(0, 0); corr(1, 0); corr(0, 1); corr(1, 1)
    if not vmode:
        a("v_lshlrev_b32 v18, 4, v1")
        a("v_and_b32 v19, 32, v1")
        a("v_add_u32 v19, v19, v1")
        a("v_lshlrev_b32 v19, 3, v19")
    else:
        a("v_lshrrev_b32 v18, 5, v1")
        a("v_mul_u32_u24 v18, 10240, v18")
        a("v_and_b32 v19, 31, v1")
        a("v_lshl_add_u32 v18, v19, 4, v18")
    a("s_add_u32 s42, s42, s43")
    a(f"s_mul_i32 s42, s42, {TILE_B}")
    a(f"s_add_u32 s43, s42, {TILE_B}")
    a("s_lshl_b32 s44, s26, 2")
    a("s_add_u32 s44, s44, s38")
    a("s_xor_b32 s45, s44, 1")
    a("s_waitcnt lgkmcnt(0)")
    if not vmode:
        for r in (44, 45):
            a(f"s_add_u32 s{r+4}, s{r}, 2")
            a(f"s_mul_i32 s31, s{r+4}, 205")
            a("s_lshr_b32 s31, s31, 10")
            a("s_mul_i32 s31, s31, 5")
            a(f"s_sub_u32 s{r+4}, s{r+4}, s31")
        a("s_lshl_b32 s44, s44, 11")
        a("s_lshl_b32 s45, s45, 11")
    else:
        a("s_lshl_b32 s44, s44, 9")
        a("s_lshl_b32 s45, s45, 9")
        a(f"s_add_u32 s44, s44, {81920 - 40*512}")
        a(f"s_add_u32 s45, s45, {81920 - 40*512}")
    stamp(a, 6)
    for j in range(2):
        for i in range(2):
            c = acc(i, j)
            a(f"s_add_u32 s46, s{42+i}, s{44+j}")
            if vmode: a("s_add_u32 s47, s46, 20480")
            for p in range(8):
                if vmode:
                    a(f"v_pk_mul_f32 {vr(c+2*p,2)}, {vr(c+2*p,2)}, {vr(32+16*i+2*p,2)}")
                else:
                    rs = 30 if i == 0 else 20
                    a(f"v_pk_mul_f32 {vr(c+2*p,2)}, {vr(c+2*p,2)}, {vr(rs,2)} op_sel_hi:[1,0]")
            for p in range(8):
                a(f"v_cvt_pk_bf16_f32 v{c+p}, v{c+2*p}, v{c+2*p+1}")
            if vmode:
                a(f"buffer_store_dwordx4 {vr(c,4)}, v18, s[20:23], s46 offen {ST_FLAG}")
                a(f"buffer_store_dwordx4 {vr(c+4,4)}, v18, s[20:23], s47 offen {ST_FLAG}")
            else:
                for gp in range(2):
                    a(f"s_cmp_lg_u32 s{48+j}, {2*gp}")
                    a("s_cselect_b32 exec_lo, -1, 0")
                    a(f"s_cmp_lg_u32 s{48+j}, {2*gp+1}")
                    a("s_cselect_b32 exec_hi, -1, 0")
                    a(f"buffer_store_dwordx4 {vr(c+4*gp,4)}, v18, s[20:23], s46 offen offset:{gp*1024} {ST_FLAG}")
                    a("s_not_b64 exec, exec")
                    a(f"s_cbranch_execz k1q_s{i}{j}{gp}")
                    a(f"buffer_store_dwordx2 {vr(c+4*gp,2)}, v19, s[20:23], s46 offen offset:{gp*1024} {ST_FLAG}")
                    a(f"buffer_store_dwordx2 {vr(c+4*gp+2,2)}, v19, s[20:23], s46 offen offset:{gp*1024+256} {ST_FLAG}")
                    a.label(f"k1q_s{i}{j}{gp}")
                a("s_mov_b64 exec, -1")
    stamp(a, 7)
    if STAMP: a("s_waitcnt vmcnt(0)")
    stamp_end(a, 0, 2)
    a("s_endpgm")

def loader(a):
    a.label("k1_loader")
    a("s_load_dwordx2 s[48:49], s[0:1], 16")
    a("s_sub_u32 s39, s24, 4")
    a("s_sub_u32 s36, s2, 16")
    a("v_lshrrev_b32 v5, 3, v1")
    a("v_mul_u32_u24 v5, 1280, v5")
    a("v_lshrrev_b32 v6, 4, v1")
    a("v_and_b32 v7, 7, v1")
    a("v_xor_b32 v7, v7, v6")
    a("v_lshl_add_u32 v2, v7, 4, v5")
    a("v_xor_b32 v3, 64, v2")
    a("v_mul_u32_u24 v5, 3840, v6")
    a("v_lshlrev_b32 v7, 2, v6")
    a("v_and_b32 v8, 15, v1")
    a("v_xor_b32 v7, v7, v8")
    a("v_lshl_add_u32 v4, v7, 4, v5")
    a("s_lshl_b32 s34, s25, 2")
    a("s_add_u32 s34, s34, s39")
    a("s_mul_i32 s34, s34, 40960")
    a("s_mul_i32 s35, s39, 61440")
    a("s_lshl_b32 s31, s26, 8")
    a("s_add_u32 s35, s35, s31")
    a("s_and_b32 s32, s25, 3")
    a("s_mul_i32 s32, s32, 3")
    a("s_add_u32 s32, s32, s26")
    a("s_sub_u32 s31, s32, 10")
    a("s_cselect_b32 s32, s32, s31")
    a("s_sub_u32 s31, s32, 10")
    a("s_cselect_b32 s32, s32, s31")
    if "norot" in X: a("s_mov_b32 s32, 0")
    PH = {"p3": [0, 3, 7], "p4": [0, 2, 5, 7], "p5": [0, 2, 4, 6, 8], "p2": [0, 5]}
    for k, tab in PH.items():
        if k in X:
            n = len(tab)
            a("s_and_b32 s32, s25, 3")
            a("s_add_u32 s32, s32, s26")
            a(f"s_mul_i32 s31, s32, {(256 + n - 1) // n}")
            a("s_lshr_b32 s31, s31, 8")
            a(f"s_mul_i32 s31, s31, {n}")
            a("s_sub_u32 s32, s32, s31")
            a("s_lshl_b32 s32, s32, 2")
            a(f"s_lshr_b32 s32, {hex(sum(v << (4*i) for i, v in enumerate(tab)))}, s32")
            a("s_and_b32 s32, s32, 15")
    a("s_lshl_b32 s28, s32, 7")
    a("s_add_u32 s28, s28, s34")
    a("s_mul_i32 s29, s32, 245760")
    a("s_add_u32 s29, s29, s35")
    a("s_lshl_b32 s30, s39, 12")
    a("s_mov_b32 s27, 0")
    a("s_waitcnt lgkmcnt(0)")
    srd(a, 12, 4, X_BYTES)
    srd(a, 16, 6, WQKV_BYTES)
    stamp(a, 1)
    a.label("k1l_loop")
    dma_stage(a)
    a("s_add_u32 s27, s27, 1")
    a("s_cmp_eq_u32 s27, 1")
    a("s_cbranch_scc1 k1l_loop")
    a("s_cmp_eq_u32 s27, 10")
    a("s_cbranch_scc1 k1l_tail")
    a("s_waitcnt vmcnt(8)")
    a("s_barrier")
    a("s_cmp_lg_u32 s27, 6")
    a("s_cbranch_scc1 k1l_loop")
    a("s_min_u32 s31, s36, 159")
    a("s_lshl_b32 s31, s31, 2")
    a("s_add_u32 s31, s31, s39")
    a("s_mul_i32 s31, s31, 1280")
    a("s_add_u32 s40, s48, s31")
    a("s_addc_u32 s41, s49, 0")
    for i in range(10): a(f"s_load_dword s{52+i}, s[40:41], {i*128}")
    a("s_branch k1l_loop")
    a.label("k1l_tail")
    a("s_cmp_ge_u32 s39, 2")
    a("s_cbranch_scc0 k1l_st")
    srd(a, 20, 10, WS_USED)
    a("v_and_b32 v5, 127, v0")
    a("s_cmp_ge_u32 s36, 160")
    a("s_cbranch_scc1 k1l_hk2")
    a(f"s_mov_b32 s50, {WO_BYTES}")
    a("s_mov_b32 s51, 0x20000")
    a("s_mul_i32 s31, s36, 5120")
    a("v_lshlrev_b32 v6, 4, v5")
    a("buffer_load_dwordx4 v[16:19], v6, s[48:51], s31 offen")
    a("buffer_load_dwordx4 v[20:23], v6, s[48:51], s31 offen offset:2048")
    a("s_addk_i32 s31, 4096")
    a("buffer_load_dwordx4 v[24:27], v6, s[48:51], s31 offen")
    for i in range(3):
        a(f"v_add_u32 v6, {128*i}, v5")
        a("v_mul_u32_u24 v7, 6554, v6")
        a("v_lshrrev_b32 v7, 16, v7")
        a("v_mul_u32_u24 v8, 10, v7")
        a("v_sub_u32 v8, v6, v8")
        a("v_lshlrev_b32 v8, 4, v8")
        a("v_lshrrev_b32 v9, 3, v7")
        a("v_mul_u32_u24 v9, 160, v9")
        a("v_and_b32 v7, 7, v7")
        a("v_mul_u32_u24 v7, 0x19000, v7")
        a(f"v_add3_u32 v{10+i}, v8, v9, v7")
    a("s_mul_i32 s33, s36, 205")
    a("s_lshr_b32 s33, s33, 10")
    a("s_mul_i32 s31, s33, 5")
    a("s_sub_u32 s31, s36, s31")
    a("s_lshl_b32 s37, s33, 2")
    a("s_add_u32 s37, s37, s31")
    a("s_add_u32 s33, s33, 128")
    a("s_cmp_eq_u32 s31, 4")
    a("s_cselect_b32 s37, s33, s37")
    a("s_lshr_b32 s31, s37, 3")
    a("s_mul_i32 s31, s31, 5120")
    a("s_bfe_u32 s33, s37, 0x20001")
    a("s_mul_i32 s33, s33, 640")
    a("s_add_u32 s31, s31, s33")
    a("s_and_b32 s33, s37, 1")
    a("s_mul_i32 s33, s33, 2560")
    a("s_add_u32 s31, s31, s33")
    a(f"s_add_u32 s31, s31, {WOP_OFF}")
    a("s_waitcnt vmcnt(11)")
    a("s_barrier")
    a("s_waitcnt vmcnt(3)")
    a("s_barrier")
    a("s_waitcnt vmcnt(0)")
    a("buffer_store_dwordx4 v[16:19], v10, s[20:23], s31 offen")
    a("buffer_store_dwordx4 v[20:23], v11, s[20:23], s31 offen")
    a("s_cmp_eq_u32 s39, 3")
    a("s_cbranch_scc1 k1_exit")
    a("buffer_store_dwordx4 v[24:27], v12, s[20:23], s31 offen")
    a("s_endpgm")
    a.label("k1l_hk2")
    a("s_waitcnt vmcnt(8)")
    a("s_barrier")
    a("s_waitcnt vmcnt(0)")
    a("s_barrier")
    a("s_cmp_ge_u32 s36, 232")
    a("s_cbranch_scc1 k1l_hk3")
    a("s_cmp_ge_u32 s36, 208")
    a("s_cbranch_scc1 k1_exit")
    for r in range(4): a(f"v_mov_b32 v{16+r}, 0")
    a("v_lshlrev_b32 v6, 4, v5")
    a("s_lshl_b32 s31, s36, 11")
    a(f"s_add_u32 s31, s31, {CNT_OFF - 160*2048}")
    a("buffer_store_dwordx4 v[16:19], v6, s[20:23], s31 offen")
    a("s_endpgm")
    a.label("k1l_hk3")
    a("s_getpc_b64 s[44:45]")
    a.label("k1l_pc")
    a("s_add_u32 s44, s44, attn_kernel-k1l_pc")
    a("s_addc_u32 s45, s45, 0")
    a("s_mov_b32 s46, code_end-attn_kernel")
    a("s_mov_b32 s47, 0x20000")
    a("v_lshlrev_b32 v6, 7, v5")
    a("buffer_load_dword v7, v6, s[44:47], 0 offen")
    a("s_endpgm")
    a.label("k1l_st")
    a("s_lshl_b32 s31, s25, 2")
    a("v_mov_b32 v5, s31")
    if "nostat" not in X: a("global_load_dword v8, v5, s[8:9] sc1")
    else: a("global_load_dword v8, v5, s[4:5]")
    a("s_waitcnt vmcnt(9)")
    a("s_barrier")
    stamp(a, 2)
    srd(a, 20, 10, WS_USED)
    a("s_lshl_b32 s33, s39, 6")
    a("v_add_u32 v6, s33, v1")
    a("v_lshlrev_b32 v7, 3, v6")
    a("v_lshlrev_b32 v6, 2, v6")
    a(f"v_add_u32 v6, {EX}, v6")
    a("s_lshl_b32 s33, s25, 10")
    a(f"s_add_u32 s33, s33, {ST_OFF}")
    a("s_cmp_lt_u32 s26, 5")
    a(f"s_cselect_b32 s37, {f32(QSCALE)}, 1.0")
    a("s_mov_b32 s27, 0")
    a("s_waitcnt vmcnt(1)")
    a("s_barrier")
    a.label("k1l_poll")
    a("s_waitcnt vmcnt(0)")
    a("v_readfirstlane_b32 s31, v8")
    a("s_add_u32 s27, s27, 1")
    a("s_cmp_lg_u32 s31, 0")
    a("s_cbranch_scc1 k1l_go")
    a("s_cmp_ge_u32 s27, 0x20000")
    a("s_cbranch_scc1 k1l_go")
    a("s_sleep 2")
    a("global_load_dword v8, v5, s[8:9] sc1")
    a("s_branch k1l_poll")
    a.label("k1l_go")
    stamp(a, 4)
    a("buffer_load_dwordx2 v[10:11], v7, s[20:23], s33 offen sc1")
    a("s_waitcnt vmcnt(0)")
    a("v_rcp_f32 v11, v11")
    a("v_lshrrev_b32 v9, 16, v10")
    a("v_or_b32 v10, v10, v9")
    a("v_mul_f32 v11, s37, v11")
    a("ds_write_b32 v6, v10")
    a("ds_write_b32 v6, v11 offset:512")
    a("s_waitcnt lgkmcnt(0)")
    stamp(a, 5)
    a("s_barrier")
    stamp(a, 3)
    stamp_end(a, 0, 2)
    a("s_endpgm")

def router(a):
    a.label("k1_router")
    a("s_load_dwordx2 s[6:7], s[0:1], 32")
    a("v_and_b32 v3, 15, v1")
    a("v_lshlrev_b32 v4, 4, v3")
    a("v_lshrrev_b32 v5, 4, v1")
    a("v_mul_u32_u24 v5, 1280, v5")
    a("v_add_u32 v5, v5, v4")
    a("s_lshl_b32 s28, s25, 3")
    a("s_add_u32 s28, s28, s24")
    a("s_mul_i32 s28, s28, 20480")
    a("s_waitcnt lgkmcnt(0)")
    srd(a, 12, 4, X_BYTES)
    srd(a, 16, 6, WR_BYTES)
    def xl(g):
        for i in range(5):
            a(f"buffer_load_dwordx4 {vr(44+20*g+4*i,4)}, v5, s[12:15], s28 offen offset:{i*256}")
        a("s_addk_i32 s28, 5120")
    xl(0)
    xl(1)
    srd(a, 20, 10, WS_USED)
    a("s_mov_b32 s34, 0x3f803f80")
    a("s_mov_b32 s40, 0x00010001")
    a("s_mov_b32 s41, 0x00010001")
    for r in (9, 10, 11, 12): a(f"v_mov_b32 v{r}, 0")
    stamp(a, 3)
    for g in range(4):
        for r in (6, 7, 8, 13): a(f"v_mov_b32 v{r}, 0")
        a("s_waitcnt vmcnt(5)")
        if g < 2: xl(g + 2)
        if g == 2:
            for i in range(5):
                a(f"buffer_load_dwordx4 {vr(24+4*i,4)}, v4, s[16:19], 0 offen offset:{i*256}")
        if g == 0: stamp(a, 4)
        for r in range(0, 20, 2):
            x = 44 + 20 * g + r
            a(f"v_dot2c_f32_bf16 v6, s34, v{x}")
            a(f"v_dot2c_f32_bf16 v7, v{x}, v{x}")
            a(f"v_dot2c_f32_bf16 v8, s34, v{x+1}")
            a(f"v_dot2c_f32_bf16 v13, v{x+1}, v{x+1}")
        a("s_nop 1")
        a("v_add_f32 v6, v6, v8")
        a("s_nop 0")
        a("v_add_f32 v7, v7, v13")
        for sh in (8, 4, 2, 1):
            a("s_nop 0")
            for r in (6, 7):
                a(f"v_add_f32_dpp v{r}, v{r}, v{r} row_ror:{sh} row_mask:0xf bank_mask:0xf")
        a("v_cndmask_b32 v10, v10, v6, s[40:41]")
        a("v_cndmask_b32 v11, v11, v7, s[40:41]")
        if g < 3: a("s_lshl_b64 s[40:41], s[40:41], 1")
    stamp(a, 5)
    stats_math(a, 10, 11, 14, 15, 16)
    a("v_and_b32 v14, 0xffff0000, v14")
    a("v_lshrrev_b32 v17, 4, v1")
    a("v_lshl_add_u32 v17, v3, 2, v17")
    a("s_lshl_b32 s31, s24, 4")
    a("v_add_u32 v17, s31, v17")
    a("s_lshl_b32 s31, s25, 7")
    a("v_add_u32 v18, s31, v17")
    a("v_lshlrev_b32 v21, 3, v18")
    a("s_mov_b32 s42, 0x000f000f")
    a("s_mov_b32 s43, 0x000f000f")
    a("s_mov_b64 exec, s[42:43]")
    a(f"s_mov_b32 s31, {ST_OFF}")
    a("buffer_store_dwordx2 v[14:15], v21, s[20:23], s31 offen sc1")
    a("s_mov_b64 exec, -1")
    a("s_waitcnt vmcnt(0)")
    a("s_barrier")
    a("s_cmp_lg_u32 s24, 0")
    a("s_cbranch_scc1 k1r_nf")
    a("s_lshl_b32 s31, s25, 2")
    a("v_mov_b32 v4, s31")
    a("v_mov_b32 v5, 1")
    a("s_mov_b64 exec, 1")
    a("global_store_dword v4, v5, s[8:9] sc1")
    a("s_mov_b64 exec, -1")
    a.label("k1r_nf")
    stamp(a, 6)
    for r in (6, 7, 8, 13): a(f"v_mov_b32 v{r}, 0")
    for r in range(20):
        for g, ac in enumerate((6, 7, 8, 13)):
            a(f"v_dot2c_f32_bf16 v{ac}, v{24+r}, v{44+20*g+r}")
        a(f"v_dot2c_f32_bf16 v9, s34, v{24+r}")
    a("s_mov_b32 s40, 0x00010001")
    a("s_mov_b32 s41, 0x00010001")
    a("s_nop 0")
    for sh in (8, 4, 2, 1):
        for r in (6, 7, 8, 13, 9):
            a(f"v_add_f32_dpp v{r}, v{r}, v{r} row_ror:{sh} row_mask:0xf bank_mask:0xf")
    for ac in (6, 7, 8, 13):
        a(f"v_cndmask_b32 v12, v12, v{ac}, s[40:41]")
        a("s_lshl_b64 s[40:41], s[40:41], 1")
    a("s_mov_b64 exec, s[42:43]")
    a("v_rcp_f32 v16, v15")
    a("v_fma_f32 v12, -v14, v9, v12")
    a("v_mul_f32 v12, v12, v16")
    a("v_cvt_pk_bf16_f32 v12, v12, v12")
    a("v_ashrrev_i32 v13, 31, v12")
    a("v_or_b32 v13, 0x80000000, v13")
    a("v_xor_b32 v12, v12, v13")
    a("v_and_b32 v12, 0xffff0000, v12")
    a("v_sub_u32 v19, 2047, v18")
    a("v_lshl_or_b32 v12, v19, 3, v12")
    a("v_lshlrev_b32 v19, 2, v17")
    a("v_lshlrev_b32 v20, 3, v17")
    a("ds_write_b32 v19, v12")
    a("ds_write_b64 v20, v[14:15] offset:512")
    a("s_mov_b64 exec, -1")
    a("v_lshlrev_b32 v2, 3, v1")
    a("s_waitcnt lgkmcnt(0)")
    a("s_barrier")
    a("ds_read_b64 v[6:7], v2")
    a("v_mov_b32 v9, 0")
    a("s_mov_b32 s27, 0")
    a("s_waitcnt lgkmcnt(0)")
    a.label("k1r_top")
    top8_rounds(a, 6, 7, 8, 31)
    a("s_or_b32 s33, s31, s27")
    a("s_mov_b32 m0, s27")
    a("v_cmp_ne_u32 s[40:41], s31, v6")
    a("v_cmp_ne_u32 s[42:43], s31, v7")
    a("v_writelane_b32 v9, s33, m0")
    a("s_add_u32 s27, s27, 1")
    a("v_cndmask_b32 v6, 0, v6, s[40:41]")
    a("v_cndmask_b32 v7, 0, v7, s[42:43]")
    a("s_cmp_le_u32 s27, s24")
    a("s_cbranch_scc1 k1r_top")
    a("s_lshl_b32 s35, s25, 3")
    a("s_add_u32 s35, s35, s24")
    a("s_bfe_u32 s31, s33, 0xb0003")
    a("s_sub_u32 s31, 2047, s31")
    a("s_and_b32 s36, s31, 127")
    a("s_lshl_b32 s36, s36, 3")
    a("v_mov_b32 v4, s36")
    a("ds_read_b64 v[14:15], v4 offset:512")
    a("s_mul_i32 s31, s31, 1280")
    a("v_lshlrev_b32 v6, 4, v1")
    a("v_lshlrev_b32 v7, 2, v1")
    a("buffer_load_dwordx4 v[32:35], v6, s[12:15], s31 offen")
    a("buffer_load_dword v36, v7, s[12:15], s31 offen offset:1024")
    a("s_lshl_b32 s36, s35, 2")
    a(f"s_add_u32 s36, s36, {CAND_OFF}")
    a("v_mov_b32 v4, 0")
    a("v_mov_b32 v5, s33")
    a("s_mov_b64 exec, 1")
    a("buffer_store_dword v5, v4, s[20:23], s36 offen")
    a("s_mov_b64 exec, -1")
    a("s_mul_i32 s35, s35, 1280")
    a(f"s_add_u32 s35, s35, {XS_OFF}")
    a("s_waitcnt lgkmcnt(0)")
    a("v_rcp_f32 v16, v15")
    a("v_sub_f32 v14, 0, v14")
    a("s_waitcnt vmcnt(1)")
    for r in range(5):
        norm_pair(a, 32 + r, 14, 16, 18)
    a("buffer_store_dwordx4 v[32:35], v6, s[20:23], s35 offen")
    a("buffer_store_dword v36, v7, s[20:23], s35 offen offset:1024")
    stamp(a, 7)
    if STAMP: a("s_waitcnt vmcnt(0)")
    stamp_end(a, 0, 2)
    a("s_endpgm")

def gen():
    a = Asm()
    a.raw(f".globl {NAME}\n.p2align 8\n.type {NAME},@function")
    a.label(NAME)
    a("s_cmp_ge_u32 s2, 256")
    a("s_cbranch_scc1 k1_exit")
    stamp(a, 0)
    a("s_load_dwordx4 s[4:7], s[0:1], 0")
    a("s_load_dwordx4 s[8:11], s[0:1], 72")
    if "nocp" not in X:
        a("s_getpc_b64 s[40:41]")
        a("v_lshlrev_b32 v3, 7, v0")
        a("v_cmp_gt_u32 vcc, attn_kernel-qkv_kernel-1024, v3")
        a("s_and_saveexec_b64 s[42:43], vcc")
        a("s_cbranch_execz k1_ncp")
        a("global_load_dword v31, v3, s[40:41]")
        a.label("k1_ncp")
        a("s_mov_b64 exec, s[42:43]")
    a("v_lshrrev_b32 v2, 6, v0")
    a("v_and_b32 v1, 63, v0")
    a("s_and_b32 s28, s2, 7")
    a("v_readfirstlane_b32 s24, v2")
    a("s_lshr_b32 s29, s2, 3")
    a("s_lshr_b32 s30, s28, 1")
    a("s_and_b32 s28, s28, 1")
    a("s_lshl_b32 s30, s30, 2")
    a("s_cmp_lt_u32 s29, 2")
    a("s_cbranch_scc0 k1_gemm")
    a("s_lshl_b32 s28, s28, 1")
    a("s_add_u32 s25, s30, s28")
    a("s_add_u32 s25, s25, s29")
    a("s_waitcnt lgkmcnt(0)")
    a("s_branch k1_router")
    a.label("k1_exit")
    a("s_endpgm")
    a.label("k1_gemm")
    a("s_mul_i32 s28, s28, 30")
    a("s_add_u32 s28, s28, s29")
    a("s_sub_u32 s28, s28, 2")
    a("s_lshr_b32 s26, s28, 2")
    a("s_and_b32 s28, s28, 3")
    a("s_add_u32 s25, s30, s28")
    a("s_cmp_ge_u32 s24, 4")
    a("s_cbranch_scc0 k1_comp")
    loader(a)
    a.label("k1_comp")
    a("s_mov_b32 s27, 0")
    a(f"s_mov_b32 s35, {(-(NSLOT-1)*32768) & 0xffffffff}")
    a("s_mov_b32 s36, 0x8000")
    a("s_and_b32 s38, s24, 1")
    a("s_lshl_b32 s38, s38, 1")
    a("s_lshr_b32 s31, s24, 1")
    a("s_add_u32 s38, s38, s31")
    a("s_lshl_b32 s30, s31, 13")
    a("v_and_b32 v18, 31, v1")
    a("v_lshlrev_b32 v18, 7, v18")
    a("v_lshrrev_b32 v19, 5, v1")
    a("v_bfe_u32 v20, v1, 1, 3")
    a("v_xor_b32 v20, v20, v19")
    a("v_lshl_add_u32 v18, v20, 4, v18")
    a("v_add_u32 v5, s30, v18")
    for ks in range(1, 4):
        a(f"v_xor_b32 v{5+ks}, {ks<<5}, v5")
    a("v_bfe_u32 v20, v1, 2, 2")
    a("v_lshl_add_u32 v21, v19, 3, v20")
    a("v_lshlrev_b32 v21, 8, v21")
    a("v_xor_b32 v20, s38, v20")
    a("v_lshl_add_u32 v21, v20, 6, v21")
    a("v_bfe_u32 v20, v1, 4, 1")
    a("v_lshl_add_u32 v21, v20, 5, v21")
    a("v_and_b32 v20, 3, v1")
    a("s_cmp_ge_u32 s26, 10")
    a("s_cselect_b32 s31, 0xe4, 0")
    a("s_cselect_b32 s33, 0, 0xd8")
    a("s_or_b32 s31, s31, s33")
    a("v_lshlrev_b32 v20, 1, v20")
    a("v_lshrrev_b32 v20, v20, s31")
    a("v_and_b32 v20, 3, v20")
    a("v_lshl_add_u32 v21, v20, 3, v21")
    a("v_add_u32 v13, 0x4000, v21")
    a("v_xor_b32 v14, 64, v13")
    a("s_mov_b32 s40, 0x00100001")
    a("s_mov_b32 s41, 0x00100001")
    a("v_mov_b32 v24, 0x3f803f80")
    for r in range(4):
        a(f"v_mov_b32 v{16+r}, 0")
        a(f"v_cndmask_b32 v{20+r}, 0, v24, s[40:41]")
    for r in range(96, 160):
        a(f"v_mov_b32 v{r}, 0")
    a("s_waitcnt lgkmcnt(0)")
    if "pf" in X:
        srd(a, 12, 4, X_BYTES)
        srd(a, 16, 6, WQKV_BYTES)
        a("v_lshrrev_b32 v25, 5, v1")
        a("v_lshlrev_b32 v25, 6, v25")
        a("v_bfe_u32 v26, v1, 1, 4")
        a("v_add_u32 v25, v25, v26")
        a("v_mul_u32_u24 v25, 3840, v25")
        a("v_and_b32 v26, 1, v1")
        a("v_lshl_add_u32 v25, v26, 7, v25")
        a("s_lshl_b32 s31, s24, 3")
        a("s_and_b32 s33, s25, 3")
        a("s_add_u32 s31, s31, s33")
        a("s_add_u32 s31, s31, 8")
        a("s_mul_i32 s31, s31, 61440")
        a("s_lshl_b32 s33, s26, 8")
        a("s_add_u32 s31, s31, s33")
        a("buffer_load_dword v27, v25, s[16:19], s31 offen")
        a("v_and_b32 v25, 15, v1")
        a("v_mul_u32_u24 v25, 1280, v25")
        a("v_bfe_u32 v26, v1, 4, 1")
        a("v_lshl_add_u32 v25, v26, 7, v25")
        a("s_lshl_b32 s31, s25, 3")
        a("s_and_b32 s33, s26, 7")
        a("s_add_u32 s31, s31, s33")
        a("s_mul_i32 s31, s31, 20480")
        a("s_lshl_b32 s33, s24, 8")
        a("s_add_u32 s31, s31, s33")
        a("buffer_load_dword v31, v25, s[12:15], s31 offen offset:256")
    srd(a, 20, 10, WS_USED)
    a("s_cmp_ge_u32 s26, 10")
    a("s_cbranch_scc1 k1_vbody")
    gemm_body(a, False)
    a.label("k1_vbody")
    gemm_body(a, True)
    router(a)
    return a
```

```python
from common import *

NAME = "attn_kernel"
LDS = 81920
X = os.environ.get("K2X", "")
GRID = 256 + NMOE
if "nomoe" in X: GRID = 256
CH = 20480
OST = os.environ.get("OST", "")
DPRE = int(os.environ.get("DPRE", "4"))
GPRE = int(os.environ.get("GPRE", "6"))
SPECW = "specw" in X
OPRE = int(os.environ.get("OPRE", "4"))
SLEEP = int(os.environ.get("SLEEP", "1"))
APACE = int(os.environ.get("APACE", "8"))
PACE = 0 if "pace0" in X else 2 if "pace2" in X else 1
TOP = 2 if "top2" in X else 3
QLO = (8, 14); QHI = (12, 18)
KLO = (20, 26); KHI = (24, 30)
VV = (32, 40)
P = 48
SS = (56, 72)
OO = (88, 104)
T0 = 120

def dma_chunk(a, lab):
    a("s_mov_b32 m0, s30")
    a("s_nop 0")
    a("buffer_load_dwordx4 v2, s[20:23], s28 offen lds")
    a("s_addk_i32 m0, 10240")
    a("s_cmp_ge_u32 s24, 4")
    a("buffer_load_dwordx4 v3, s[20:23], s28 offen lds")
    a(f"s_cbranch_scc1 {lab}")
    a("s_add_u32 m0, s30, s39")
    a("s_nop 0")
    a("buffer_load_dwordx4 v4, s[20:23], s28 offen lds")
    a.label(lab)
    a("s_add_u32 s28, s28, s59")

def piece_split(a, p, run, d16, tb):
    a(f"v_mul_u32_u24 v{run}, 3277, v{p}")
    a(f"v_lshrrev_b32 v{run}, 16, v{run}")
    a(f"v_mul_u32_u24 v{d16}, 20, v{run}")
    a(f"v_sub_u32 v{d16}, v{p}, v{d16}")
    a(f"v_lshlrev_b32 v{d16}, 4, v{d16}")
    a(f"v_bfe_u32 v{tb}, v{run}, 2, 2")
    a(f"v_mad_u32_u24 v{d16}, v{tb}, s44, v{d16}")
    a(f"v_lshrrev_b32 v{tb}, 4, v{run}")
    a(f"v_mad_u32_u24 v{d16}, v{tb}, s52, v{d16}")
    a(f"v_and_b32 v{run}, 3, v{run}")

def kq_addr(a):
    a("s_and_b32 s31, s25, 1")
    a("s_lshl_b32 s33, s31, 8")
    a("v_lshl_add_u32 v5, v1, 4, s33")
    a("s_xor_b32 s31, s31, 1")
    a("s_lshl_b32 s33, s31, 10")
    a("v_lshl_add_u32 v7, v1, 3, s33")

def vrow(a, r, t):
    a(f"v_lshrrev_b32 v{t}, 1, v{r}")
    a(f"v_xor_b32 v{t}, v{t}, v{r}")
    a(f"v_and_b32 v{t}, 4, v{t}")
    a(f"v_mul_u32_u24 v{t}, 3, v{t}")
    a(f"v_xor_b32 v{r}, v{r}, v{t}")

def kv_reads(i, koff, voff):
    kb = (i + 1) % 2; vb = i % 2
    L = ["s_mov_b64 exec, s[40:41]",
         f"ds_read_b128 {vr(VV[vb],4)}, v6 offset:{voff}",
         f"ds_read_b128 {vr(VV[vb]+4,4)}, v6 offset:{voff+640}"]
    L += ["s_mov_b64 exec, -1",
          f"ds_read_b128 {vr(KLO[kb],4)}, v5 offset:{koff}",
          f"ds_read_b64 {vr(KHI[kb],2)}, v7 offset:{koff}"]
    return L

def unit(a, u):
    i = u // 2; b = u % 2
    cur = SS[b]; nxt = SS[1 - b]
    ob = OO[1 - b]
    vb = VV[(i - 1) % 2] if b == 0 else VV[i % 2]
    kb = i % 2 if b == 0 else (i + 1) % 2
    def grp(g, mf, pre=(), post=()):
        e = cur + 4 * g
        a(f"v_exp_f32 v{e}, v{e}")
        a(f"v_exp_f32 v{e+1}, v{e+1}")
        for s in pre: a(s)
        a(mf)
        for s in post:
            if callable(s): s()
            else: a(s)
        a(f"v_exp_f32 v{e+2}, v{e+2}")
        a(f"v_exp_f32 v{e+3}, v{e+3}")
        c = (cur + 4 * (g - 1)) if g > 0 else nxt + 12
        pd = P + 2 * ((g - 1) % 4)
        a(f"v_cvt_pk_bf16_f32 v{pd}, v{c}, v{c+1}")
        a(f"v_cvt_pk_bf16_f32 v{pd+1}, v{c+2}, v{c+3}")
    pre = [[], [], [], []]; post = [[], [], [], []]
    if b == 0:
        rd = kv_reads(i, ((i + 1) % 4) * 1280, i * 1280)
        if "nospread" in X:
            post[0] = rd
        else:
            post[0] = rd[:4]; post[1] = rd[4:5]; post[2] = rd[5:]
    else:
        pre[0] = ["s_waitcnt lgkmcnt(0)"]
    def dma_if(cond, lab):
        def f():
            a(cond)
            a(f"s_cbranch_scc1 {lab}_skip")
            dma_chunk(a, lab)
            a("s_add_u32 s30, s30, s34")
            a.label(f"{lab}_skip")
        return f
    if u == 5:
        post[0] = ["s_waitcnt vmcnt(2)", "s_barrier", f"s_setprio {TOP}"]
        if "itst" in X:
            post[0] = ["s_memtime s[92:93]", "s_waitcnt vmcnt(2)", "s_memtime s[94:95]", "s_barrier", "s_memtime s[96:97]", "s_lshl_b32 m0, s27, 2", "s_waitcnt lgkmcnt(0)",
                       "v_writelane_b32 v125, s92, m0", "s_add_u32 m0, m0, 1", "s_nop 0", "v_writelane_b32 v125, s94, m0", "s_add_u32 m0, m0, 1", "s_nop 0", "v_writelane_b32 v125, s96, m0", f"s_setprio {TOP}"]
        post[1] = [dma_if("s_cmp_ge_u32 s27, s55", "k2_dla")]
        post[2] = ["v_add_u32 v5, s33, v5", "v_add_u32 v7, s33, v7"]
    if u == 7:
        def hook():
            a("s_cmp_ge_u32 s27, s58")
            a("s_cbranch_scc1 k2_hook")
            a.label("k2_nl")
        post[3] = [hook]
    LAD = {(0, 2): 2, (2, 2): 1, (4, 2): 0}
    if TOP == 2: LAD = {(1, 2): 1, (4, 2): 0}
    if "lad2" in X: LAD = {(7, 0): 2, (1, 0): 1, (3, 0): 0}
    if "lad3" in X: LAD = {(0, 2): 2, (3, 2): 1, (4, 3): 0}
    for (uu, g), pr in LAD.items():
        if uu == u: post[g] = post[g] + [f"s_setprio {pr}"]
    if u == 7:
        post[0] = post[0] + [dma_if("s_cmp_ge_u32 s27, s56", "k2_dlb")]
        post[1] = ["v_add_u32 v6, s33, v6", "s_mov_b32 s34, s33", "s_add_u32 s27, s27, 1"]
        post[2] = ["s_and_b32 s32, s27, 3", "s_cmp_eq_u32 s32, 3", "s_cselect_b32 s33, s35, s36"]
    if not post[2] and not post[3] and not pre[3]:
        post[3] = ["s_nop 0"]
    grp(0, f"v_mfma_f32_32x32x16_bf16 {vr(ob,16)}, {vr(vb,4)}, {vr(P,4)}, {vr(ob,16)}", pre[0], post[0])
    grp(1, f"v_mfma_f32_32x32x16_bf16 {vr(nxt,16)}, {vr(KLO[kb],4)}, {vr(QLO[1-b],4)}, 0", pre[1], post[1])
    grp(2, f"v_mfma_f32_32x32x8_bf16 {vr(nxt,16)}, {vr(KHI[kb],2)}, {vr(QHI[1-b],2)}, {vr(nxt,16)}", pre[2], post[2])
    grp(3, f"v_mfma_f32_32x32x16_bf16 {vr(ob,16)}, {vr(vb+4,4)}, {vr(P+4,4)}, {vr(ob,16)}", pre[3], post[3])

WBUF = (8, 28); ACC = 48; OFR = 68; GR = 108; XP = 120
def w_reads(st, j):
    b = WBUF[st]; off = (j % 4) * 10240
    L = []
    for T, (base, c) in enumerate(((4, 0), (4, 32), (5, 0), (6, 0), (6, 32))):
        L.append(f"ds_read_b64_tr_b16 {vr(b+4*T,2)}, v{base} offset:{off+c}")
        L.append(f"ds_read_b64_tr_b16 {vr(b+4*T+2,2)}, v{base} offset:{off+2560+c}")
    return L

def w_dma(a):
    for ii in range(4):
        a(f"buffer_load_dwordx4 v2, s[20:23], s28 offen offset:{ii*1024} lds")
    a("s_addk_i32 m0, 0x1000")
    a("s_addk_i32 s28, 0x1000")
    a("buffer_load_dwordx4 v2, s[20:23], s28 offen lds")

def spin(a, lab, vaddr, vdst, target, sleep):
    a("s_mov_b32 s27, 0")
    a.label(lab)
    a("s_waitcnt vmcnt(0)")
    a(f"v_readfirstlane_b32 s31, v{vdst}")
    a("s_add_u32 s27, s27, 1")
    a(f"s_cmp_ge_u32 s31, {target}")
    a(f"s_cbranch_scc1 {lab}_ok")
    a("s_cmp_ge_u32 s27, 0x20000")
    a(f"s_cbranch_scc1 {lab}_ok")
    if sleep: a(f"s_sleep {sleep}")
    a(f"global_load_dword v{vdst}, v{vaddr}, s[10:11] sc1")
    a(f"s_branch {lab}")
    a.label(f"{lab}_ok")

def sel_load(a):
    a("v_and_b32 v127, 7, v1")
    a("v_lshlrev_b32 v127, 2, v127")
    a("s_and_b32 s31, s2, 31")
    a("s_lshl_b32 s31, s31, 7")
    a(f"s_add_u32 s31, s31, {SEL_OFF}")
    a("buffer_load_dword v127, v127, s[20:23], s31 offen sc1")

def late(a):
    a.label("k2_hook")
    a("s_cmp_gt_u32 s27, 5")
    a("s_cbranch_scc1 k2_late")
    a("s_cmp_eq_u32 s27, 5")
    a("s_cbranch_scc1 k2_sw")
    a(f"buffer_load_dword v{T0+7}, v{T0+6}, s[12:15], s57 offen")
    a("s_mov_b32 s58, 5")
    a("s_branch k2_nl")
    a.label("k2_sw")
    a("v_lshlrev_b32 v2, 4, v0")
    a("v_add_u32 v3, 10240, v2")
    a("v_add_u32 v4, s39, v2")
    a("s_mul_i32 s28, s61, 102400")
    a(f"s_add_u32 s28, s28, {WOP_OFF}")
    a(f"s_movk_i32 s59, {CH}")
    a("s_branch k2_nl")
    a.label("k2_late")
    a("s_cmp_eq_u32 s27, 7")
    a("s_cbranch_scc1 k2_late7")
    a("s_and_b32 s38, s24, 3")
    a("s_lshl_b32 s49, s60, 2")
    a("s_add_u32 s49, s49, s38")
    a("v_and_b32 v0, 15, v1")
    a("v_lshrrev_b32 v125, 4, v1")
    a("v_mul_u32_u24 v126, 1280, v0")
    a("v_lshl_add_u32 v126, v125, 3, v126")
    a("s_mul_i32 s37, s49, 20480")
    a("s_mul_i32 s50, s61, 160")
    a("s_add_u32 s37, s37, s50")
    a("s_mul_i32 s48, s53, 96")
    a("s_add_u32 s38, s37, s48")
    srd(a, 12, 4, X_BYTES)
    a(f"buffer_load_dwordx2 {vr(XP,2)}, v126, s[12:15], s38 offen")
    a(f"buffer_load_dwordx2 {vr(XP+2,2)}, v126, s[12:15], s38 offen offset:32")
    a(f"buffer_load_dwordx2 {vr(XP+4,2)}, v126, s[12:15], s37 offen offset:64")
    sel_load(a)
    a("s_branch k2_nl")
    a.label("k2_late7")
    a("s_movk_i32 s58, 99")
    a("v_lshlrev_b32 v2, 3, v0")
    a("s_lshl_b32 s31, s49, 7")
    a(f"s_add_u32 s31, s31, {ST_OFF}")
    a("buffer_load_dwordx2 v[2:3], v2, s[20:23], s31 offen")
    a("s_branch k2_nl")

def project(a):
    UR = OFR; TM = OFR + 8
    a("v_lshrrev_b32 v7, 4, v1")
    a("v_mov_b32 v3, v126")
    a("s_mov_b32 s41, s47")
    a("s_and_b32 s46, s47, s47")
    a("s_cbranch_scc1 pj_hit0")
    a.label("pj_ret0")
    a("v_lshrrev_b32 v5, 2, v1")
    a("v_mul_u32_u24 v5, 160, v5")
    a("v_and_b32 v4, 3, v1")
    a("v_lshl_add_u32 v5, v4, 3, v5")
    a("s_mul_i32 s31, s53, 5120")
    a("v_add_u32 v5, s31, v5")
    a("v_add_u32 v4, s48, v5")
    a("s_sub_u32 s31, 96, s48")
    a("v_add_u32 v6, s31, v5")
    a("v_add_u32 v5, 64, v5")
    for r in w_reads(0, 0): a(r)
    srd(a, 12, 8, X_BYTES)
    a(f"v_and_b32 v{ACC}, 0xffff0000, v0")
    a(f"v_rcp_f32 v{ACC}, v{ACC}")
    a(f"v_lshlrev_b32 v{ACC+1}, 16, v0")
    a("v_and_b32 v0, 15, v1")
    a(f"v_mul_f32 v{GR}, v{ACC}, -v{ACC+1}")
    a("s_waitcnt lgkmcnt(4)")
    for r in w_reads(1, 1): a(r)
    for r in range(1, 12): a(f"v_mov_b32 v{GR+r}, v{GR}")
    a(f"v_mov_b32 v{ACC+4}, {f32(-math.log2(math.e))}")
    a("s_lshl_b32 s30, s24, 10")
    a("s_mul_i32 s28, s61, 102400")
    a("s_add_u32 s28, s28, s30")
    a(f"s_add_u32 s28, s28, {WOP_OFF + 40960}")
    a("s_add_u32 m0, s30, 40960")
    a("s_waitcnt lgkmcnt(0)")
    a("s_barrier")
    def wd(lo, hi):
        for i in range(lo, hi):
            if i == 7:
                a("s_cmp_ge_u32 s24, 4")
                a("s_cbranch_scc1 pj_noc")
            a("buffer_load_dwordx4 v2, s[20:23], s28 offen lds")
            if i < 7:
                a("s_mov_b32 m0, s30" if i == 4 else "s_addk_i32 m0, 0x2000")
                a("s_addk_i32 s28, 0x2000")
            else:
                a.label("pj_noc")
    def spec():
        a("s_cmp_ge_u32 s24, 5")
        a("s_cbranch_scc1 pj_nsp")
        a("s_mul_i32 s31, s60, 81920")
        a("s_lshl_b32 s33, s24, 14")
        a("s_add_u32 s31, s31, s33")
        a(f"s_add_u32 s31, s31, {O_OFF}")
        a("v_lshlrev_b32 v74, 7, v1")
        a("buffer_load_dword v75, v74, s[20:23], s31 offen sc1")
        a("s_addk_i32 s31, 0x2000")
        a("buffer_load_dword v75, v74, s[20:23], s31 offen sc1")
        a.label("pj_nsp")
    wd(0, DPRE)
    a("s_cmp_lg_u32 s46, 0")
    a("s_cbranch_scc1 pj_ret1")
    a.label("pj_gate")
    def gate(p, t):
        g = GR + 2 * p; x = XP + p
        return [f"v_lshlrev_b32 v{t}, 16, v{x}",
                f"v_and_b32 v{t+1}, 0xffff0000, v{x}",
                f"v_pk_fma_f32 {vr(g,2)}, {vr(t,2)}, {vr(ACC,2)}, {vr(g,2)} op_sel_hi:[1,0,1]",
                f"v_pk_mul_f32 {vr(t,2)}, {vr(g,2)}, {vr(ACC+4,2)} op_sel_hi:[1,0]",
                f"v_exp_f32 v{t}, v{t}",
                f"v_exp_f32 v{t+1}, v{t+1}",
                f"v_pk_add_f32 {vr(t,2)}, {vr(t,2)}, 1.0 op_sel_hi:[1,0]",
                f"v_rcp_f32 v{t}, v{t}",
                f"v_rcp_f32 v{t+1}, v{t+1}",
                f"v_pk_mul_f32 {vr(g,2)}, {vr(g,2)}, {vr(t,2)}"]
    for p in range(0, GPRE, 2):
        for x, y in zip(gate(p, TM), gate(p + 1, TM + 2)): a(x); a(y)
    a("s_cmp_lg_u32 s46, 0")
    a("s_cbranch_scc1 pj_ret2")
    a.label("pj_ret1")
    a("s_lshl_b32 s31, s26, 8")
    a(f"s_add_u32 s31, s31, {CNT_OFF}")
    a(f"v_mov_b32 v{ACC+2}, s31")
    a(f"v_mov_b32 v{ACC+3}, 1")
    stamp(a, 7)
    a(f"s_waitcnt vmcnt({min(DPRE, 7)})")
    a("s_barrier")
    a("s_cmp_lg_u32 s24, 7")
    a("s_cbranch_scc1 pj_nosig")
    a("s_mov_b64 exec, 1")
    a(f"global_atomic_add v{ACC+6}, v{ACC+2}, v{ACC+3}, s[10:11] sc0")
    a("s_mov_b64 exec, -1")
    a.label("pj_nosig")
    stamp(a, 8)
    wd(DPRE, 8)
    spec()
    a("s_cmp_lg_u32 s46, 0")
    a("s_cbranch_scc1 pj_hit")
    a.label("pj_ret2")
    for p in range(GPRE, 6, 2):
        for x, y in zip(gate(p, TM), gate(p + 1, TM + 2)): a(x); a(y)
    a("v_lshlrev_b32 v2, 9, v7")
    a("v_lshl_add_u32 v2, v0, 4, v2")
    a("s_lshr_b32 s29, s49, 1")
    a("s_mul_i32 s29, s29, 40960")
    a("s_and_b32 s31, s49, 1")
    a("s_lshl_b32 s31, s31, 8")
    a("s_add_u32 s29, s29, s31")
    a(f"s_add_u32 s29, s29, {O_OFF}")
    a("s_lshl_b32 s28, s53, 11")
    a("s_add_u32 s28, s28, s29")
    a("s_waitcnt vmcnt(2)")
    a("s_cmp_lt_u32 s24, 5")
    a("s_cbranch_scc1 pj_wait")
    a("s_waitcnt vmcnt(0)")
    a("s_cmp_lg_u32 s24, 7")
    a("s_cbranch_scc1 pj_wait")
    a(f"v_readfirstlane_b32 s31, v{ACC+6}")
    a("s_cmp_eq_u32 s31, 31")
    a("s_cbranch_scc1 pj_wait")
    a(f"global_load_dword v{ACC+6}, v{ACC+2}, s[10:11] sc1")
    spin(a, "pj_grp", ACC + 2, ACC + 6, 32, SLEEP)
    a.label("pj_wait")
    a("s_barrier")
    stamp(a, 9)
    def oload(j):
        a(f"buffer_load_dwordx4 {vr(OFR+4*j,4)}, v2, s[20:23], s28 offen sc1")
        if j < 9: a("s_addk_i32 s28, 0x1000")
    for j in range(OPRE): oload(j)
    if "fine" in X: stamp(a, 1)
    a("s_mul_i32 s31, s24, 3072")
    a("s_add_u32 s31, s31, 20480")
    a("v_lshl_add_u32 v126, v1, 4, s31")
    a("s_xor_b32 s31, s24, 4")
    a("s_mul_i32 s31, s31, 3072")
    a("s_add_u32 s31, s31, 20480")
    a("v_lshl_add_u32 v127, v1, 4, s31")
    for j in range(10):
        nj = j + 2
        b = WBUF[j % 2]
        if j in (2, 6):
            for r in (4, 5, 6): a(f"v_add_u32 v{r}, {40960 if j == 2 else -40960 & 0xffffffff}, v{r}")
        if j == 8: a("s_barrier")
        rd = w_reads(j % 2, nj) if nj < 10 else []
        if j + OPRE < 10: oload(j + OPRE)
        a(f"s_waitcnt vmcnt({min(9, j + OPRE) - j})")
        if "fine" in X and j == 0: stamp(a, 2)
        if "fine" in X and j == 9: stamp(a, 3)
        for T in range(5):
            c = vr(ACC + 4 * T, 4)
            if j >= 1: a(f"s_waitcnt lgkmcnt({lg(j, T)})")
            a(f"v_mfma_f32_16x16x32_bf16 {c}, {vr(b+4*T,4)}, {vr(OFR+4*j,4)}, " + ("0" if j == 0 else c))
            for r in rd[2*T:2*T+2]: a(r)
    a("s_nop 4")
    a(f"ds_write_b128 v126, {vr(ACC+8,4)} offset:2048")
    a(f"ds_write_b128 v126, {vr(ACC+12,4)}")
    a("s_nop 0")
    a(f"ds_write_b128 v126, {vr(ACC+16,4)} offset:1024")
    for p in range(6):
        a(f"v_lshlrev_b32 v{8+2*p}, 16, v{XP+p}")
        a(f"v_and_b32 v{9+2*p}, 0xffff0000, v{XP+p}")
    a("s_waitcnt lgkmcnt(0)")
    a("s_barrier")
    for T in range(3):
        a(f"ds_read_b128 {vr(OFR+4*T,4)}, v127 offset:{T*1024}")
    for T in range(3):
        c = ACC + 4 * T
        a(f"s_waitcnt lgkmcnt({2-T})")
        for r in range(4): a(f"v_add_f32 v{c+r}, v{c+r}, v{OFR+4*T+r}")
        for r in range(4): a(f"v_fma_f32 v{c+r}, v{c+r}, v{GR+4*T+r}, v{8+4*T+r}")
        a(f"v_cvt_pk_bf16_f32 v{c}, v{c}, v{c+1}")
        a(f"v_cvt_pk_bf16_f32 v{c+1}, v{c+2}, v{c+3}")
        if T < 2:
            a(f"buffer_store_dwordx2 {vr(c,2)}, v3, s[12:15], s38 offen offset:{T*32} {OST}")
            if T == 1 and not (STAMP or DIAG):
                a("s_cmp_lg_u32 s53, 0")
                a("s_cbranch_scc1 k2_exit")
        else:
            a(f"buffer_store_dwordx2 {vr(c,2)}, v3, s[12:15], s37 offen offset:64 {OST}")
    stamp(a, 10)
    if STAMP: a("s_waitcnt vmcnt(0)")
    stamp_end(a, 1, 2)
    a("s_endpgm")
    QD = [56, 60, 64,  96, 100, 104,  80, 84, 68,  76, 88, 92]
    a.label("pj_nokey")
    a("s_mov_b32 s27, 0")
    a.label("pj_nk")
    a("s_sleep 2")
    sel_load(a)
    a("s_add_u32 s27, s27, 1")
    a("s_cmp_ge_u32 s27, 0x20000")
    a("s_waitcnt vmcnt(0)")
    a("s_cbranch_scc1 pj_sel")
    a("v_cmp_eq_u32 vcc, 0, v127")
    a("s_cbranch_vccnz pj_nk")
    a("s_branch pj_sel")
    a.label("pj_hit0")
    a("s_waitcnt vmcnt(2)")
    a("v_readfirstlane_b32 s31, v31")
    a(f"s_cmp_ge_u32 s31, {2*NMOE}")
    a("s_cbranch_scc1 pj_moe_ok")
    spin(a, "pj_moe", 30, 31, 2 * NMOE, 4)
    a("s_ff1_i32_b32 s42, s41")
    a("s_bitset0_b32 s41, s42")
    a("v_readlane_b32 s43, v127, s42")
    a("v_lshlrev_b32 v126, 4, v7")
    a("s_mul_i32 s31, s42, 2560")
    a("s_lshl_b32 s44, s50, 1")
    a("s_add_u32 s31, s31, s44")
    a(f"s_add_u32 s31, s31, {PART_OFF}")
    a("s_lshl_b32 s44, s48, 1")
    a("s_add_u32 s44, s44, s31")
    for h in range(NREP):
        a(f"buffer_load_dwordx4 {vr(QD[3*h],4)}, v126, s[20:23], s44 offen sc1")
        a(f"buffer_load_dwordx4 {vr(QD[3*h+1],4)}, v126, s[20:23], s44 offen offset:64 sc1")
        a(f"buffer_load_dwordx4 {vr(QD[3*h+2],4)}, v126, s[20:23], s31 offen offset:128 sc1")
        if h < NREP - 1:
            a("s_addk_i32 s31, 20480")
            a("s_addk_i32 s44, 20480")
    a("s_bitcmp1_b32 s46, 8")
    a("s_bitset1_b32 s46, 8")
    a("s_cbranch_scc0 pj_ret0")
    a.label("pj_hit")
    a("s_and_b32 s31, s43, 0xffff0000")
    a("s_ashr_i32 s44, s31, 31")
    a("s_orn2_b32 s44, 0x80000000, s44")
    a("s_xor_b32 s31, s31, s44")
    a("s_and_b32 s31, s31, 0xffff0000")
    a(f"v_mul_f32 v126, s31, v{ACC+4}")
    a("v_exp_f32 v126, v126")
    a("s_bfe_u32 s31, s43, 0x40003")
    a("s_sub_u32 s31, 15, s31")
    a("v_add_f32 v126, 1.0, v126")
    a("v_rcp_f32 v126, v126")
    a("v_cmp_eq_u32 s[44:45], s31, v0")
    a("v_cvt_pk_bf16_f32 v126, v126, v126")
    a("v_and_b32 v126, 0xffff0000, v126")
    a("s_bitcmp1_b32 s46, 9")
    a("s_bitset1_b32 s46, 9")
    a("s_cbranch_scc0 pj_nw")
    a("s_waitcnt vmcnt(0)")
    a.label("pj_nw")
    for h in range(1, NREP):
        for r in range(0, 12, 2): a(f"v_pk_add_f32 {vr(56+r,2)}, {vr(56+r,2)}, {vr(QD[3*h+r//4]+r%4,2)}")
    a("s_mov_b64 exec, s[44:45]")
    for r in range(12): a(f"v_fmac_f32 v{GR+r}, v{56+r}, v126")
    a("s_mov_b64 exec, -1")
    a("s_cmp_lg_u32 s41, 0")
    a("s_cbranch_scc1 pj_moe_ok")
    a("s_branch pj_gate")
    late(a)

def lg(j, T):
    n = 2 * (4 - T) + (10 if j + 1 < 10 else 0) + (2 * T if j + 2 < 10 else 0)
    return min(n, 12)

def touch_setup(a):
    a("s_cmp_ge_u32 s24, 6")
    a("s_cselect_b32 s12, s10, s4")
    a("s_cselect_b32 s13, s11, s5")
    a(f"s_mov_b32 s14, {X_BYTES}")
    a(f"s_cselect_b32 s14, {WS_USED}, s14")
    a("s_cselect_b32 s62, 5, 10")
    a("s_lshl_b32 s62, s62, 7")
    a("s_mov_b32 s15, 0x20000")
    a("s_and_b32 s58, s2, 1")
    a("s_lshr_b32 s63, s2, 3")
    a("s_lshl_b32 s57, s58, 5")
    a("s_add_u32 s57, s57, s63")
    a("s_mul_i32 s57, s57, 12800")
    a(f"s_add_u32 s57, s57, {WOP_OFF}")
    a("s_lshl_b32 s31, s60, 2")
    a("s_and_b32 s63, s25, 3")
    a("s_add_u32 s31, s31, s63")
    a("s_mul_i32 s31, s31, 20480")
    a("s_mul_i32 s63, s58, 640")
    a("s_add_u32 s31, s31, s63")
    a("s_cmp_ge_u32 s24, 6")
    a("s_cselect_b32 s57, s57, s31")
    a("s_and_b32 s31, s24, 1")
    a("s_mul_i32 s31, s31, s62")
    a("s_mul_i32 s31, s31, 12")
    a("s_add_u32 s57, s57, s31")
    a("s_sub_u32 s58, 8, s24")
    a("s_min_u32 s58, s58, 5")
    a(f"v_mul_u32_u24 v{T0+4}, 13108, v1")
    a(f"v_lshrrev_b32 v{T0+4}, 16, v{T0+4}")
    a(f"v_mul_u32_u24 v{T0+5}, 5, v{T0+4}")
    a(f"v_sub_u32 v{T0+5}, v1, v{T0+5}")
    a(f"v_mul_u32_u24 v{T0+6}, s62, v{T0+4}")
    a(f"v_lshl_add_u32 v{T0+6}, v{T0+5}, 7, v{T0+6}")

def attention(a):
    a("s_and_b32 s25, s2, 7")
    a("s_lshl_b32 s25, s25, 2")
    a("s_lshr_b32 s26, s2, 6")
    a("s_add_u32 s25, s25, s26")
    a("s_bfe_u32 s26, s2, 0x30003")
    a("s_load_dwordx2 s[4:5], s[0:1], 0")
    a("s_load_dwordx2 s[8:9], s[0:1], 64")
    a("s_lshl_b32 s60, s26, 2")
    a("s_lshr_b32 s61, s25, 3")
    a("s_add_u32 s60, s60, s61")
    a("s_and_b32 s61, s25, 7")
    a(f"s_mov_b32 s44, {TILE_B}")
    a(f"s_mov_b32 s52, {32*TILE_B}")
    a("s_mul_i32 s45, s25, 1280")
    a("s_add_u32 s45, s45, 40960")
    a("s_mul_i32 s46, s25, 320")
    a("s_add_u32 s46, s46, 81920")
    a("s_movk_i32 s47, 320")
    a("s_movk_i32 s48, 10240")
    piece_split(a, 0, T0, T0 + 1, T0 + 2)
    a(f"v_mad_u32_u24 v2, v{T0}, s47, v{T0+1}")
    a(f"v_mad_u32_u24 v3, v{T0}, s48, v{T0+1}")
    a("v_add_u32 v2, s45, v2")
    a("v_add_u32 v3, s46, v3")
    a("s_cmp_lt_u32 s24, 2")
    a("s_cselect_b32 s49, s47, s48")
    a("s_cselect_b32 s50, s45, s46")
    a("s_cselect_b32 s39, 8, 16")
    a("s_lshl_b32 s39, s39, 10")
    a(f"v_and_b32 v{T0+3}, 127, v0")
    a(f"v_add_u32 v{T0+3}, 512, v{T0+3}")
    piece_split(a, T0 + 3, T0, T0 + 1, T0 + 2)
    a(f"v_mad_u32_u24 v4, v{T0}, s49, v{T0+1}")
    a("v_add_u32 v4, s50, v4")
    a("s_mov_b32 s28, 0")
    a(f"s_mov_b32 s59, {4*TILE_B}")
    a("s_lshl_b32 s30, s24, 10")
    a(f"v_lshrrev_b32 v{T0}, 5, v1")
    a(f"v_and_b32 v{T0+1}, 31, v1")
    kq_addr(a)
    a(f"v_lshlrev_b32 v{T0+2}, 31, v{T0}")
    a(f"v_or_b32 v{T0+2}, v{T0+2}, v7")
    a("s_lshl_b32 s51, s26, 3")
    a("s_and_b32 s31, s24, 3")
    a("s_lshl_b32 s31, s31, 1")
    a("s_add_u32 s51, s51, s31")
    a("s_lshr_b32 s53, s24, 2")
    a("s_add_u32 s51, s51, s53")
    a("s_xor_b32 s37, s51, 1")
    a("s_mul_i32 s31, s51, s44")
    a("s_mul_i32 s37, s37, s44")
    a("s_mul_i32 s29, s25, 1280")
    a("s_add_u32 s31, s31, s29")
    a("s_add_u32 s37, s37, s29")
    a("s_waitcnt lgkmcnt(0)")
    srd(a, 20, 10, WS_USED)
    stamp(a, 1)
    dma_chunk(a, "k2_d0")
    for sl, so in ((0, 31), (1, 37)):
        a(f"buffer_load_dwordx4 {vr(QLO[sl],4)}, v5, s[20:23], s{so} offen")
        a(f"buffer_load_dwordx2 {vr(QHI[sl],2)}, v{T0+2}, s[20:23], s{so} offen")
    a(f"s_add_u32 s30, s30, {CH}")
    touch_setup(a)
    a("s_mul_i32 s31, s53, 5120")
    a("v_add_u32 v5, s31, v5")
    a("v_add_u32 v7, s31, v7")
    vrow(a, T0 + 1, T0 + 3)
    a(f"v_mul_u32_u24 v6, 320, v{T0}")
    a(f"v_lshl_add_u32 v6, v{T0+1}, 4, v6")
    a("s_add_u32 s31, s31, 10240")
    a("v_add_u32 v6, s31, v6")
    a("s_mov_b32 s40, 0x000fffff")
    a("s_mov_b32 s41, 0x000fffff")
    a("s_mov_b32 s27, 0")
    a(f"s_mov_b32 s35, {(-3*CH) & 0xffffffff}")
    a(f"s_mov_b32 s36, {CH}")
    a("s_mov_b32 s33, s36")
    a("s_mov_b32 s34, s35")
    a("s_mul_i32 s56, s53, 7")
    a("s_sub_u32 s55, 7, s56")
    a("s_mov_b32 s42, 0x11000000")
    a("s_mov_b32 s43, 0x11000000")
    a(f"v_mov_b32 v{T0+3}, 0x3f803f80")
    a(f"v_cndmask_b32 v{VV[0]}, 0, v{T0+3}, s[42:43]")
    for r in range(1, 16): a(f"v_mov_b32 v{VV[0]+r}, v{VV[0]}")
    for r in range(8): a(f"v_mov_b32 v{P+r}, 0")
    for r in range(32): a(f"v_mov_b32 v{OO[0]+r}, 0")
    for r in range(4): a(f"v_mov_b32 v{SS[1]+12+r}, 0")
    stamp(a, 2)
    a("s_waitcnt vmcnt(0)")
    a("s_barrier")
    stamp(a, 3)
    a(f"ds_read_b128 {vr(KLO[0],4)}, v5")
    a(f"ds_read_b64 {vr(KHI[0],2)}, v7")
    dma_chunk(a, "k2_d1")
    a(f"s_add_u32 s30, s30, {CH}")
    a("s_waitcnt lgkmcnt(0)")
    a(f"v_mfma_f32_32x32x16_bf16 {vr(SS[0],16)}, {vr(KLO[0],4)}, {vr(QLO[0],4)}, 0")
    a(f"v_mfma_f32_32x32x8_bf16 {vr(SS[0],16)}, {vr(KHI[0],2)}, {vr(QHI[0],2)}, {vr(SS[0],16)}")
    dma_chunk(a, "k2_d2")
    a(f"s_add_u32 s30, s30, {CH}")
    a(f"s_setprio {TOP}")
    a("s_nop 1")
    stamp(a, 4)
    AL = os.environ.get("AL2", "0")
    if AL:
        a.raw(".p2align 6")
        for _ in range(int(AL)): a("s_nop 0")
    else:
        a.raw(".p2align 3")
    a.label("k2_loop")
    for u in range(8): unit(a, u)
    a("s_cmp_lt_u32 s27, 8")
    a("s_cbranch_scc1 k2_loop")
    stamp(a, 5)
    if "itst" in X:
        a("s_lshl_b32 s96, s2, 3")
        a("s_add_u32 s96, s96, s24")
        a("s_lshl_b32 s96, s96, 8")
        a(f"s_add_u32 s96, s96, {STAMP_OFF + (3<<20)}")
        a("v_lshl_add_u32 v124, v1, 2, s96")
        a("global_store_dword v124, v125, s[10:11]")
    O = OO[0]
    a(f"v_mfma_f32_32x32x16_bf16 {vr(OO[1],16)}, {vr(VV[1],4)}, {vr(P,4)}, {vr(OO[1],16)}")
    a(f"v_cvt_pk_bf16_f32 v{P+6}, v{SS[1]+12}, v{SS[1]+13}")
    a(f"v_cvt_pk_bf16_f32 v{P+7}, v{SS[1]+14}, v{SS[1]+15}")
    a("s_mul_i32 s31, s24, 3328")
    a("s_xor_b32 s33, s24, 4")
    a(f"v_mfma_f32_32x32x16_bf16 {vr(OO[1],16)}, {vr(VV[1]+4,4)}, {vr(P+4,4)}, {vr(OO[1],16)}")
    a("s_mul_i32 s33, s33, 3328")
    a("s_add_u32 s31, s31, 40960")
    a("s_add_u32 s33, s33, 40960")
    a("v_lshl_add_u32 v26, v1, 4, s31")
    a("v_lshl_add_u32 v27, v1, 2, s31")
    a("v_lshl_add_u32 v28, v1, 4, s33")
    a("v_lshl_add_u32 v29, v1, 2, s33")
    a("s_mul_i32 s29, s51, 40960")
    a(f"s_add_u32 s29, s29, {O_OFF}")
    a("s_lshr_b32 s31, s25, 1")
    a("s_lshl_b32 s31, s31, 9")
    a("s_add_u32 s30, s29, s31")
    for g in range(3):
        a(f"ds_write_b128 v26, {vr(OO[1]+4*g,4)} offset:{g*1024}")
    a(f"ds_write_b32 v27, v{OO[1]+12} offset:3072")
    a("s_and_b32 s31, s25, 1")
    a("s_lshl_b32 s31, s31, 3")
    a("s_add_u32 s30, s30, s31")
    a("s_add_u32 s30, s30, 32768")
    a("s_lshl_b32 s31, s25, 10")
    a("s_add_u32 s29, s29, s31")
    a("s_setprio 0")
    a("s_waitcnt vmcnt(0)")
    a("v_cmp_eq_u32 vcc, 0, v127")
    a("s_cbranch_vccnz pj_nokey")
    a.label("pj_sel")
    a("s_sub_u32 s31, 127, s49")
    a("v_bfe_u32 v30, v127, 7, 7")
    a("v_cmp_eq_u32 vcc, s31, v30")
    a("s_and_b32 s47, vcc_lo, 0xff")
    a("s_cbranch_scc0 pj_nh")
    a(f"v_mov_b32 v30, {MOE_CNT}")
    a("global_load_dword v31, v30, s[10:11] sc1")
    a.label("pj_nh")
    a("s_waitcnt lgkmcnt(0)")
    a("s_barrier")
    for g in range(3):
        a(f"ds_read_b128 {vr(SS[0]+4*g,4)}, v28 offset:{g*1024}")
    a(f"ds_read_b32 v{SS[0]+12}, v29 offset:3072")
    a("v_lshrrev_b32 v2, 16, v2")
    a("v_or_b32 v0, v2, v3")
    a("v_lshlrev_b32 v2, 4, v1")
    a(f"v_mov_b32 v7, {f32(2.0**64)}")
    a("s_waitcnt lgkmcnt(0)")
    a(f"v_add_f32 v{O+12}, v{O+12}, v{SS[0]+12}")
    for p in range(6):
        a(f"v_pk_add_f32 {vr(O+2*p,2)}, {vr(O+2*p,2)}, {vr(SS[0]+2*p,2)}")
    a(f"v_med3_f32 v3, v{O+12}, v7, s54")
    a(f"v_cmp_neq_f32 vcc, v{O+12}, v3")
    a("s_cbranch_vccnz k2_slow")
    a.label("k2_fin")
    a(f"v_rcp_f32 v4, v{O+12}")
    a("s_nop 0")
    for p in range(6):
        a(f"v_pk_mul_f32 {vr(O+2*p,2)}, {vr(O+2*p,2)}, v[4:5] op_sel_hi:[1,0]")
    for p in range(6):
        a(f"v_cvt_pk_bf16_f32 v{O+p}, v{O+2*p}, v{O+2*p+1}")
    a(f"buffer_store_dwordx4 {vr(O,4)}, v2, s[20:23], s29 offen sc1")
    a("s_mov_b32 exec_hi, 0")
    a(f"buffer_store_dwordx2 {vr(O+4,2)}, v2, s[20:23], s30 offen sc1")
    a("s_mov_b64 exec, -1")
    stamp(a, 6)
    project(a)
    TS = OO[1]
    C = SS[1]; M = TS + 3
    a.label("k2_slow")
    a(f"v_lshrrev_b32 v{TS}, 5, v1")
    a(f"v_and_b32 v{TS+1}, 31, v1")
    kq_addr(a)
    a("v_add_u32 v5, s45, v5")
    a("v_add_u32 v7, s45, v7")
    vrow(a, TS + 1, TS + 2)
    a(f"v_mul_u32_u24 v6, 10240, v{TS}")
    a(f"v_lshl_add_u32 v6, v{TS+1}, 4, v6")
    a("v_add_u32 v6, s46, v6")
    a("v_add_u32 v4, 20480, v6")
    for r in range(16): a(f"v_mov_b32 v{C+r}, 0")
    a(f"v_mov_b32 v{M}, 0xff800000")
    a("s_mov_b32 s32, 0")
    a.label("k2_s_pass")
    a("s_mov_b32 s28, 0")
    a.label("k2_s_loop")
    a(f"buffer_load_dwordx4 {vr(KLO[0],4)}, v5, s[20:23], s28 offen")
    a(f"buffer_load_dwordx2 {vr(KHI[0],2)}, v7, s[20:23], s28 offen")
    a("s_mov_b64 exec, s[40:41]")
    a(f"buffer_load_dwordx4 {vr(VV[0],4)}, v6, s[20:23], s28 offen")
    a(f"buffer_load_dwordx4 {vr(VV[0]+4,4)}, v4, s[20:23], s28 offen")
    a("s_mov_b64 exec, -1")
    a("s_waitcnt vmcnt(0)")
    a(f"v_mfma_f32_32x32x16_bf16 {vr(SS[0],16)}, {vr(KLO[0],4)}, {vr(QLO[0],4)}, {vr(C,16)}")
    a(f"v_mfma_f32_32x32x8_bf16 {vr(SS[0],16)}, {vr(KHI[0],2)}, {vr(QHI[0],2)}, {vr(SS[0],16)}")
    a("s_nop 11")
    a("s_cmp_eq_u32 s32, 0")
    a("s_cbranch_scc0 k2_s_p2")
    for i in range(0, 16, 2):
        a(f"v_max3_f32 v{M}, v{SS[0]+i}, v{SS[0]+i+1}, v{M}")
    a("s_branch k2_s_next")
    a.label("k2_s_p2")
    for r in range(16): a(f"v_exp_f32 v{SS[0]+r}, v{SS[0]+r}")
    a("s_nop 0")
    for r in range(8): a(f"v_cvt_pk_bf16_f32 v{P+r}, v{SS[0]+2*r}, v{SS[0]+2*r+1}")
    a("s_nop 1")
    a(f"v_mfma_f32_32x32x16_bf16 {vr(O,16)}, {vr(VV[0],4)}, {vr(P,4)}, {vr(O,16)}")
    a(f"v_mfma_f32_32x32x16_bf16 {vr(O,16)}, {vr(VV[0]+4,4)}, {vr(P+4,4)}, {vr(O,16)}")
    a.label("k2_s_next")
    a(f"s_add_u32 s28, s28, {TILE_B}")
    a(f"s_cmp_lt_u32 s28, {64*TILE_B}")
    a("s_cbranch_scc1 k2_s_loop")
    a("s_nop 11")
    a("s_cmp_eq_u32 s32, 0")
    a("s_cbranch_scc0 k2_fin")
    a(f"v_mov_b32 v{TS+7}, v{M}")
    a("s_nop 1")
    a(f"v_permlane32_swap_b32 v{M}, v{TS+7}")
    a(f"v_max_f32 v{M}, v{M}, v{TS+7}")
    for r in range(16): a(f"v_sub_f32 v{C+r}, 0, v{M}")
    for r in range(16): a(f"v_mov_b32 v{O+r}, 0")
    a("s_mov_b32 s32, 1")
    a("s_branch k2_s_pass")

def silu_bf16(a, x, t):
    a(f"v_mul_f32 v{t}, {f32(-math.log2(math.e))}, v{x}")
    a(f"v_exp_f32 v{t}, v{t}")
    a("s_nop 0")
    a(f"v_add_f32 v{t}, 1.0, v{t}")
    a(f"v_rcp_f32 v{t}, v{t}")
    a("s_nop 0")
    a(f"v_mul_f32 v{x}, v{x}, v{t}")
    a(f"v_cvt_pk_bf16_f32 v{x}, v{x}, v{x}")
    a(f"v_and_b32 v{x}, 0xffff0000, v{x}")

def rnd_bf16(a, x):
    a(f"v_cvt_pk_bf16_f32 v{x}, v{x}, v{x}")
    a(f"v_and_b32 v{x}, 0xffff0000, v{x}")

XSL = 61440
UL = XSL + 10368
KL = UL + 1536

def moe(a):
    a("s_load_dwordx4 s[4:7], s[0:1], 40")
    a("s_load_dwordx2 s[8:9], s[0:1], 56")
    a("s_sub_u32 s25, s2, 256")
    a("s_and_b32 s26, s25, 7")
    a("s_mul_i32 s26, s26, 12")
    a("s_lshr_b32 s27, s25, 3")
    a("s_add_u32 s26, s26, s27")
    a("v_lshrrev_b32 v7, 4, v1")
    a("v_and_b32 v4, 15, v1")
    a("v_lshlrev_b32 v5, 4, v1")
    a("s_waitcnt lgkmcnt(0)")
    srd(a, 20, 10, WS_USED)
    a("s_cmp_lt_u32 s24, 4")
    a("s_cbranch_scc1 moe_c")
    a("s_cmp_eq_u32 s24, 7")
    a("s_cbranch_scc1 k2_exit")
    a("s_cmp_eq_u32 s24, 5")
    a("s_cselect_b32 s12, s6, s4")
    a("s_cselect_b32 s13, s7, s5")
    a("v_lshrrev_b32 v2, 1, v1")
    a("v_mul_u32_u24 v2, 3072, v2")
    a("v_and_b32 v3, 1, v1")
    a("v_lshl_add_u32 v2, v3, 4, v2")
    a("s_lshl_b32 s28, s26, 5")
    a(f"s_mov_b32 s29, {32*3072}")
    a("s_cmp_lg_u32 s24, 6")
    a("s_cbranch_scc1 moe_st")
    a("s_mov_b32 s12, s8")
    a("s_mov_b32 s13, s9")
    a("v_mov_b32 v2, v5")
    a("s_mul_i32 s28, s26, 20480")
    a("s_movk_i32 s29, 1024")
    a.label("moe_st")
    a(f"s_mov_b32 s14, {WG_BYTES}")
    a("s_mov_b32 s15, 0x20000")
    a("s_sub_u32 s30, s24, 4")
    a("s_mul_i32 s30, s30, 20480")
    a("s_and_b32 s27, s26, 3")
    a("s_mul_i32 s27, s27, 5")
    a("s_mov_b32 s33, 0")
    a("s_setprio 0")
    a("s_barrier")
    a.label("moe_stl")
    a("s_lshl_b32 s31, s27, 10")
    a("s_add_u32 m0, s30, s31")
    a("s_mul_i32 s31, s27, s29")
    a("s_add_u32 s31, s31, s28")
    a("buffer_load_dwordx4 v2, s[12:15], s31 offen lds")
    a("s_add_u32 s27, s27, 1")
    a("s_cmp_eq_u32 s27, 20")
    a("s_cselect_b32 s27, 0, s27")
    a("s_add_u32 s33, s33, 1")
    a("s_cmp_lt_u32 s33, 20")
    a(f"s_waitcnt vmcnt({PACE})")
    a("s_cbranch_scc1 moe_stl")
    a("s_waitcnt vmcnt(0)")
    a("s_barrier")
    a("s_endpgm")
    a.label("moe_c")
    a("s_cmp_lg_u32 s24, 3")
    a("s_cbranch_scc1 moe_w0")
    a("v_lshlrev_b32 v3, 3, v1")
    a(f"s_mov_b32 s31, {CAND_OFF}")
    a("buffer_load_dwordx2 v[10:11], v3, s[20:23], s31 offen")
    a("v_mov_b32 v9, 0")
    a("s_mov_b32 s27, 0")
    a("s_waitcnt vmcnt(0)")
    a.label("moe_top")
    top8_rounds(a, 10, 11, 8, 31)
    a("s_mov_b32 m0, s27")
    a("s_add_u32 s27, s27, 1")
    a("v_cmp_ne_u32 s[40:41], s31, v10")
    a("v_cmp_ne_u32 s[42:43], s31, v11")
    a("v_writelane_b32 v9, s31, m0")
    a("s_cmp_lt_u32 s27, 8")
    a("v_cndmask_b32 v10, 0, v10, s[40:41]")
    a("v_cndmask_b32 v11, 0, v11, s[42:43]")
    a("s_cbranch_scc1 moe_top")
    a("s_cmp_ge_u32 s25, 32")
    a("s_cbranch_scc1 moe_nk")
    a("v_lshlrev_b32 v3, 2, v1")
    a("s_mov_b64 exec, 0xff")
    a("s_lshl_b32 s31, s25, 7")
    a(f"s_add_u32 s31, s31, {SEL_OFF}")
    a("buffer_store_dword v9, v3, s[20:23], s31 offen sc1")
    a("s_mov_b64 exec, -1")
    a.label("moe_nk")
    stamp(a, 1)
    a("s_mov_b32 s27, 0")
    a(f"s_mov_b32 s30, {XSL}")
    a.label("moe_xs")
    a("v_readlane_b32 s31, v9, s27")
    a("s_mov_b32 m0, s30")
    a("s_bfe_u32 s33, s31, 0x4000a")
    a("s_sub_u32 s33, 15, s33")
    a("s_lshl_b32 s33, s33, 3")
    a("s_and_b32 s31, s31, 7")
    a("s_or_b32 s33, s33, s31")
    a("s_mul_i32 s33, s33, 1280")
    a(f"s_add_u32 s33, s33, {XS_OFF}")
    a("buffer_load_dwordx4 v5, s[20:23], s33 offen lds")
    a("s_mov_b64 exec, 0xffff")
    a("buffer_load_dwordx4 v5, s[20:23], s33 offen offset:1024 lds")
    a("s_mov_b64 exec, -1")
    a("s_addk_i32 s30, 1296")
    a("s_add_u32 s27, s27, 1")
    a("s_cmp_lt_u32 s27, 8")
    a("s_cbranch_scc1 moe_xs")
    a("s_waitcnt vmcnt(0)")
    a("s_barrier")
    a("s_branch moe_dn")
    a.label("moe_w0")
    a("s_barrier")
    a("s_cmp_ge_u32 s24, 2")
    a("s_cbranch_scc1 moe_dn")
    a("v_lshlrev_b32 v6, 3, v4")
    a("v_lshl_add_u32 v6, v7, 8, v6")
    a("s_mul_i32 s31, s24, 20480")
    a("v_add_u32 v6, s31, v6")
    a("v_bfe_u32 v9, v1, 2, 2")
    a("v_and_b32 v8, 1, v1")
    a("v_lshl_add_u32 v9, v9, 1, v8")
    a("v_mul_u32_u24 v8, 1296, v9")
    a("v_lshl_add_u32 v8, v7, 4, v8")
    a(f"v_add_u32 v8, {XSL}, v8")
    a(f"v_add_u32 v5, {UL}, v5")
    a("s_setprio 0")
    a("s_waitcnt vmcnt(0)")
    a("s_barrier")
    stamp(a, 2)
    for half in range(2):
        for k in range(10):
            ks = half * 10 + k
            a(f"ds_read_b64_tr_b16 {vr(16+8*k,2)}, v6 offset:{ks*1024}")
            a(f"ds_read_b64_tr_b16 {vr(18+8*k,2)}, v6 offset:{ks*1024+128}")
            a(f"ds_read_b128 {vr(20+8*k,4)}, v8 offset:{ks*64}")
            if k in (4, 7): a("s_waitcnt lgkmcnt(6)")
        a("s_waitcnt lgkmcnt(0)")
        a("s_setprio 3")
        for k in range(10):
            a(f"v_mfma_f32_16x16x32_bf16 v[12:15], {vr(16+8*k,4)}, {vr(20+8*k,4)}, " + ("0" if half == 0 and k == 0 else "v[12:15]"))
        if half == 0: a("s_setprio 0")
    a("s_cmp_eq_u32 s24, 0")
    a("s_nop 6")
    a("s_cbranch_scc1 moe_g")
    a("ds_write_b128 v5, v[12:15]")
    a("s_waitcnt lgkmcnt(0)")
    a("s_barrier")
    a("s_endpgm")
    a.label("moe_g")
    for r in range(4): a(f"v_mul_f32 v{16+r}, {f32(-math.log2(math.e))}, v{12+r}")
    for r in range(4): a(f"v_exp_f32 v{16+r}, v{16+r}")
    for r in range(4): a(f"v_add_f32 v{16+r}, 1.0, v{16+r}")
    for r in range(4): a(f"v_rcp_f32 v{16+r}, v{16+r}")
    a("s_barrier")
    a("ds_read_b128 v[20:23], v5")
    for r in range(4): a(f"v_mul_f32 v{12+r}, v{12+r}, v{16+r}")
    a("v_lshlrev_b32 v5, 3, v1")
    a("s_waitcnt lgkmcnt(0)")
    for r in range(4): a(f"v_mul_f32 v{12+r}, v{12+r}, v{20+r}")
    a(f"v_add_u32 v5, {UL+1024}, v5")
    a("v_cvt_pk_bf16_f32 v12, v12, v13")
    a("v_cvt_pk_bf16_f32 v13, v14, v15")
    a("ds_write_b64 v5, v[12:13]")
    a("s_waitcnt lgkmcnt(0)")
    a("s_barrier")
    a("s_endpgm")
    a.label("moe_dn")
    a("v_lshrrev_b32 v6, 2, v1")
    a("v_mul_u32_u24 v6, 1280, v6")
    a("v_and_b32 v8, 3, v1")
    a("v_lshl_add_u32 v6, v8, 3, v6")
    a("s_sub_u32 s27, s24, 2")
    a("s_mul_i32 s31, s27, 640")
    a("s_add_u32 s31, s31, 40960")
    a("v_add_u32 v6, s31, v6")
    a("v_mul_u32_u24 v10, 5120, v7")
    a("v_lshl_add_u32 v10, v4, 2, v10")
    a("s_mul_i32 s34, s27, 1280")
    a("s_and_b32 s31, s26, 3")
    a("s_mul_i32 s31, s31, 20480")
    a("s_add_u32 s34, s34, s31")
    a(f"s_add_u32 s34, s34, {PART_OFF}")
    a("v_lshlrev_b32 v5, 3, v1")
    a(f"v_add_u32 v5, {UL+1024}, v5")
    a("s_setprio 0")
    a("s_waitcnt vmcnt(0)")
    a("s_barrier")
    for k in range(20):
        a(f"ds_read_b64_tr_b16 {vr(16+2*k,2)}, v6 offset:{k*32}")
        if k == 13: a("s_waitcnt lgkmcnt(4)")
    a("s_barrier")
    a("s_barrier")
    a("ds_read_b64 v[12:13], v5")
    a("s_waitcnt lgkmcnt(0)")
    stamp(a, 2)
    a("s_setprio 3")
    dreg = lambda k: 56 + 4 * k if k < 18 else 16 + 4 * (k - 18)
    for k in range(20):
        a(f"v_mfma_f32_16x16x16_bf16 {vr(dreg(k),4)}, v[12:13], {vr(16+2*k,2)}, 0")
    a("s_setprio 0")
    for k in range(20):
        a(f"buffer_atomic_add_f32 v{dreg(k)}, v10, s[20:23], s34 offen offset:{k*64}")
        a(f"buffer_atomic_add_f32 v{dreg(k)+1}, v10, s[20:23], s34 offen offset:{2560+k*64}")
        if 2*k+2 > APACE and k < 19: a(f"s_waitcnt vmcnt({APACE})")
    a(f"v_mov_b32 v2, {MOE_CNT}")
    a("v_mov_b32 v3, 1")
    a("s_mov_b64 exec, 1")
    a("s_waitcnt vmcnt(0)")
    a("global_atomic_add v2, v3, s[10:11]")
    stamp_end(a, 1, 2)
    a.label("k2_exit")
    a("s_endpgm")

def gen():
    a = Asm()
    a.raw(f".globl {NAME}\n.p2align 8\n.type {NAME},@function")
    a.label(NAME)
    stamp(a, 0)
    a("s_load_dwordx2 s[10:11], s[0:1], 80")
    a("v_lshrrev_b32 v2, 6, v0")
    a("v_and_b32 v1, 63, v0")
    a(f"s_mov_b32 s54, {f32(2.0**-64)}")
    a("v_readfirstlane_b32 s24, v2")
    a("s_cmp_ge_u32 s2, 256")
    a("s_cbranch_scc1 k2_other")
    attention(a)
    a.label("k2_other")
    a("s_setprio 3")
    a(f"s_cmp_ge_u32 s2, {GRID}")
    a("s_cbranch_scc1 k2_exit")
    moe(a)
    return a
```

```python
from common import *

NAME = "qkv_kernel"
NSLOT = 4
EX = NSLOT * 32768
LDS = EX + 2048
BLOCK = 512
ST_FLAG = os.environ.get("K1ST", "sc1")

def dma_stage(a, fill=None):
    seq = [("s_mov_b32 m0, s30", "s_add_u32 s31, s28, 10240", "buffer_load_dwordx4 v2, s[12:15], s28 offen lds"),
           ("s_addk_i32 m0, 0x4000", "s_add_u32 s33, s29, 15360", "buffer_load_dwordx4 v4, s[16:19], s29 offen lds"),
           (f"s_addk_i32 m0, {0x400-0x4000}", "s_addk_i32 s28, 128", "buffer_load_dwordx4 v3, s[12:15], s31 offen lds"),
           ("s_addk_i32 m0, 0x4000", "s_addk_i32 s31, 10240", "buffer_load_dwordx4 v4, s[16:19], s33 offen lds"),
           (f"s_addk_i32 m0, {0x400-0x4000}", "s_addk_i32 s33, 15360", "buffer_load_dwordx4 v2, s[12:15], s31 offen lds"),
           ("s_addk_i32 m0, 0x4000", "s_addk_i32 s31, 10240", "buffer_load_dwordx4 v4, s[16:19], s33 offen lds"),
           (f"s_addk_i32 m0, {0x400-0x4000}", "s_addk_i32 s33, 15360", "buffer_load_dwordx4 v3, s[12:15], s31 offen lds"),
           ("s_addk_i32 m0, 0x4000", "s_add_u32 s29, s29, 245760", "buffer_load_dwordx4 v4, s[16:19], s33 offen lds")]
    for n, g in enumerate(seq):
        for x in g: a(x)
        if fill:
            for x in fill[n]: a(x)
    a("s_add_u32 s30, s30, 0x8000")
    a(f"s_and_b32 s30, s30, {NSLOT*32768-1}")
    a("s_add_u32 s32, s32, 1")
    a("s_cmp_eq_u32 s32, 10")
    a("s_cselect_b32 s28, s34, s28")
    a("s_cselect_b32 s29, s35, s29")

def cs_reads():
    return [f"ds_read_b128 {vr(32+4*i,4)}, v12 offset:{i*1024}" for i in range(4)] + \
           ["v_add_u32 v12, 0x8000, v12", f"v_and_b32 v12, {NSLOT*32768-1}, v12"]
def cs_ops():
    G = []
    for i in range(4):
        L = []
        for d in range(4):
            L.append(f"v_lshlrev_b32 v{24+2*d}, 16, v{32+4*i+d}")
            L.append(f"v_and_b32 v{25+2*d}, v15, v{32+4*i+d}")
        for d in range(8):
            L.append(f"v_add_f32 v{16+d}, v{16+d}, v{24+d}")
        G.append(L)
    return G

X = os.environ.get("K1X", "p3")
VGPR = 160
def read_list(ks):
    b = 32 + 16 * ks
    return [f"ds_read_b128 {vr(b,4)}, v{5+ks}",
            f"ds_read_b64_tr_b16 {vr(b+8,2)}, v13 offset:{ks*4096}",
            f"ds_read_b64_tr_b16 {vr(b+10,2)}, v13 offset:{ks*4096+1024}",
            f"ds_read_b64_tr_b16 {vr(b+12,2)}, v14 offset:{ks*4096}",
            f"ds_read_b64_tr_b16 {vr(b+14,2)}, v14 offset:{ks*4096+1024}",
            f"ds_read_b128 {vr(b+4,4)}, v{5+ks} offset:4096"]

def acc(i, j):
    return 96 + (2 * i + j) * 16

def mm(a, ks, vmode, extra=None):
    b = 32 + 16 * ks
    rd = read_list((ks + 2) % 4)
    rds = [rd[0:2], rd[2:4], rd[4:5], rd[5:6]]
    n = 0
    for i in range(2):
        for j in range(2):
            Xr = vr(b + 4 * i, 4); W = vr(b + 8 + 4 * j, 4); C = vr(acc(i, j), 16)
            if "nomm" in X: pass
            elif vmode: a(f"v_mfma_f32_32x32x16_bf16 {C}, {Xr}, {W}, {C}")
            else:     a(f"v_mfma_f32_32x32x16_bf16 {C}, {W}, {Xr}, {C}")
            for r in rds[n]:
                if "nox" in X and "b128" in r: r = "s_nop 0"
                if "now" in X and "tr_b16" in r: r = "s_nop 0"
                a(r)
            if extra:
                for e in extra[n]: a(e)
            n += 1
    if "nocs" not in X: a(f"v_mfma_f32_16x16x32_bf16 v[16:19], v[20:23], {vr(b+8,4)}, v[16:19]")

def stats_math(a, vsum, vsq, vmp, vsd, t0):
    a(f"v_mul_f32 v{vsum}, {f32(1.0/640)}, v{vsum}")
    a(f"v_mul_f32 v{vsq}, {f32(1.0/640)}, v{vsq}")
    a(f"v_fma_f32 v{vsq}, -v{vsum}, v{vsum}, v{vsq}")
    a(f"v_max_f32 v{vsq}, 0, v{vsq}")
    a(f"v_cvt_pk_bf16_f32 v{vmp}, v{vsum}, v{vsum}")
    a(f"v_cvt_pk_bf16_f32 v{t0}, v{vsq}, v{vsq}")
    a(f"v_and_b32 v{t0}, 0xffff0000, v{t0}")
    a(f"v_add_f32 v{t0}, {f32(1e-5)}, v{t0}")
    a(f"v_cvt_pk_bf16_f32 v{t0}, v{t0}, v{t0}")
    a(f"v_and_b32 v{t0}, 0xffff0000, v{t0}")
    a(f"v_sqrt_f32 v{t0}, v{t0}")
    a("s_nop 0")
    a(f"v_cvt_pk_bf16_f32 v{t0}, v{t0}, v{t0}")
    a(f"v_and_b32 v{vsd}, 0xffff0000, v{t0}")

def gemm_body(a, vmode):
    L = "k1v" if vmode else "k1q"
    stamp(a, 3)
    a("s_barrier")
    stamp(a, 4)
    for r in read_list(0) + read_list(1): a(r)
    a.label(f"{L}_loop")
    a("s_and_b32 s32, s27, 3")
    a("s_cmp_eq_u32 s32, 3")
    a("s_cselect_b32 s33, s35, s36")
    a("s_waitcnt lgkmcnt(6)")
    mm(a, 0, vmode, extra=[[], [], ["v_add_u32 v5, s33, v5"], ["v_add_u32 v6, s33, v6"]])
    a("s_waitcnt lgkmcnt(6)")
    mm(a, 1, vmode, extra=[[], [], ["v_add_u32 v7, s33, v7", "v_add_u32 v13, s33, v13"], ["v_add_u32 v14, s33, v14", "v_add_u32 v8, s33, v8"]])
    a("s_add_u32 s27, s27, 1")
    a("s_cmp_eq_u32 s27, 10")
    a("s_waitcnt lgkmcnt(6)")
    a(f"s_cbranch_scc1 {L}_nb")
    a("s_barrier")
    a.label(f"{L}_nb")
    mm(a, 2, vmode)
    a("s_waitcnt lgkmcnt(6)")
    mm(a, 3, vmode)
    a(f"s_cbranch_scc0 {L}_loop")
    stamp(a, 5)
    a("s_waitcnt vmcnt(0)")
    a("v_and_b32 v24, 31, v1")
    a("v_lshlrev_b32 v24, 2, v24")
    a("s_lshr_b32 s31, s24, 1")
    a("s_lshl_b32 s31, s31, 8")
    a(f"s_add_u32 s31, s31, {EX}")
    a("v_add_u32 v9, s31, v24")
    a("s_lshl_b32 s33, s38, 8")
    a(f"s_add_u32 s33, s33, {EX+1024}")
    a("v_lshl_add_u32 v10, v1, 2, s33")
    if vmode:
        a("v_lshrrev_b32 v11, 5, v1")
        a("v_lshl_add_u32 v11, v11, 4, s31")
    a("v_cvt_pk_bf16_f32 v26, v16, v16")
    a("v_mov_b32 v23, 0")
    a("v_and_b32 v26, 0xffff0000, v26")
    a("v_mov_b32 v25, 0")
    a("v_sub_f32 v16, v16, v26")
    a("v_mov_b32 v27, 0")
    a("v_cvt_pk_bf16_f32 v26, -v26, -v16")
    a("v_mov_b32 v29, 0")
    a("ds_write_b32 v10, v26")
    a("v_xor_b32 v10, 256, v10")
    a("s_lshl_b32 s42, s25, 2")
    a("s_and_b32 s43, s24, 2")
    a("s_waitcnt lgkmcnt(0)")
    a("s_barrier")
    a("ds_read_b32 v22, v9")
    a("ds_read_b32 v24, v9 offset:128")
    a("ds_read_b32 v28, v10")
    if not vmode:
        a("ds_read_b32 v30, v9 offset:512")
        a("ds_read_b32 v20, v9 offset:640")
        a("s_waitcnt lgkmcnt(2)")
    else:
        for g in range(8):
            a(f"ds_read_b128 {vr(32+4*g,4)}, v11 offset:{512+32*g}")
        a("s_waitcnt lgkmcnt(8)")
    def corr(i, j):
        M = vr(22 + 2 * i, 2); CS = vr(26 + 2 * j, 2); C = vr(acc(i, j), 16)
        if vmode: a(f"v_mfma_f32_32x32x8_bf16 {C}, {M}, {CS}, {C}")
        else:     a(f"v_mfma_f32_32x32x8_bf16 {C}, {CS}, {M}, {C}")
    corr(0, 0); corr(1, 0); corr(0, 1); corr(1, 1)
    if not vmode:
        a("v_lshlrev_b32 v18, 4, v1")
        a("v_and_b32 v19, 32, v1")
        a("v_add_u32 v19, v19, v1")
        a("v_lshlrev_b32 v19, 3, v19")
    else:
        a("v_lshrrev_b32 v18, 5, v1")
        a("v_mul_u32_u24 v18, 10240, v18")
        a("v_and_b32 v19, 31, v1")
        a("v_lshl_add_u32 v18, v19, 4, v18")
    a("s_add_u32 s42, s42, s43")
    a(f"s_mul_i32 s42, s42, {TILE_B}")
    a(f"s_add_u32 s43, s42, {TILE_B}")
    a("s_lshl_b32 s44, s26, 2")
    a("s_add_u32 s44, s44, s38")
    a("s_xor_b32 s45, s44, 1")
    a("s_waitcnt lgkmcnt(0)")
    if not vmode:
        for r in (44, 45):
            a(f"s_add_u32 s{r+4}, s{r}, 2")
            a(f"s_mul_i32 s31, s{r+4}, 205")
            a("s_lshr_b32 s31, s31, 10")
            a("s_mul_i32 s31, s31, 5")
            a(f"s_sub_u32 s{r+4}, s{r+4}, s31")
        a("s_lshl_b32 s44, s44, 11")
        a("s_lshl_b32 s45, s45, 11")
    else:
        a("s_lshl_b32 s44, s44, 9")
        a("s_lshl_b32 s45, s45, 9")
        a(f"s_add_u32 s44, s44, {81920 - 40*512}")
        a(f"s_add_u32 s45, s45, {81920 - 40*512}")
    stamp(a, 6)
    for j in range(2):
        for i in range(2):
            c = acc(i, j)
            a(f"s_add_u32 s46, s{42+i}, s{44+j}")
            if vmode: a("s_add_u32 s47, s46, 20480")
            for p in range(8):
                if vmode:
                    a(f"v_pk_mul_f32 {vr(c+2*p,2)}, {vr(c+2*p,2)}, {vr(32+16*i+2*p,2)}")
                else:
                    rs = 30 if i == 0 else 20
                    a(f"v_pk_mul_f32 {vr(c+2*p,2)}, {vr(c+2*p,2)}, {vr(rs,2)} op_sel_hi:[1,0]")
            for p in range(8):
                a(f"v_cvt_pk_bf16_f32 v{c+p}, v{c+2*p}, v{c+2*p+1}")
            if vmode:
                a(f"buffer_store_dwordx4 {vr(c,4)}, v18, s[20:23], s46 offen {ST_FLAG}")
                a(f"buffer_store_dwordx4 {vr(c+4,4)}, v18, s[20:23], s47 offen {ST_FLAG}")
            else:
                for gp in range(2):
                    a(f"s_cmp_lg_u32 s{48+j}, {2*gp}")
                    a("s_cselect_b32 exec_lo, -1, 0")
                    a(f"s_cmp_lg_u32 s{48+j}, {2*gp+1}")
                    a("s_cselect_b32 exec_hi, -1, 0")
                    a(f"buffer_store_dwordx4 {vr(c+4*gp,4)}, v18, s[20:23], s46 offen offset:{gp*1024} {ST_FLAG}")
                    a("s_not_b64 exec, exec")
                    a(f"s_cbranch_execz k1q_s{i}{j}{gp}")
                    a(f"buffer_store_dwordx2 {vr(c+4*gp,2)}, v19, s[20:23], s46 offen offset:{gp*1024} {ST_FLAG}")
                    a(f"buffer_store_dwordx2 {vr(c+4*gp+2,2)}, v19, s[20:23], s46 offen offset:{gp*1024+256} {ST_FLAG}")
                    a.label(f"k1q_s{i}{j}{gp}")
                a("s_mov_b64 exec, -1")
    stamp(a, 7)
    if STAMP: a("s_waitcnt vmcnt(0)")
    stamp_end(a, 0, 2)
    a("s_endpgm")

def loader(a):
    a.label("k1_loader")
    a("s_load_dwordx2 s[48:49], s[0:1], 16")
    a("s_sub_u32 s39, s24, 4")
    a("s_sub_u32 s36, s2, 16")
    a("v_lshrrev_b32 v5, 3, v1")
    a("v_mul_u32_u24 v5, 1280, v5")
    a("v_lshrrev_b32 v6, 4, v1")
    a("v_and_b32 v7, 7, v1")
    a("v_xor_b32 v7, v7, v6")
    a("v_lshl_add_u32 v2, v7, 4, v5")
    a("v_xor_b32 v3, 64, v2")
    a("v_mul_u32_u24 v5, 3840, v6")
    a("v_lshlrev_b32 v7, 2, v6")
    a("v_and_b32 v8, 15, v1")
    a("v_xor_b32 v7, v7, v8")
    a("v_lshl_add_u32 v4, v7, 4, v5")
    a("s_lshl_b32 s34, s25, 2")
    a("s_add_u32 s34, s34, s39")
    a("s_mul_i32 s34, s34, 40960")
    a("s_mul_i32 s35, s39, 61440")
    a("s_lshl_b32 s31, s26, 8")
    a("s_add_u32 s35, s35, s31")
    a("s_and_b32 s32, s25, 3")
    a("s_mul_i32 s32, s32, 3")
    a("s_add_u32 s32, s32, s26")
    a("s_sub_u32 s31, s32, 10")
    a("s_cselect_b32 s32, s32, s31")
    a("s_sub_u32 s31, s32, 10")
    a("s_cselect_b32 s32, s32, s31")
    if "norot" in X: a("s_mov_b32 s32, 0")
    PH = {"p3": [0, 3, 7], "p4": [0, 2, 5, 7], "p5": [0, 2, 4, 6, 8], "p2": [0, 5]}
    for k, tab in PH.items():
        if k in X:
            n = len(tab)
            a("s_and_b32 s32, s25, 3")
            a("s_add_u32 s32, s32, s26")
            a(f"s_mul_i32 s31, s32, {(256 + n - 1) // n}")
            a("s_lshr_b32 s31, s31, 8")
            a(f"s_mul_i32 s31, s31, {n}")
            a("s_sub_u32 s32, s32, s31")
            a("s_lshl_b32 s32, s32, 2")
            a(f"s_lshr_b32 s32, {hex(sum(v << (4*i) for i, v in enumerate(tab)))}, s32")
            a("s_and_b32 s32, s32, 15")
            OFFS = {"oa": 0x13022031, "ob": 0x02211002, "oc": 0x31201302, "od": 0x43102413}
            for k2, v in OFFS.items():
                if k2 in X:
                    a("s_and_b32 s31, s2, 7")
                    a("s_lshl_b32 s31, s31, 2")
                    a(f"s_lshr_b32 s31, {hex(v)}, s31")
                    a("s_and_b32 s31, s31, 15")
                    a("s_add_u32 s32, s32, s31")
                    a("s_sub_u32 s31, s32, 10")
                    a("s_cselect_b32 s32, s32, s31")
    a("s_lshl_b32 s28, s32, 7")
    a("s_add_u32 s28, s28, s34")
    a("s_mul_i32 s29, s32, 245760")
    a("s_add_u32 s29, s29, s35")
    a("s_lshl_b32 s30, s39, 12")
    a("s_mov_b32 s27, 0")
    a("s_waitcnt lgkmcnt(0)")
    srd(a, 12, 4, X_BYTES)
    srd(a, 16, 6, WQKV_BYTES)
    stamp(a, 1)
    a.label("k1l_loop")
    dma_stage(a)
    a("s_add_u32 s27, s27, 1")
    a("s_cmp_eq_u32 s27, 1")
    a("s_cbranch_scc1 k1l_loop")
    a("s_cmp_eq_u32 s27, 10")
    a("s_cbranch_scc1 k1l_tail")
    a("s_waitcnt vmcnt(8)")
    a("s_barrier")
    a("s_cmp_lg_u32 s27, 6")
    a("s_cbranch_scc1 k1l_loop")
    a("s_min_u32 s31, s36, 159")
    a("s_lshl_b32 s31, s31, 2")
    a("s_add_u32 s31, s31, s39")
    a("s_mul_i32 s31, s31, 1280")
    a("s_add_u32 s40, s48, s31")
    a("s_addc_u32 s41, s49, 0")
    for i in range(10): a(f"s_load_dword s{52+i}, s[40:41], {i*128}")
    a("s_branch k1l_loop")
    a.label("k1l_tail")
    a("s_cmp_ge_u32 s39, 2")
    a("s_cbranch_scc0 k1l_st")
    srd(a, 20, 10, WS_USED)
    a("v_and_b32 v5, 127, v0")
    a("s_cmp_ge_u32 s36, 160")
    a("s_cbranch_scc1 k1l_hk2")
    a(f"s_mov_b32 s50, {WO_BYTES}")
    a("s_mov_b32 s51, 0x20000")
    a("s_mul_i32 s31, s36, 5120")
    a("v_lshlrev_b32 v6, 4, v5")
    a("buffer_load_dwordx4 v[16:19], v6, s[48:51], s31 offen")
    a("buffer_load_dwordx4 v[20:23], v6, s[48:51], s31 offen offset:2048")
    a("s_addk_i32 s31, 4096")
    a("buffer_load_dwordx4 v[24:27], v6, s[48:51], s31 offen")
    for i in range(3):
        a(f"v_add_u32 v6, {128*i}, v5")
        a("v_mul_u32_u24 v7, 6554, v6")
        a("v_lshrrev_b32 v7, 16, v7")
        a("v_mul_u32_u24 v8, 10, v7")
        a("v_sub_u32 v8, v6, v8")
        a("v_lshlrev_b32 v8, 4, v8")
        a("v_lshrrev_b32 v9, 3, v7")
        a("v_mul_u32_u24 v9, 160, v9")
        a("v_and_b32 v7, 7, v7")
        a("v_mul_u32_u24 v7, 0x19000, v7")
        a(f"v_add3_u32 v{10+i}, v8, v9, v7")
    a("s_mul_i32 s33, s36, 205")
    a("s_lshr_b32 s33, s33, 10")
    a("s_mul_i32 s31, s33, 5")
    a("s_sub_u32 s31, s36, s31")
    a("s_lshl_b32 s37, s33, 2")
    a("s_add_u32 s37, s37, s31")
    a("s_add_u32 s33, s33, 128")
    a("s_cmp_eq_u32 s31, 4")
    a("s_cselect_b32 s37, s33, s37")
    a("s_lshr_b32 s31, s37, 3")
    a("s_mul_i32 s31, s31, 5120")
    a("s_bfe_u32 s33, s37, 0x20001")
    a("s_mul_i32 s33, s33, 640")
    a("s_add_u32 s31, s31, s33")
    a("s_and_b32 s33, s37, 1")
    a("s_mul_i32 s33, s33, 2560")
    a("s_add_u32 s31, s31, s33")
    a(f"s_add_u32 s31, s31, {WOP_OFF}")
    a("s_waitcnt vmcnt(11)")
    a("s_barrier")
    a("s_waitcnt vmcnt(3)")
    a("s_barrier")
    a("s_waitcnt vmcnt(0)")
    a("buffer_store_dwordx4 v[16:19], v10, s[20:23], s31 offen")
    a("buffer_store_dwordx4 v[20:23], v11, s[20:23], s31 offen")
    a("s_cmp_eq_u32 s39, 3")
    a("s_cbranch_scc1 k1_exit")
    a("buffer_store_dwordx4 v[24:27], v12, s[20:23], s31 offen")
    a("s_endpgm")
    a.label("k1l_hk2")
    a("s_waitcnt vmcnt(8)")
    a("s_barrier")
    a("s_waitcnt vmcnt(0)")
    a("s_barrier")
    a("s_cmp_ge_u32 s36, 232")
    a("s_cbranch_scc1 k1l_hk3")
    a("s_cmp_ge_u32 s36, 208")
    a("s_cbranch_scc1 k1_exit")
    for r in range(4): a(f"v_mov_b32 v{16+r}, 0")
    a("v_lshlrev_b32 v6, 4, v5")
    a("s_lshl_b32 s31, s36, 11")
    a(f"s_add_u32 s31, s31, {CNT_OFF - 160*2048}")
    a("buffer_store_dwordx4 v[16:19], v6, s[20:23], s31 offen")
    a("s_endpgm")
    a.label("k1l_hk3")
    a("s_getpc_b64 s[44:45]")
    a.label("k1l_pc")
    a("s_add_u32 s44, s44, attn_kernel-k1l_pc")
    a("s_addc_u32 s45, s45, 0")
    a("s_mov_b32 s46, code_end-attn_kernel")
    a("s_mov_b32 s47, 0x20000")
    a("v_lshlrev_b32 v6, 7, v5")
    a("buffer_load_dword v7, v6, s[44:47], 0 offen")
    a("s_endpgm")
    a.label("k1l_st")
    a("s_lshl_b32 s31, s25, 2")
    a("v_mov_b32 v5, s31")
    if "nostat" not in X: a("global_load_dword v8, v5, s[8:9] sc1")
    else: a("global_load_dword v8, v5, s[4:5]")
    a("s_waitcnt vmcnt(9)")
    a("s_barrier")
    stamp(a, 2)
    srd(a, 20, 10, WS_USED)
    a("s_lshl_b32 s33, s39, 6")
    a("v_add_u32 v6, s33, v1")
    a("v_lshlrev_b32 v7, 2, v6")
    a(f"v_add_u32 v6, {EX}, v7")
    a("s_lshl_b32 s33, s25, 9")
    a(f"s_add_u32 s33, s33, {ST_OFF}")
    a("s_cmp_lt_u32 s26, 5")
    a(f"s_cselect_b32 s37, {f32(QSCALE)}, 1.0")
    a("s_mov_b32 s27, 0")
    a("s_waitcnt vmcnt(1)")
    a("s_barrier")
    a.label("k1l_poll")
    a("s_waitcnt vmcnt(0)")
    a("v_readfirstlane_b32 s31, v8")
    a("s_add_u32 s27, s27, 1")
    a("s_cmp_lg_u32 s31, 0")
    a("s_cbranch_scc1 k1l_go")
    a("s_cmp_ge_u32 s27, 0x20000")
    a("s_cbranch_scc1 k1l_go")
    a("s_sleep 2")
    a("global_load_dword v8, v5, s[8:9] sc1")
    a("s_branch k1l_poll")
    a.label("k1l_go")
    stamp(a, 4)
    a("buffer_load_dword v10, v7, s[20:23], s33 offen sc1")
    a("s_waitcnt vmcnt(0)")
    a("v_and_b32 v11, 0xffff0000, v10")
    a("v_rcp_f32 v11, v11")
    a("v_and_b32 v10, 0xffff, v10")
    a("v_lshl_or_b32 v10, v10, 16, v10")
    a("v_mul_f32 v11, s37, v11")
    a("ds_write_b32 v6, v10")
    a("ds_write_b32 v6, v11 offset:512")
    a("s_waitcnt lgkmcnt(0)")
    stamp(a, 5)
    a("s_barrier")
    stamp(a, 3)
    stamp_end(a, 0, 2)
    a("s_endpgm")

def router(a):
    a.label("k1_router")
    a("s_load_dwordx2 s[6:7], s[0:1], 32")
    a("v_and_b32 v3, 15, v1")
    a("v_lshlrev_b32 v4, 4, v3")
    a("v_lshrrev_b32 v5, 4, v1")
    a("v_mul_u32_u24 v5, 1280, v5")
    a("v_add_u32 v5, v5, v4")
    a("s_lshl_b32 s28, s25, 3")
    a("s_add_u32 s28, s28, s24")
    a("s_mul_i32 s28, s28, 20480")
    a("s_waitcnt lgkmcnt(0)")
    srd(a, 12, 4, X_BYTES)
    srd(a, 16, 6, WR_BYTES)
    def xl(g):
        for i in range(5):
            a(f"buffer_load_dwordx4 {vr(44+20*g+4*i,4)}, v5, s[12:15], s28 offen offset:{i*256}")
        a("s_addk_i32 s28, 5120")
    xl(0)
    xl(1)
    srd(a, 20, 10, WS_USED)
    a("s_mov_b32 s34, 0x3f803f80")
    a("s_mov_b32 s40, 0x00010001")
    a("s_mov_b32 s41, 0x00010001")
    for r in (9, 10, 11, 12): a(f"v_mov_b32 v{r}, 0")
    stamp(a, 3)
    for g in range(4):
        for r in (6, 7, 8, 13): a(f"v_mov_b32 v{r}, 0")
        a("s_waitcnt vmcnt(5)")
        if g < 2: xl(g + 2)
        if g == 2:
            for i in range(5):
                a(f"buffer_load_dwordx4 {vr(24+4*i,4)}, v4, s[16:19], 0 offen offset:{i*256}")
        if g == 0: stamp(a, 4)
        for r in range(0, 20, 2):
            x = 44 + 20 * g + r
            a(f"v_dot2c_f32_bf16 v6, s34, v{x}")
            a(f"v_dot2c_f32_bf16 v7, v{x}, v{x}")
            a(f"v_dot2c_f32_bf16 v8, s34, v{x+1}")
            a(f"v_dot2c_f32_bf16 v13, v{x+1}, v{x+1}")
        a("s_nop 1")
        a("v_add_f32 v6, v6, v8")
        a("s_nop 0")
        a("v_add_f32 v7, v7, v13")
        for sh in (8, 4, 2, 1):
            a("s_nop 0")
            for r in (6, 7):
                a(f"v_add_f32_dpp v{r}, v{r}, v{r} row_ror:{sh} row_mask:0xf bank_mask:0xf")
        a("v_cndmask_b32 v10, v10, v6, s[40:41]")
        a("v_cndmask_b32 v11, v11, v7, s[40:41]")
        if g < 3: a("s_lshl_b64 s[40:41], s[40:41], 1")
    stamp(a, 5)
    stats_math(a, 10, 11, 14, 15, 16)
    a("v_and_b32 v14, 0xffff0000, v14")
    a("v_lshrrev_b32 v17, 4, v1")
    a("v_lshl_add_u32 v17, v3, 2, v17")
    a("s_lshl_b32 s31, s24, 4")
    a("v_add_u32 v17, s31, v17")
    a("s_lshl_b32 s31, s25, 7")
    a("v_add_u32 v18, s31, v17")
    a("v_lshlrev_b32 v21, 2, v18")
    a("v_lshrrev_b32 v22, 16, v14")
    a("v_or_b32 v22, v22, v15")
    a("s_mov_b32 s42, 0x000f000f")
    a("s_mov_b32 s43, 0x000f000f")
    a("s_mov_b64 exec, s[42:43]")
    a(f"s_mov_b32 s31, {ST_OFF}")
    a("buffer_store_dword v22, v21, s[20:23], s31 offen sc1")
    a("s_mov_b64 exec, -1")
    a("s_waitcnt vmcnt(0)")
    a("s_barrier")
    a("s_cmp_lg_u32 s24, 0")
    a("s_cbranch_scc1 k1r_nf")
    a("s_lshl_b32 s31, s25, 2")
    a("v_mov_b32 v4, s31")
    a("v_mov_b32 v5, 1")
    a("s_mov_b64 exec, 1")
    a("global_store_dword v4, v5, s[8:9] sc1")
    a("s_mov_b64 exec, -1")
    a.label("k1r_nf")
    stamp(a, 6)
    for r in (6, 7, 8, 13): a(f"v_mov_b32 v{r}, 0")
    for r in range(20):
        for g, ac in enumerate((6, 7, 8, 13)):
            a(f"v_dot2c_f32_bf16 v{ac}, v{24+r}, v{44+20*g+r}")
        a(f"v_dot2c_f32_bf16 v9, s34, v{24+r}")
    a("s_mov_b32 s40, 0x00010001")
    a("s_mov_b32 s41, 0x00010001")
    a("s_nop 0")
    for sh in (8, 4, 2, 1):
        for r in (6, 7, 8, 13, 9):
            a(f"v_add_f32_dpp v{r}, v{r}, v{r} row_ror:{sh} row_mask:0xf bank_mask:0xf")
    for ac in (6, 7, 8, 13):
        a(f"v_cndmask_b32 v12, v12, v{ac}, s[40:41]")
        a("s_lshl_b64 s[40:41], s[40:41], 1")
    a("s_mov_b64 exec, s[42:43]")
    a("v_rcp_f32 v16, v15")
    a("v_fma_f32 v12, -v14, v9, v12")
    a("v_mul_f32 v12, v12, v16")
    a("v_cvt_pk_bf16_f32 v12, v12, v12")
    a("v_ashrrev_i32 v13, 31, v12")
    a("v_or_b32 v13, 0x80000000, v13")
    a("v_xor_b32 v12, v12, v13")
    a("v_and_b32 v12, 0xffff0000, v12")
    a("v_sub_u32 v19, 2047, v18")
    a("v_lshl_or_b32 v12, v19, 3, v12")
    a("v_lshlrev_b32 v19, 2, v17")
    a("v_lshlrev_b32 v20, 3, v17")
    a("ds_write_b32 v19, v12")
    a("ds_write_b64 v20, v[14:15] offset:512")
    a("s_mov_b64 exec, -1")
    a("v_lshlrev_b32 v2, 3, v1")
    a("s_waitcnt lgkmcnt(0)")
    a("s_barrier")
    a("ds_read_b64 v[6:7], v2")
    a("v_mov_b32 v9, 0")
    a("s_mov_b32 s27, 0")
    a("s_waitcnt lgkmcnt(0)")
    a.label("k1r_top")
    top8_rounds(a, 6, 7, 8, 31)
    a("s_or_b32 s33, s31, s27")
    a("s_mov_b32 m0, s27")
    a("v_cmp_ne_u32 s[40:41], s31, v6")
    a("v_cmp_ne_u32 s[42:43], s31, v7")
    a("v_writelane_b32 v9, s33, m0")
    a("s_add_u32 s27, s27, 1")
    a("v_cndmask_b32 v6, 0, v6, s[40:41]")
    a("v_cndmask_b32 v7, 0, v7, s[42:43]")
    a("s_cmp_le_u32 s27, s24")
    a("s_cbranch_scc1 k1r_top")
    a("s_lshl_b32 s35, s25, 3")
    a("s_add_u32 s35, s35, s24")
    a("s_bfe_u32 s31, s33, 0xb0003")
    a("s_sub_u32 s31, 2047, s31")
    a("s_and_b32 s36, s31, 127")
    a("s_lshl_b32 s36, s36, 3")
    a("v_mov_b32 v4, s36")
    a("ds_read_b64 v[14:15], v4 offset:512")
    a("s_mul_i32 s31, s31, 1280")
    a("v_lshlrev_b32 v6, 4, v1")
    a("v_lshlrev_b32 v7, 2, v1")
    a("buffer_load_dwordx4 v[32:35], v6, s[12:15], s31 offen")
    a("buffer_load_dword v36, v7, s[12:15], s31 offen offset:1024")
    a("s_lshl_b32 s36, s35, 2")
    a(f"s_add_u32 s36, s36, {CAND_OFF}")
    a("v_mov_b32 v4, 0")
    a("v_mov_b32 v5, s33")
    a("s_mov_b64 exec, 1")
    a("buffer_store_dword v5, v4, s[20:23], s36 offen")
    a("s_mov_b64 exec, -1")
    a("s_mul_i32 s35, s35, 1280")
    a(f"s_add_u32 s35, s35, {XS_OFF}")
    a("s_waitcnt lgkmcnt(0)")
    a("v_rcp_f32 v16, v15")
    a("v_sub_f32 v14, 0, v14")
    a("s_waitcnt vmcnt(1)")
    for r in range(5):
        norm_pair(a, 32 + r, 14, 16, 18)
    a("buffer_store_dwordx4 v[32:35], v6, s[20:23], s35 offen")
    a("buffer_store_dword v36, v7, s[20:23], s35 offen offset:1024")
    stamp(a, 7)
    if STAMP: a("s_waitcnt vmcnt(0)")
    stamp_end(a, 0, 2)
    a("s_endpgm")

def gen():
    a = Asm()
    a.raw(f".globl {NAME}\n.p2align 8\n.type {NAME},@function")
    a.label(NAME)
    a("s_cmp_ge_u32 s2, 256")
    a("s_cbranch_scc1 k1_exit")
    stamp(a, 0)
    a("s_load_dwordx4 s[4:7], s[0:1], 0")
    a("s_load_dwordx4 s[8:11], s[0:1], 72")
    if "nocp" not in X:
        a("s_getpc_b64 s[40:41]")
        a("v_lshlrev_b32 v3, 7, v0")
        a("v_cmp_gt_u32 vcc, attn_kernel-qkv_kernel-1024, v3")
        a("s_and_saveexec_b64 s[42:43], vcc")
        a("s_cbranch_execz k1_ncp")
        a("global_load_dword v31, v3, s[40:41]")
        a.label("k1_ncp")
        a("s_mov_b64 exec, s[42:43]")
    a("v_lshrrev_b32 v2, 6, v0")
    a("v_and_b32 v1, 63, v0")
    a("s_and_b32 s28, s2, 7")
    a("v_readfirstlane_b32 s24, v2")
    a("s_lshr_b32 s29, s2, 3")
    a("s_lshr_b32 s30, s28, 1")
    a("s_and_b32 s28, s28, 1")
    a("s_lshl_b32 s30, s30, 2")
    a("s_cmp_lt_u32 s29, 2")
    a("s_cbranch_scc0 k1_gemm")
    a("s_lshl_b32 s28, s28, 1")
    a("s_add_u32 s25, s30, s28")
    a("s_add_u32 s25, s25, s29")
    a("s_waitcnt lgkmcnt(0)")
    a("s_branch k1_router")
    a.label("k1_exit")
    a("s_endpgm")
    a.label("k1_gemm")
    a("s_mul_i32 s28, s28, 30")
    a("s_add_u32 s28, s28, s29")
    a("s_sub_u32 s28, s28, 2")
    a("s_lshr_b32 s26, s28, 2")
    a("s_and_b32 s28, s28, 3")
    a("s_add_u32 s25, s30, s28")
    a("s_cmp_ge_u32 s24, 4")
    a("s_cbranch_scc0 k1_comp")
    loader(a)
    a.label("k1_comp")
    a("s_mov_b32 s27, 0")
    a(f"s_mov_b32 s35, {(-(NSLOT-1)*32768) & 0xffffffff}")
    a("s_mov_b32 s36, 0x8000")
    a("s_and_b32 s38, s24, 1")
    a("s_lshl_b32 s38, s38, 1")
    a("s_lshr_b32 s31, s24, 1")
    a("s_add_u32 s38, s38, s31")
    a("s_lshl_b32 s30, s31, 13")
    a("v_and_b32 v18, 31, v1")
    a("v_lshlrev_b32 v18, 7, v18")
    a("v_lshrrev_b32 v19, 5, v1")
    a("v_bfe_u32 v20, v1, 1, 3")
    a("v_xor_b32 v20, v20, v19")
    a("v_lshl_add_u32 v18, v20, 4, v18")
    a("v_add_u32 v5, s30, v18")
    for ks in range(1, 4):
        a(f"v_xor_b32 v{5+ks}, {ks<<5}, v5")
    a("v_bfe_u32 v20, v1, 2, 2")
    a("v_lshl_add_u32 v21, v19, 3, v20")
    a("v_lshlrev_b32 v21, 8, v21")
    a("v_xor_b32 v20, s38, v20")
    a("v_lshl_add_u32 v21, v20, 6, v21")
    a("v_bfe_u32 v20, v1, 4, 1")
    a("v_lshl_add_u32 v21, v20, 5, v21")
    a("v_and_b32 v20, 3, v1")
    a("s_cmp_ge_u32 s26, 10")
    a("s_cselect_b32 s31, 0xe4, 0")
    a("s_cselect_b32 s33, 0, 0xd8")
    a("s_or_b32 s31, s31, s33")
    a("v_lshlrev_b32 v20, 1, v20")
    a("v_lshrrev_b32 v20, v20, s31")
    a("v_and_b32 v20, 3, v20")
    a("v_lshl_add_u32 v21, v20, 3, v21")
    a("v_add_u32 v13, 0x4000, v21")
    a("v_xor_b32 v14, 64, v13")
    a("s_mov_b32 s40, 0x00100001")
    a("s_mov_b32 s41, 0x00100001")
    a("v_mov_b32 v24, 0x3f803f80")
    for r in range(4):
        a(f"v_mov_b32 v{16+r}, 0")
        a(f"v_cndmask_b32 v{20+r}, 0, v24, s[40:41]")
    for r in range(96, 160):
        a(f"v_mov_b32 v{r}, 0")
    a("s_waitcnt lgkmcnt(0)")
    if "pf" in X:
        srd(a, 12, 4, X_BYTES)
        srd(a, 16, 6, WQKV_BYTES)
        a("v_lshrrev_b32 v25, 5, v1")
        a("v_lshlrev_b32 v25, 6, v25")
        a("v_bfe_u32 v26, v1, 1, 4")
        a("v_add_u32 v25, v25, v26")
        a("v_mul_u32_u24 v25, 3840, v25")
        a("v_and_b32 v26, 1, v1")
        a("v_lshl_add_u32 v25, v26, 7, v25")
        a("s_lshl_b32 s31, s24, 3")
        a("s_and_b32 s33, s25, 3")
        a("s_add_u32 s31, s31, s33")
        a("s_add_u32 s31, s31, 8")
        a("s_mul_i32 s31, s31, 61440")
        a("s_lshl_b32 s33, s26, 8")
        a("s_add_u32 s31, s31, s33")
        a("buffer_load_dword v27, v25, s[16:19], s31 offen")
        a("v_and_b32 v25, 15, v1")
        a("v_mul_u32_u24 v25, 1280, v25")
        a("v_bfe_u32 v26, v1, 4, 1")
        a("v_lshl_add_u32 v25, v26, 7, v25")
        a("s_lshl_b32 s31, s25, 3")
        a("s_and_b32 s33, s26, 7")
        a("s_add_u32 s31, s31, s33")
        a("s_mul_i32 s31, s31, 20480")
        a("s_lshl_b32 s33, s24, 8")
        a("s_add_u32 s31, s31, s33")
        a("buffer_load_dword v31, v25, s[12:15], s31 offen offset:256")
    srd(a, 20, 10, WS_USED)
    a("s_cmp_ge_u32 s26, 10")
    a("s_cbranch_scc1 k1_vbody")
    gemm_body(a, False)
    a.label("k1_vbody")
    gemm_body(a, True)
    router(a)
    return a
```

```python
from common import *

NAME = "attn_kernel"
LDS = 81920
X = os.environ.get("K2X", "")
GRID = 256 + NMOE
if "nomoe" in X: GRID = 256
CH = 20480
if "iter" in X:
    _st = stamp
    def stamp(a, i):
        if i == 4: _st(a, 9)
        elif i == 5: _st(a, 10)
        elif i == 0: _st(a, 0)
OST = os.environ.get("OST", "")
DPRE = int(os.environ.get("DPRE", "4"))
GPRE = int(os.environ.get("GPRE", "6"))
SPECW = "specw" in X
OPRE = int(os.environ.get("OPRE", "4"))
SLEEP = int(os.environ.get("SLEEP", "1"))
APACE = int(os.environ.get("APACE", "8"))
PACE = 0 if "pace0" in X else 2 if "pace2" in X else 1
TOP = 2 if "top2" in X else 3
QLO = (8, 14); QHI = (12, 18)
KLO = (20, 26); KHI = (24, 30)
VV = (32, 40)
P = 48
SS = (56, 72)
OO = (88, 104)
T0 = 120

def dma_chunk(a, lab):
    a("s_mov_b32 m0, s30")
    a("s_nop 0")
    a("buffer_load_dwordx4 v2, s[20:23], s28 offen lds")
    a("s_addk_i32 m0, 10240")
    a("s_cmp_ge_u32 s24, 4")
    a("buffer_load_dwordx4 v3, s[20:23], s28 offen lds")
    a(f"s_cbranch_scc1 {lab}")
    a("s_add_u32 m0, s30, s39")
    a("s_nop 0")
    a("buffer_load_dwordx4 v4, s[20:23], s28 offen lds")
    a.label(lab)
    a("s_add_u32 s28, s28, s59")

def piece_split(a, p, run, d16, tb):
    a(f"v_mul_u32_u24 v{run}, 3277, v{p}")
    a(f"v_lshrrev_b32 v{run}, 16, v{run}")
    a(f"v_mul_u32_u24 v{d16}, 20, v{run}")
    a(f"v_sub_u32 v{d16}, v{p}, v{d16}")
    a(f"v_lshlrev_b32 v{d16}, 4, v{d16}")
    a(f"v_bfe_u32 v{tb}, v{run}, 2, 2")
    a(f"v_mad_u32_u24 v{d16}, v{tb}, s44, v{d16}")
    a(f"v_lshrrev_b32 v{tb}, 4, v{run}")
    a(f"v_mad_u32_u24 v{d16}, v{tb}, s52, v{d16}")
    a(f"v_and_b32 v{run}, 3, v{run}")

def kq_addr(a):
    a("s_and_b32 s31, s25, 1")
    a("s_lshl_b32 s33, s31, 8")
    a("v_lshl_add_u32 v5, v1, 4, s33")
    a("s_xor_b32 s31, s31, 1")
    a("s_lshl_b32 s33, s31, 10")
    a("v_lshl_add_u32 v7, v1, 3, s33")

def vrow(a, r, t):
    a(f"v_lshrrev_b32 v{t}, 1, v{r}")
    a(f"v_xor_b32 v{t}, v{t}, v{r}")
    a(f"v_and_b32 v{t}, 4, v{t}")
    a(f"v_mul_u32_u24 v{t}, 3, v{t}")
    a(f"v_xor_b32 v{r}, v{r}, v{t}")

def kv_reads(i, koff, voff):
    kb = (i + 1) % 2; vb = i % 2
    L = ["s_mov_b64 exec, s[40:41]",
         f"ds_read_b128 {vr(VV[vb],4)}, v6 offset:{voff}",
         f"ds_read_b128 {vr(VV[vb]+4,4)}, v6 offset:{voff+640}"]
    L += ["s_mov_b64 exec, -1",
          f"ds_read_b128 {vr(KLO[kb],4)}, v5 offset:{koff}",
          f"ds_read_b64 {vr(KHI[kb],2)}, v7 offset:{koff}"]
    return L

def unit(a, u):
    i = u // 2; b = u % 2
    cur = SS[b]; nxt = SS[1 - b]
    ob = OO[1 - b]
    vb = VV[(i - 1) % 2] if b == 0 else VV[i % 2]
    kb = i % 2 if b == 0 else (i + 1) % 2
    def grp(g, mf, pre=(), post=()):
        e = cur + 4 * g
        a(f"v_exp_f32 v{e}, v{e}")
        a(f"v_exp_f32 v{e+1}, v{e+1}")
        for s in pre: a(s)
        a(mf)
        for s in post:
            if callable(s): s()
            else: a(s)
        a(f"v_exp_f32 v{e+2}, v{e+2}")
        a(f"v_exp_f32 v{e+3}, v{e+3}")
        c = (cur + 4 * (g - 1)) if g > 0 else nxt + 12
        pd = P + 2 * ((g - 1) % 4)
        a(f"v_cvt_pk_bf16_f32 v{pd}, v{c}, v{c+1}")
        a(f"v_cvt_pk_bf16_f32 v{pd+1}, v{c+2}, v{c+3}")
    pre = [[], [], [], []]; post = [[], [], [], []]
    if b == 0:
        rd = kv_reads(i, ((i + 1) % 4) * 1280, i * 1280)
        if "nospread" in X:
            post[0] = rd
        else:
            post[0] = rd[:4]; post[1] = rd[4:5]; post[2] = rd[5:]
    else:
        pre[0] = ["s_waitcnt lgkmcnt(0)"]
    def dma_if(cond, lab):
        def f():
            a(cond)
            a(f"s_cbranch_scc1 {lab}_skip")
            dma_chunk(a, lab)
            a("s_add_u32 s30, s30, s34")
            a.label(f"{lab}_skip")
        return f
    if u == 5:
        post[0] = ["s_waitcnt vmcnt(2)", "s_barrier", f"s_setprio {TOP}"]
        if "itst" in X:
            post[0] = ["s_memtime s[92:93]", "s_waitcnt vmcnt(2)", "s_memtime s[94:95]", "s_barrier", "s_memtime s[96:97]", "s_lshl_b32 m0, s27, 2", "s_waitcnt lgkmcnt(0)",
                       "v_writelane_b32 v125, s92, m0", "s_add_u32 m0, m0, 1", "s_nop 0", "v_writelane_b32 v125, s94, m0", "s_add_u32 m0, m0, 1", "s_nop 0", "v_writelane_b32 v125, s96, m0", f"s_setprio {TOP}"]
        post[1] = [dma_if("s_cmp_ge_u32 s27, s55", "k2_dla")]
        post[2] = ["v_add_u32 v5, s33, v5", "v_add_u32 v7, s33, v7"]
    if u == 7:
        def hook():
            a("s_cmp_ge_u32 s27, s58")
            a("s_cbranch_scc1 k2_hook")
            a.label("k2_nl")
        post[3] = [hook]
    if "iter" in X and u == 5: post[0] = post[0] + ["s_memtime s[92:93]"]
    if "iter" in X and u == 7: pre[0] = pre[0] + ["s_lshl_b32 m0, s27, 1", "s_nop 0", "s_movreld_b32 s68, s92"]
    LAD = {(0, 2): 2, (2, 2): 1, (4, 2): 0}
    if TOP == 2: LAD = {(1, 2): 1, (4, 2): 0}
    if os.environ.get("LAD"):
        v = [int(c) for c in os.environ["LAD"]]
        LAD = {(v[0], v[1]): 2, (v[2], v[3]): 1, (v[4], v[5]): 0}
    if "lad2" in X: LAD = {(7, 0): 2, (1, 0): 1, (3, 0): 0}
    if "lad3" in X: LAD = {(0, 2): 2, (3, 2): 1, (4, 3): 0}
    for (uu, g), pr in LAD.items():
        if uu == u: post[g] = post[g] + [f"s_setprio {pr}"]
    if u == 7:
        post[0] = post[0] + [dma_if("s_cmp_ge_u32 s27, s56", "k2_dlb")]
        post[1] = ["v_add_u32 v6, s33, v6", "s_mov_b32 s34, s33", "s_add_u32 s27, s27, 1"]
        post[2] = ["s_and_b32 s32, s27, 3", "s_cmp_eq_u32 s32, 3", "s_cselect_b32 s33, s35, s36"]
    if not post[2] and not post[3] and not pre[3]:
        post[3] = ["s_nop 0"]
    grp(0, f"v_mfma_f32_32x32x16_bf16 {vr(ob,16)}, {vr(vb,4)}, {vr(P,4)}, {vr(ob,16)}", pre[0], post[0])
    grp(1, f"v_mfma_f32_32x32x16_bf16 {vr(nxt,16)}, {vr(KLO[kb],4)}, {vr(QLO[1-b],4)}, 0", pre[1], post[1])
    grp(2, f"v_mfma_f32_32x32x8_bf16 {vr(nxt,16)}, {vr(KHI[kb],2)}, {vr(QHI[1-b],2)}, {vr(nxt,16)}", pre[2], post[2])
    grp(3, f"v_mfma_f32_32x32x16_bf16 {vr(ob,16)}, {vr(vb+4,4)}, {vr(P+4,4)}, {vr(ob,16)}", pre[3], post[3])

WBUF = (8, 28); ACC = 48; OFR = 68; GR = 108; XP = 120
def w_reads(st, j):
    b = WBUF[st]; off = (j % 4) * 10240
    L = []
    for T, (base, c) in enumerate(((4, 0), (4, 32), (5, 0), (6, 0), (6, 32))):
        L.append(f"ds_read_b64_tr_b16 {vr(b+4*T,2)}, v{base} offset:{off+c}")
        L.append(f"ds_read_b64_tr_b16 {vr(b+4*T+2,2)}, v{base} offset:{off+2560+c}")
    return L

def w_dma(a):
    for ii in range(4):
        a(f"buffer_load_dwordx4 v2, s[20:23], s28 offen offset:{ii*1024} lds")
    a("s_addk_i32 m0, 0x1000")
    a("s_addk_i32 s28, 0x1000")
    a("buffer_load_dwordx4 v2, s[20:23], s28 offen lds")

def spin(a, lab, vaddr, vdst, target, sleep):
    a("s_mov_b32 s27, 0")
    a.label(lab)
    a("s_waitcnt vmcnt(0)")
    a(f"v_readfirstlane_b32 s31, v{vdst}")
    a("s_add_u32 s27, s27, 1")
    a(f"s_cmp_ge_u32 s31, {target}")
    a(f"s_cbranch_scc1 {lab}_ok")
    a("s_cmp_ge_u32 s27, 0x20000")
    a(f"s_cbranch_scc1 {lab}_ok")
    if sleep: a(f"s_sleep {sleep}")
    a(f"global_load_dword v{vdst}, v{vaddr}, s[10:11] sc1")
    a(f"s_branch {lab}")
    a.label(f"{lab}_ok")

def sel_load(a):
    a("v_and_b32 v127, 7, v1")
    a("v_lshlrev_b32 v127, 2, v127")
    a("buffer_load_dword v127, v127, s[20:23], s63 offen sc1")

def late(a):
    a.label("k2_hook")
    a("s_cmp_gt_u32 s27, 5")
    a("s_cbranch_scc1 k2_late")
    a("s_cmp_eq_u32 s27, 5")
    a("s_cbranch_scc1 k2_sw")
    a(f"buffer_load_dword v{T0+7}, v{T0+6}, s[12:15], s57 offen")
    a("s_mov_b32 s58, 5")
    a("s_branch k2_nl")
    a.label("k2_sw")
    a("v_lshlrev_b32 v2, 4, v0")
    a("v_add_u32 v3, 10240, v2")
    a("v_add_u32 v4, s39, v2")
    a("s_mul_i32 s28, s61, 102400")
    a(f"s_add_u32 s28, s28, {WOP_OFF}")
    a(f"s_movk_i32 s59, {CH}")
    a("s_branch k2_nl")
    a.label("k2_late")
    a("s_movk_i32 s58, 99")
    a("v_and_b32 v0, 15, v1")
    a("v_lshrrev_b32 v125, 4, v1")
    a("v_mul_u32_u24 v126, 1280, v0")
    a("v_lshl_add_u32 v126, v125, 3, v126")
    a("v_lshlrev_b32 v0, 2, v0")
    a("v_and_b32 v127, 28, v0")
    a(f"buffer_load_dwordx2 {vr(XP,2)}, v126, s[16:19], s38 offen")
    a(f"buffer_load_dwordx2 {vr(XP+2,2)}, v126, s[16:19], s38 offen offset:32")
    a(f"buffer_load_dwordx2 {vr(XP+4,2)}, v126, s[16:19], s37 offen offset:64")
    a("buffer_load_dword v0, v0, s[20:23], s62 offen")
    a("buffer_load_dword v127, v127, s[20:23], s63 offen sc1")
    a("s_branch k2_nl")

def project(a):
    UR = OFR; TM = OFR + 8
    a("v_lshrrev_b32 v7, 4, v1")
    a("v_mov_b32 v3, v126")
    a("s_mov_b32 s41, s47")
    a("s_and_b32 s46, s47, s47")
    a("s_cbranch_scc1 pj_hit0")
    a.label("pj_ret0")
    a("v_lshrrev_b32 v5, 2, v1")
    a("v_mul_u32_u24 v5, 160, v5")
    a("v_and_b32 v4, 3, v1")
    a("v_lshl_add_u32 v5, v4, 3, v5")
    a("s_mul_i32 s31, s53, 5120")
    a("v_add_u32 v5, s31, v5")
    a("v_add_u32 v4, s48, v5")
    a("s_sub_u32 s31, 96, s48")
    a("v_add_u32 v6, s31, v5")
    a("v_add_u32 v5, 64, v5")
    for r in w_reads(0, 0): a(r)
    srd(a, 12, 8, X_BYTES)
    a(f"v_and_b32 v{ACC}, 0xffff0000, v0")
    a(f"v_rcp_f32 v{ACC}, v{ACC}")
    a(f"v_lshlrev_b32 v{ACC+1}, 16, v0")
    a("v_and_b32 v0, 15, v1")
    a(f"v_mul_f32 v{GR}, v{ACC}, -v{ACC+1}")
    a("s_waitcnt lgkmcnt(4)")
    for r in w_reads(1, 1): a(r)
    for r in range(1, 12): a(f"v_mov_b32 v{GR+r}, v{GR}")
    a(f"v_mov_b32 v{ACC+4}, {f32(-math.log2(math.e))}")
    a("s_lshl_b32 s30, s24, 10")
    a("s_mul_i32 s28, s61, 102400")
    a("s_add_u32 s28, s28, s30")
    a(f"s_add_u32 s28, s28, {WOP_OFF + 40960}")
    a("s_add_u32 m0, s30, 40960")
    a("s_waitcnt lgkmcnt(0)")
    a("s_barrier")
    def wd(lo, hi):
        for i in range(lo, hi):
            if i == 7:
                a("s_cmp_ge_u32 s24, 4")
                a("s_cbranch_scc1 pj_noc")
            a("buffer_load_dwordx4 v2, s[20:23], s28 offen lds")
            if i < 7:
                a("s_mov_b32 m0, s30" if i == 4 else "s_addk_i32 m0, 0x2000")
                a("s_addk_i32 s28, 0x2000")
            else:
                a.label("pj_noc")
    def spec():
        a("s_cmp_ge_u32 s24, 5")
        a("s_cbranch_scc1 pj_nsp")
        a("s_mul_i32 s31, s60, 81920")
        a("s_lshl_b32 s33, s24, 14")
        a("s_add_u32 s31, s31, s33")
        a(f"s_add_u32 s31, s31, {O_OFF}")
        a("v_lshlrev_b32 v74, 7, v1")
        a("buffer_load_dword v75, v74, s[20:23], s31 offen sc1")
        a("s_addk_i32 s31, 0x2000")
        a("buffer_load_dword v75, v74, s[20:23], s31 offen sc1")
        a.label("pj_nsp")
    wd(0, DPRE)
    a("s_cmp_lg_u32 s46, 0")
    a("s_cbranch_scc1 pj_ret1")
    a.label("pj_gate")
    def gate(p, t):
        g = GR + 2 * p; x = XP + p
        return [f"v_lshlrev_b32 v{t}, 16, v{x}",
                f"v_and_b32 v{t+1}, 0xffff0000, v{x}",
                f"v_pk_fma_f32 {vr(g,2)}, {vr(t,2)}, {vr(ACC,2)}, {vr(g,2)} op_sel_hi:[1,0,1]",
                f"v_pk_mul_f32 {vr(t,2)}, {vr(g,2)}, {vr(ACC+4,2)} op_sel_hi:[1,0]",
                f"v_exp_f32 v{t}, v{t}",
                f"v_exp_f32 v{t+1}, v{t+1}",
                f"v_pk_add_f32 {vr(t,2)}, {vr(t,2)}, 1.0 op_sel_hi:[1,0]",
                f"v_rcp_f32 v{t}, v{t}",
                f"v_rcp_f32 v{t+1}, v{t+1}",
                f"v_pk_mul_f32 {vr(g,2)}, {vr(g,2)}, {vr(t,2)}"]
    for p in range(0, GPRE, 2):
        for x, y in zip(gate(p, TM), gate(p + 1, TM + 2)): a(x); a(y)
    a("s_cmp_lg_u32 s46, 0")
    a("s_cbranch_scc1 pj_ret2")
    a.label("pj_ret1")
    a("s_lshl_b32 s31, s26, 8")
    a(f"s_add_u32 s31, s31, {CNT_OFF}")
    a(f"v_mov_b32 v{ACC+2}, s31")
    a(f"v_mov_b32 v{ACC+3}, 1")
    stamp(a, 7)
    a(f"s_waitcnt vmcnt({min(DPRE, 7)})")
    a("s_barrier")
    a("s_cmp_lg_u32 s24, 7")
    a("s_cbranch_scc1 pj_nosig")
    a("s_mov_b64 exec, 1")
    a(f"global_atomic_add v{ACC+6}, v{ACC+2}, v{ACC+3}, s[10:11] sc0")
    a("s_mov_b64 exec, -1")
    a.label("pj_nosig")
    stamp(a, 8)
    wd(DPRE, 8)
    spec()
    a("s_cmp_lg_u32 s46, 0")
    a("s_cbranch_scc1 pj_hit")
    a.label("pj_ret2")
    for p in range(GPRE, 6, 2):
        for x, y in zip(gate(p, TM), gate(p + 1, TM + 2)): a(x); a(y)
    a("v_lshlrev_b32 v2, 9, v7")
    a("v_lshl_add_u32 v2, v0, 4, v2")
    a("s_lshr_b32 s29, s49, 1")
    a("s_mul_i32 s29, s29, 40960")
    a("s_and_b32 s31, s49, 1")
    a("s_lshl_b32 s31, s31, 8")
    a("s_add_u32 s29, s29, s31")
    a(f"s_add_u32 s29, s29, {O_OFF}")
    a("s_lshl_b32 s28, s53, 11")
    a("s_add_u32 s28, s28, s29")
    a("s_waitcnt vmcnt(2)")
    a("s_cmp_lt_u32 s24, 5")
    a("s_cbranch_scc1 pj_wait")
    a("s_waitcnt vmcnt(0)")
    a("s_cmp_lg_u32 s24, 7")
    a("s_cbranch_scc1 pj_wait")
    a(f"v_readfirstlane_b32 s31, v{ACC+6}")
    a("s_cmp_eq_u32 s31, 31")
    a("s_cbranch_scc1 pj_wait")
    a(f"global_load_dword v{ACC+6}, v{ACC+2}, s[10:11] sc1")
    spin(a, "pj_grp", ACC + 2, ACC + 6, 32, SLEEP)
    a.label("pj_wait")
    a("s_barrier")
    stamp(a, 9)
    def oload(j):
        a(f"buffer_load_dwordx4 {vr(OFR+4*j,4)}, v2, s[20:23], s28 offen sc1")
        if j < 9: a("s_addk_i32 s28, 0x1000")
    for j in range(OPRE): oload(j)
    if "fine" in X: stamp(a, 1)
    a("s_mul_i32 s31, s24, 3072")
    a("s_add_u32 s31, s31, 20480")
    a("v_lshl_add_u32 v126, v1, 4, s31")
    a("s_xor_b32 s31, s24, 4")
    a("s_mul_i32 s31, s31, 3072")
    a("s_add_u32 s31, s31, 20480")
    a("v_lshl_add_u32 v127, v1, 4, s31")
    for j in range(10):
        nj = j + 2
        b = WBUF[j % 2]
        if j in (2, 6):
            for r in (4, 5, 6): a(f"v_add_u32 v{r}, {40960 if j == 2 else -40960 & 0xffffffff}, v{r}")
        if j == 8: a("s_barrier")
        rd = w_reads(j % 2, nj) if nj < 10 else []
        if j + OPRE < 10: oload(j + OPRE)
        a(f"s_waitcnt vmcnt({min(9, j + OPRE) - j})")
        if "fine" in X and j == 0: stamp(a, 2)
        if "fine" in X and j == 9: stamp(a, 3)
        for T in range(5):
            c = vr(ACC + 4 * T, 4)
            if j >= 1: a(f"s_waitcnt lgkmcnt({lg(j, T)})")
            a(f"v_mfma_f32_16x16x32_bf16 {c}, {vr(b+4*T,4)}, {vr(OFR+4*j,4)}, " + ("0" if j == 0 else c))
            for r in rd[2*T:2*T+2]: a(r)
    a("s_nop 4")
    a(f"ds_write_b128 v126, {vr(ACC+8,4)} offset:2048")
    a(f"ds_write_b128 v126, {vr(ACC+12,4)}")
    a("s_nop 0")
    a(f"ds_write_b128 v126, {vr(ACC+16,4)} offset:1024")
    for p in range(6):
        a(f"v_lshlrev_b32 v{8+2*p}, 16, v{XP+p}")
        a(f"v_and_b32 v{9+2*p}, 0xffff0000, v{XP+p}")
    a("s_waitcnt lgkmcnt(0)")
    a("s_barrier")
    for T in range(3):
        a(f"ds_read_b128 {vr(OFR+4*T,4)}, v127 offset:{T*1024}")
    for T in range(3):
        c = ACC + 4 * T
        a(f"s_waitcnt lgkmcnt({2-T})")
        for r in range(4): a(f"v_add_f32 v{c+r}, v{c+r}, v{OFR+4*T+r}")
        for r in range(4): a(f"v_fma_f32 v{c+r}, v{c+r}, v{GR+4*T+r}, v{8+4*T+r}")
        a(f"v_cvt_pk_bf16_f32 v{c}, v{c}, v{c+1}")
        a(f"v_cvt_pk_bf16_f32 v{c+1}, v{c+2}, v{c+3}")
        if T < 2:
            a(f"buffer_store_dwordx2 {vr(c,2)}, v3, s[12:15], s38 offen offset:{T*32} {OST}")
            if T == 1 and not (STAMP or DIAG):
                a("s_cmp_lg_u32 s53, 0")
                a("s_cbranch_scc1 k2_exit")
        else:
            a(f"buffer_store_dwordx2 {vr(c,2)}, v3, s[12:15], s37 offen offset:64 {OST}")
    stamp(a, 10)
    if STAMP: a("s_waitcnt vmcnt(0)")
    stamp_end(a, 1, 2)
    a("s_endpgm")
    QD = [56, 60, 64,  96, 100, 104,  80, 84, 68,  76, 88, 92]
    a.label("pj_nokey")
    a("s_mov_b32 s27, 0")
    a.label("pj_nk")
    a("s_sleep 2")
    sel_load(a)
    a("s_add_u32 s27, s27, 1")
    a("s_cmp_ge_u32 s27, 0x20000")
    a("s_waitcnt vmcnt(0)")
    a("s_cbranch_scc1 pj_sel")
    a("v_cmp_eq_u32 vcc, 0, v127")
    a("s_cbranch_vccnz pj_nk")
    a("s_branch pj_sel")
    a.label("pj_hit0")
    a("s_waitcnt vmcnt(2)")
    a("v_readfirstlane_b32 s31, v31")
    a(f"s_cmp_ge_u32 s31, {2*NMOE}")
    a("s_cbranch_scc1 pj_moe_ok")
    spin(a, "pj_moe", 30, 31, 2 * NMOE, 4)
    a("s_ff1_i32_b32 s42, s41")
    a("s_bitset0_b32 s41, s42")
    a("v_readlane_b32 s43, v127, s42")
    a("v_lshlrev_b32 v126, 4, v7")
    a("s_mul_i32 s31, s42, 2560")
    a("s_lshl_b32 s44, s50, 1")
    a("s_add_u32 s31, s31, s44")
    a(f"s_add_u32 s31, s31, {PART_OFF}")
    a("s_lshl_b32 s44, s48, 1")
    a("s_add_u32 s44, s44, s31")
    for h in range(NREP):
        a(f"buffer_load_dwordx4 {vr(QD[3*h],4)}, v126, s[20:23], s44 offen sc1")
        a(f"buffer_load_dwordx4 {vr(QD[3*h+1],4)}, v126, s[20:23], s44 offen offset:64 sc1")
        a(f"buffer_load_dwordx4 {vr(QD[3*h+2],4)}, v126, s[20:23], s31 offen offset:128 sc1")
        if h < NREP - 1:
            a("s_addk_i32 s31, 20480")
            a("s_addk_i32 s44, 20480")
    a("s_bitcmp1_b32 s46, 8")
    a("s_bitset1_b32 s46, 8")
    a("s_cbranch_scc0 pj_ret0")
    a.label("pj_hit")
    a("s_and_b32 s31, s43, 0xffff0000")
    a("s_ashr_i32 s44, s31, 31")
    a("s_orn2_b32 s44, 0x80000000, s44")
    a("s_xor_b32 s31, s31, s44")
    a("s_and_b32 s31, s31, 0xffff0000")
    a(f"v_mul_f32 v126, s31, v{ACC+4}")
    a("v_exp_f32 v126, v126")
    a("s_bfe_u32 s31, s43, 0x40003")
    a("s_sub_u32 s31, 15, s31")
    a("v_add_f32 v126, 1.0, v126")
    a("v_rcp_f32 v126, v126")
    a("v_cmp_eq_u32 s[44:45], s31, v0")
    a("v_cvt_pk_bf16_f32 v126, v126, v126")
    a("v_and_b32 v126, 0xffff0000, v126")
    a("s_bitcmp1_b32 s46, 9")
    a("s_bitset1_b32 s46, 9")
    a("s_cbranch_scc0 pj_nw")
    a("s_waitcnt vmcnt(0)")
    a.label("pj_nw")
    for h in range(1, NREP):
        for r in range(0, 12, 2): a(f"v_pk_add_f32 {vr(56+r,2)}, {vr(56+r,2)}, {vr(QD[3*h+r//4]+r%4,2)}")
    a("s_mov_b64 exec, s[44:45]")
    for r in range(12): a(f"v_fmac_f32 v{GR+r}, v{56+r}, v126")
    a("s_mov_b64 exec, -1")
    a("s_cmp_lg_u32 s41, 0")
    a("s_cbranch_scc1 pj_moe_ok")
    a("s_branch pj_gate")
    late(a)

def lg(j, T):
    n = 2 * (4 - T) + (10 if j + 1 < 10 else 0) + (2 * T if j + 2 < 10 else 0)
    return min(n, 12)

def touch_setup(a):
    a("s_cmp_ge_u32 s24, 6")
    a("s_cselect_b32 s12, s10, s4")
    a("s_cselect_b32 s13, s11, s5")
    a(f"s_mov_b32 s14, {X_BYTES}")
    a(f"s_cselect_b32 s14, {WS_USED}, s14")
    a("s_cselect_b32 s62, 5, 10")
    a("s_lshl_b32 s62, s62, 7")
    a("s_mov_b32 s15, 0x20000")
    a("s_and_b32 s58, s2, 1")
    a("s_lshr_b32 s63, s2, 3")
    a("s_lshl_b32 s57, s58, 5")
    a("s_add_u32 s57, s57, s63")
    a("s_mul_i32 s57, s57, 12800")
    a(f"s_add_u32 s57, s57, {WOP_OFF}")
    a("s_lshl_b32 s31, s60, 2")
    a("s_and_b32 s63, s25, 3")
    a("s_add_u32 s31, s31, s63")
    a("s_mul_i32 s31, s31, 20480")
    a("s_mul_i32 s63, s58, 640")
    a("s_add_u32 s31, s31, s63")
    a("s_cmp_ge_u32 s24, 6")
    a("s_cselect_b32 s57, s57, s31")
    a("s_and_b32 s31, s24, 1")
    a("s_mul_i32 s31, s31, s62")
    a("s_mul_i32 s31, s31, 12")
    a("s_add_u32 s57, s57, s31")
    a("s_sub_u32 s58, 8, s24")
    a("s_min_u32 s58, s58, 5")
    a(f"v_mul_u32_u24 v{T0+4}, 13108, v1")
    a(f"v_lshrrev_b32 v{T0+4}, 16, v{T0+4}")
    a(f"v_mul_u32_u24 v{T0+5}, 5, v{T0+4}")
    a(f"v_sub_u32 v{T0+5}, v1, v{T0+5}")
    a(f"v_mul_u32_u24 v{T0+6}, s62, v{T0+4}")
    a(f"v_lshl_add_u32 v{T0+6}, v{T0+5}, 7, v{T0+6}")

def attention(a):
    a("s_and_b32 s25, s2, 7")
    a("s_lshl_b32 s25, s25, 2")
    a("s_lshr_b32 s26, s2, 6")
    a("s_add_u32 s25, s25, s26")
    a("s_bfe_u32 s26, s2, 0x30003")
    a("s_load_dwordx2 s[4:5], s[0:1], 0")
    a("s_load_dwordx2 s[8:9], s[0:1], 64")
    a("s_lshl_b32 s60, s26, 2")
    a("s_lshr_b32 s61, s25, 3")
    a("s_add_u32 s60, s60, s61")
    a("s_and_b32 s61, s25, 7")
    a(f"s_mov_b32 s44, {TILE_B}")
    a(f"s_mov_b32 s52, {32*TILE_B}")
    a("s_mul_i32 s45, s25, 1280")
    a("s_add_u32 s45, s45, 40960")
    a("s_mul_i32 s46, s25, 320")
    a("s_add_u32 s46, s46, 81920")
    a("s_movk_i32 s47, 320")
    a("s_movk_i32 s48, 10240")
    piece_split(a, 0, T0, T0 + 1, T0 + 2)
    a(f"v_mad_u32_u24 v2, v{T0}, s47, v{T0+1}")
    a(f"v_mad_u32_u24 v3, v{T0}, s48, v{T0+1}")
    a("v_add_u32 v2, s45, v2")
    a("v_add_u32 v3, s46, v3")
    a("s_cmp_lt_u32 s24, 2")
    a("s_cselect_b32 s49, s47, s48")
    a("s_cselect_b32 s50, s45, s46")
    a("s_cselect_b32 s39, 8, 16")
    a("s_lshl_b32 s39, s39, 10")
    a(f"v_and_b32 v{T0+3}, 127, v0")
    a(f"v_add_u32 v{T0+3}, 512, v{T0+3}")
    piece_split(a, T0 + 3, T0, T0 + 1, T0 + 2)
    a(f"v_mad_u32_u24 v4, v{T0}, s49, v{T0+1}")
    a("v_add_u32 v4, s50, v4")
    a("s_mov_b32 s28, 0")
    a(f"s_mov_b32 s59, {4*TILE_B}")
    a("s_lshl_b32 s30, s24, 10")
    a(f"v_lshrrev_b32 v{T0}, 5, v1")
    a(f"v_and_b32 v{T0+1}, 31, v1")
    kq_addr(a)
    a(f"v_lshlrev_b32 v{T0+2}, 31, v{T0}")
    a(f"v_or_b32 v{T0+2}, v{T0+2}, v7")
    a("s_lshl_b32 s51, s26, 3")
    a("s_and_b32 s31, s24, 3")
    a("s_lshl_b32 s31, s31, 1")
    a("s_add_u32 s51, s51, s31")
    a("s_lshr_b32 s53, s24, 2")
    a("s_add_u32 s51, s51, s53")
    a("s_xor_b32 s37, s51, 1")
    a("s_mul_i32 s31, s51, s44")
    a("s_mul_i32 s37, s37, s44")
    a("s_mul_i32 s29, s25, 1280")
    a("s_add_u32 s31, s31, s29")
    a("s_add_u32 s37, s37, s29")
    a("s_waitcnt lgkmcnt(0)")
    srd(a, 20, 10, WS_USED)
    stamp(a, 1)
    dma_chunk(a, "k2_d0")
    for sl, so in ((0, 31), (1, 37)):
        a(f"buffer_load_dwordx4 {vr(QLO[sl],4)}, v5, s[20:23], s{so} offen")
        a(f"buffer_load_dwordx2 {vr(QHI[sl],2)}, v{T0+2}, s[20:23], s{so} offen")
    a(f"s_add_u32 s30, s30, {CH}")
    touch_setup(a)
    a("s_and_b32 s38, s24, 3")
    a("s_lshl_b32 s49, s60, 2")
    a("s_add_u32 s49, s49, s38")
    a("s_mul_i32 s37, s49, 20480")
    a("s_mul_i32 s50, s61, 160")
    a("s_add_u32 s37, s37, s50")
    a("s_mul_i32 s48, s53, 96")
    a("s_add_u32 s38, s37, s48")
    srd(a, 16, 4, X_BYTES)
    a("s_lshl_b32 s62, s49, 6")
    a(f"s_add_u32 s62, s62, {ST_OFF}")
    a("s_and_b32 s63, s2, 31")
    a("s_lshl_b32 s63, s63, 7")
    a(f"s_add_u32 s63, s63, {SEL_OFF}")
    a("s_mul_i32 s31, s53, 5120")
    a("v_add_u32 v5, s31, v5")
    a("v_add_u32 v7, s31, v7")
    vrow(a, T0 + 1, T0 + 3)
    a(f"v_mul_u32_u24 v6, 320, v{T0}")
    a(f"v_lshl_add_u32 v6, v{T0+1}, 4, v6")
    a("s_add_u32 s31, s31, 10240")
    a("v_add_u32 v6, s31, v6")
    a("s_mov_b32 s40, 0x000fffff")
    a("s_mov_b32 s41, 0x000fffff")
    a("s_mov_b32 s27, 0")
    a(f"s_mov_b32 s35, {(-3*CH) & 0xffffffff}")
    a(f"s_mov_b32 s36, {CH}")
    a("s_mov_b32 s33, s36")
    a("s_mov_b32 s34, s35")
    a("s_mul_i32 s56, s53, 7")
    a("s_sub_u32 s55, 7, s56")
    a("s_mov_b32 s42, 0x11000000")
    a("s_mov_b32 s43, 0x11000000")
    a(f"v_mov_b32 v{T0+3}, 0x3f803f80")
    a(f"v_cndmask_b32 v{VV[0]}, 0, v{T0+3}, s[42:43]")
    for r in range(1, 16): a(f"v_mov_b32 v{VV[0]+r}, v{VV[0]}")
    for r in range(8): a(f"v_mov_b32 v{P+r}, 0")
    for r in range(32): a(f"v_mov_b32 v{OO[0]+r}, 0")
    for r in range(4): a(f"v_mov_b32 v{SS[1]+12+r}, 0")
    stamp(a, 2)
    a("s_waitcnt vmcnt(0)")
    a("s_barrier")
    stamp(a, 3)
    a(f"ds_read_b128 {vr(KLO[0],4)}, v5")
    a(f"ds_read_b64 {vr(KHI[0],2)}, v7")
    dma_chunk(a, "k2_d1")
    a(f"s_add_u32 s30, s30, {CH}")
    a("s_waitcnt lgkmcnt(0)")
    a(f"v_mfma_f32_32x32x16_bf16 {vr(SS[0],16)}, {vr(KLO[0],4)}, {vr(QLO[0],4)}, 0")
    a(f"v_mfma_f32_32x32x8_bf16 {vr(SS[0],16)}, {vr(KHI[0],2)}, {vr(QHI[0],2)}, {vr(SS[0],16)}")
    dma_chunk(a, "k2_d2")
    a(f"s_add_u32 s30, s30, {CH}")
    a(f"s_setprio {TOP}")
    a("s_nop 1")
    stamp(a, 4)
    AL = os.environ.get("AL2", "0")
    if AL:
        a.raw(".p2align 6")
        for _ in range(int(AL)): a("s_nop 0")
    else:
        a.raw(".p2align 3")
    a.label("k2_loop")
    for u in range(8): unit(a, u)
    a("s_cmp_lt_u32 s27, 8")
    a("s_cbranch_scc1 k2_loop")
    stamp(a, 5)
    if "itst" in X:
        a("s_lshl_b32 s96, s2, 3")
        a("s_add_u32 s96, s96, s24")
        a("s_lshl_b32 s96, s96, 8")
        a(f"s_add_u32 s96, s96, {STAMP_OFF + (3<<20)}")
        a("v_lshl_add_u32 v124, v1, 2, s96")
        a("global_store_dword v124, v125, s[10:11]")
    O = OO[0]
    a("s_setprio 0")
    a(f"v_mfma_f32_32x32x16_bf16 {vr(OO[1],16)}, {vr(VV[1],4)}, {vr(P,4)}, {vr(OO[1],16)}")
    a(f"v_cvt_pk_bf16_f32 v{P+6}, v{SS[1]+12}, v{SS[1]+13}")
    a(f"v_cvt_pk_bf16_f32 v{P+7}, v{SS[1]+14}, v{SS[1]+15}")
    a("s_mul_i32 s31, s24, 3328")
    a("s_xor_b32 s33, s24, 4")
    a(f"v_mfma_f32_32x32x16_bf16 {vr(OO[1],16)}, {vr(VV[1]+4,4)}, {vr(P+4,4)}, {vr(OO[1],16)}")
    a("s_mul_i32 s33, s33, 3328")
    a("s_add_u32 s31, s31, 40960")
    a("s_add_u32 s33, s33, 40960")
    a("v_lshl_add_u32 v26, v1, 4, s31")
    a("v_lshl_add_u32 v27, v1, 2, s31")
    a("v_lshl_add_u32 v28, v1, 4, s33")
    a("v_lshl_add_u32 v29, v1, 2, s33")
    a("s_mul_i32 s29, s51, 40960")
    a(f"s_add_u32 s29, s29, {O_OFF}")
    a("s_lshr_b32 s31, s25, 1")
    a("s_lshl_b32 s31, s31, 9")
    a("s_add_u32 s30, s29, s31")
    for g in range(3):
        a(f"ds_write_b128 v26, {vr(OO[1]+4*g,4)} offset:{g*1024}")
    a(f"ds_write_b32 v27, v{OO[1]+12} offset:3072")
    a("s_and_b32 s31, s25, 1")
    a("s_lshl_b32 s31, s31, 3")
    a("s_add_u32 s30, s30, s31")
    a("s_add_u32 s30, s30, 32768")
    a("s_lshl_b32 s31, s25, 10")
    a("s_add_u32 s29, s29, s31")
    a("s_waitcnt vmcnt(0)")
    a("v_cmp_eq_u32 vcc, 0, v127")
    a("s_cbranch_vccnz pj_nokey")
    a.label("pj_sel")
    a("s_sub_u32 s31, 127, s49")
    a("v_bfe_u32 v30, v127, 7, 7")
    a("v_cmp_eq_u32 vcc, s31, v30")
    a("s_and_b32 s47, vcc_lo, 0xff")
    a("s_cbranch_scc0 pj_nh")
    a(f"v_mov_b32 v30, {MOE_CNT}")
    a("global_load_dword v31, v30, s[10:11] sc1")
    a.label("pj_nh")
    a("s_waitcnt lgkmcnt(0)")
    a("s_barrier")
    for g in range(3):
        a(f"ds_read_b128 {vr(SS[0]+4*g,4)}, v28 offset:{g*1024}")
    a(f"ds_read_b32 v{SS[0]+12}, v29 offset:3072")
    a("v_lshlrev_b32 v2, 4, v1")
    a(f"v_mov_b32 v7, {f32(2.0**64)}")
    a("s_waitcnt lgkmcnt(0)")
    a(f"v_add_f32 v{O+12}, v{O+12}, v{SS[0]+12}")
    for p in range(6):
        a(f"v_pk_add_f32 {vr(O+2*p,2)}, {vr(O+2*p,2)}, {vr(SS[0]+2*p,2)}")
    a(f"v_med3_f32 v3, v{O+12}, v7, s54")
    a(f"v_cmp_neq_f32 vcc, v{O+12}, v3")
    a("s_cbranch_vccnz k2_slow")
    a.label("k2_fin")
    a(f"v_rcp_f32 v4, v{O+12}")
    a("s_nop 0")
    for p in range(6):
        a(f"v_pk_mul_f32 {vr(O+2*p,2)}, {vr(O+2*p,2)}, v[4:5] op_sel_hi:[1,0]")
    for p in range(6):
        a(f"v_cvt_pk_bf16_f32 v{O+p}, v{O+2*p}, v{O+2*p+1}")
    a(f"buffer_store_dwordx4 {vr(O,4)}, v2, s[20:23], s29 offen sc1")
    a("s_mov_b32 exec_hi, 0")
    a(f"buffer_store_dwordx2 {vr(O+4,2)}, v2, s[20:23], s30 offen sc1")
    a("s_mov_b64 exec, -1")
    stamp(a, 6)
    project(a)
    TS = OO[1]
    C = SS[1]; M = TS + 3
    a.label("k2_slow")
    a(f"v_lshrrev_b32 v{TS}, 5, v1")
    a(f"v_and_b32 v{TS+1}, 31, v1")
    kq_addr(a)
    a("v_add_u32 v5, s45, v5")
    a("v_add_u32 v7, s45, v7")
    vrow(a, TS + 1, TS + 2)
    a(f"v_mul_u32_u24 v6, 10240, v{TS}")
    a(f"v_lshl_add_u32 v6, v{TS+1}, 4, v6")
    a("v_add_u32 v6, s46, v6")
    a("v_add_u32 v4, 20480, v6")
    for r in range(16): a(f"v_mov_b32 v{C+r}, 0")
    a(f"v_mov_b32 v{M}, 0xff800000")
    a("s_mov_b32 s32, 0")
    a.label("k2_s_pass")
    a("s_mov_b32 s28, 0")
    a.label("k2_s_loop")
    a(f"buffer_load_dwordx4 {vr(KLO[0],4)}, v5, s[20:23], s28 offen")
    a(f"buffer_load_dwordx2 {vr(KHI[0],2)}, v7, s[20:23], s28 offen")
    a("s_mov_b64 exec, s[40:41]")
    a(f"buffer_load_dwordx4 {vr(VV[0],4)}, v6, s[20:23], s28 offen")
    a(f"buffer_load_dwordx4 {vr(VV[0]+4,4)}, v4, s[20:23], s28 offen")
    a("s_mov_b64 exec, -1")
    a("s_waitcnt vmcnt(0)")
    a(f"v_mfma_f32_32x32x16_bf16 {vr(SS[0],16)}, {vr(KLO[0],4)}, {vr(QLO[0],4)}, {vr(C,16)}")
    a(f"v_mfma_f32_32x32x8_bf16 {vr(SS[0],16)}, {vr(KHI[0],2)}, {vr(QHI[0],2)}, {vr(SS[0],16)}")
    a("s_nop 11")
    a("s_cmp_eq_u32 s32, 0")
    a("s_cbranch_scc0 k2_s_p2")
    for i in range(0, 16, 2):
        a(f"v_max3_f32 v{M}, v{SS[0]+i}, v{SS[0]+i+1}, v{M}")
    a("s_branch k2_s_next")
    a.label("k2_s_p2")
    for r in range(16): a(f"v_exp_f32 v{SS[0]+r}, v{SS[0]+r}")
    a("s_nop 0")
    for r in range(8): a(f"v_cvt_pk_bf16_f32 v{P+r}, v{SS[0]+2*r}, v{SS[0]+2*r+1}")
    a("s_nop 1")
    a(f"v_mfma_f32_32x32x16_bf16 {vr(O,16)}, {vr(VV[0],4)}, {vr(P,4)}, {vr(O,16)}")
    a(f"v_mfma_f32_32x32x16_bf16 {vr(O,16)}, {vr(VV[0]+4,4)}, {vr(P+4,4)}, {vr(O,16)}")
    a.label("k2_s_next")
    a(f"s_add_u32 s28, s28, {TILE_B}")
    a(f"s_cmp_lt_u32 s28, {64*TILE_B}")
    a("s_cbranch_scc1 k2_s_loop")
    a("s_nop 11")
    a("s_cmp_eq_u32 s32, 0")
    a("s_cbranch_scc0 k2_fin")
    a(f"v_mov_b32 v{TS+7}, v{M}")
    a("s_nop 1")
    a(f"v_permlane32_swap_b32 v{M}, v{TS+7}")
    a(f"v_max_f32 v{M}, v{M}, v{TS+7}")
    for r in range(16): a(f"v_sub_f32 v{C+r}, 0, v{M}")
    for r in range(16): a(f"v_mov_b32 v{O+r}, 0")
    a("s_mov_b32 s32, 1")
    a("s_branch k2_s_pass")

def silu_bf16(a, x, t):
    a(f"v_mul_f32 v{t}, {f32(-math.log2(math.e))}, v{x}")
    a(f"v_exp_f32 v{t}, v{t}")
    a("s_nop 0")
    a(f"v_add_f32 v{t}, 1.0, v{t}")
    a(f"v_rcp_f32 v{t}, v{t}")
    a("s_nop 0")
    a(f"v_mul_f32 v{x}, v{x}, v{t}")
    a(f"v_cvt_pk_bf16_f32 v{x}, v{x}, v{x}")
    a(f"v_and_b32 v{x}, 0xffff0000, v{x}")

def rnd_bf16(a, x):
    a(f"v_cvt_pk_bf16_f32 v{x}, v{x}, v{x}")
    a(f"v_and_b32 v{x}, 0xffff0000, v{x}")

XSL = 61440
UL = XSL + 10368
KL = UL + 1536

def moe(a):
    a("s_load_dwordx4 s[4:7], s[0:1], 40")
    a("s_load_dwordx2 s[8:9], s[0:1], 56")
    a("s_sub_u32 s25, s2, 256")
    a("s_and_b32 s26, s25, 7")
    a("s_mul_i32 s26, s26, 12")
    a("s_lshr_b32 s27, s25, 3")
    a("s_add_u32 s26, s26, s27")
    a("v_lshrrev_b32 v7, 4, v1")
    a("v_and_b32 v4, 15, v1")
    a("v_lshlrev_b32 v5, 4, v1")
    a("s_waitcnt lgkmcnt(0)")
    srd(a, 20, 10, WS_USED)
    a("s_cmp_lt_u32 s24, 4")
    a("s_cbranch_scc1 moe_c")
    a("s_cmp_eq_u32 s24, 7")
    a("s_cbranch_scc1 k2_exit")
    a("s_cmp_eq_u32 s24, 5")
    a("s_cselect_b32 s12, s6, s4")
    a("s_cselect_b32 s13, s7, s5")
    a("v_lshrrev_b32 v2, 1, v1")
    a("v_mul_u32_u24 v2, 3072, v2")
    a("v_and_b32 v3, 1, v1")
    a("v_lshl_add_u32 v2, v3, 4, v2")
    a("s_lshl_b32 s28, s26, 5")
    a(f"s_mov_b32 s29, {32*3072}")
    a("s_cmp_lg_u32 s24, 6")
    a("s_cbranch_scc1 moe_st")
    a("s_mov_b32 s12, s8")
    a("s_mov_b32 s13, s9")
    a("v_mov_b32 v2, v5")
    a("s_mul_i32 s28, s26, 20480")
    a("s_movk_i32 s29, 1024")
    a.label("moe_st")
    a(f"s_mov_b32 s14, {WG_BYTES}")
    a("s_mov_b32 s15, 0x20000")
    a("s_sub_u32 s30, s24, 4")
    a("s_mul_i32 s30, s30, 20480")
    a("s_and_b32 s27, s26, 3")
    a("s_mul_i32 s27, s27, 5")
    a("s_mov_b32 s33, 0")
    a("s_setprio 0")
    a("s_barrier")
    a.label("moe_stl")
    a("s_lshl_b32 s31, s27, 10")
    a("s_add_u32 m0, s30, s31")
    a("s_mul_i32 s31, s27, s29")
    a("s_add_u32 s31, s31, s28")
    a("buffer_load_dwordx4 v2, s[12:15], s31 offen lds")
    a("s_add_u32 s27, s27, 1")
    a("s_cmp_eq_u32 s27, 20")
    a("s_cselect_b32 s27, 0, s27")
    a("s_add_u32 s33, s33, 1")
    a("s_cmp_lt_u32 s33, 20")
    a(f"s_waitcnt vmcnt({PACE})")
    a("s_cbranch_scc1 moe_stl")
    a("s_waitcnt vmcnt(0)")
    a("s_barrier")
    a("s_endpgm")
    a.label("moe_c")
    a("s_cmp_lg_u32 s24, 3")
    a("s_cbranch_scc1 moe_w0")
    a("v_lshlrev_b32 v3, 3, v1")
    a(f"s_mov_b32 s31, {CAND_OFF}")
    a("buffer_load_dwordx2 v[10:11], v3, s[20:23], s31 offen")
    a("v_mov_b32 v9, 0")
    a("s_mov_b32 s27, 0")
    a("s_waitcnt vmcnt(0)")
    a.label("moe_top")
    top8_rounds(a, 10, 11, 8, 31)
    a("s_mov_b32 m0, s27")
    a("s_add_u32 s27, s27, 1")
    a("v_cmp_ne_u32 s[40:41], s31, v10")
    a("v_cmp_ne_u32 s[42:43], s31, v11")
    a("v_writelane_b32 v9, s31, m0")
    a("s_cmp_lt_u32 s27, 8")
    a("v_cndmask_b32 v10, 0, v10, s[40:41]")
    a("v_cndmask_b32 v11, 0, v11, s[42:43]")
    a("s_cbranch_scc1 moe_top")
    a("s_cmp_ge_u32 s25, 32")
    a("s_cbranch_scc1 moe_nk")
    a("v_lshlrev_b32 v3, 2, v1")
    a("s_mov_b64 exec, 0xff")
    a("s_lshl_b32 s31, s25, 7")
    a(f"s_add_u32 s31, s31, {SEL_OFF}")
    a("buffer_store_dword v9, v3, s[20:23], s31 offen sc1")
    a("s_mov_b64 exec, -1")
    a.label("moe_nk")
    stamp(a, 1)
    a("s_mov_b32 s27, 0")
    a(f"s_mov_b32 s30, {XSL}")
    a.label("moe_xs")
    a("v_readlane_b32 s31, v9, s27")
    a("s_mov_b32 m0, s30")
    a("s_bfe_u32 s33, s31, 0x4000a")
    a("s_sub_u32 s33, 15, s33")
    a("s_lshl_b32 s33, s33, 3")
    a("s_and_b32 s31, s31, 7")
    a("s_or_b32 s33, s33, s31")
    a("s_mul_i32 s33, s33, 1280")
    a(f"s_add_u32 s33, s33, {XS_OFF}")
    a("buffer_load_dwordx4 v5, s[20:23], s33 offen lds")
    a("s_mov_b64 exec, 0xffff")
    a("buffer_load_dwordx4 v5, s[20:23], s33 offen offset:1024 lds")
    a("s_mov_b64 exec, -1")
    a("s_addk_i32 s30, 1296")
    a("s_add_u32 s27, s27, 1")
    a("s_cmp_lt_u32 s27, 8")
    a("s_cbranch_scc1 moe_xs")
    a("s_waitcnt vmcnt(0)")
    a("s_barrier")
    a("s_branch moe_dn")
    a.label("moe_w0")
    a("s_barrier")
    a("s_cmp_ge_u32 s24, 2")
    a("s_cbranch_scc1 moe_dn")
    a("v_lshlrev_b32 v6, 3, v4")
    a("v_lshl_add_u32 v6, v7, 8, v6")
    a("s_mul_i32 s31, s24, 20480")
    a("v_add_u32 v6, s31, v6")
    a("v_bfe_u32 v9, v1, 2, 2")
    a("v_and_b32 v8, 1, v1")
    a("v_lshl_add_u32 v9, v9, 1, v8")
    a("v_mul_u32_u24 v8, 1296, v9")
    a("v_lshl_add_u32 v8, v7, 4, v8")
    a(f"v_add_u32 v8, {XSL}, v8")
    a(f"v_add_u32 v5, {UL}, v5")
    a("s_setprio 0")
    a("s_waitcnt vmcnt(0)")
    a("s_barrier")
    stamp(a, 2)
    for half in range(2):
        for k in range(10):
            ks = half * 10 + k
            a(f"ds_read_b64_tr_b16 {vr(16+8*k,2)}, v6 offset:{ks*1024}")
            a(f"ds_read_b64_tr_b16 {vr(18+8*k,2)}, v6 offset:{ks*1024+128}")
            a(f"ds_read_b128 {vr(20+8*k,4)}, v8 offset:{ks*64}")
            if k in (4, 7): a("s_waitcnt lgkmcnt(6)")
        a("s_waitcnt lgkmcnt(0)")
        a("s_setprio 3")
        for k in range(10):
            a(f"v_mfma_f32_16x16x32_bf16 v[12:15], {vr(16+8*k,4)}, {vr(20+8*k,4)}, " + ("0" if half == 0 and k == 0 else "v[12:15]"))
        if half == 0: a("s_setprio 0")
    a("s_cmp_eq_u32 s24, 0")
    a("s_nop 6")
    a("s_cbranch_scc1 moe_g")
    a("ds_write_b128 v5, v[12:15]")
    a("s_waitcnt lgkmcnt(0)")
    a("s_barrier")
    a("s_endpgm")
    a.label("moe_g")
    for r in range(4): a(f"v_mul_f32 v{16+r}, {f32(-math.log2(math.e))}, v{12+r}")
    for r in range(4): a(f"v_exp_f32 v{16+r}, v{16+r}")
    for r in range(4): a(f"v_add_f32 v{16+r}, 1.0, v{16+r}")
    for r in range(4): a(f"v_rcp_f32 v{16+r}, v{16+r}")
    a("s_barrier")
    a("ds_read_b128 v[20:23], v5")
    for r in range(4): a(f"v_mul_f32 v{12+r}, v{12+r}, v{16+r}")
    a("v_lshlrev_b32 v5, 3, v1")
    a("s_waitcnt lgkmcnt(0)")
    for r in range(4): a(f"v_mul_f32 v{12+r}, v{12+r}, v{20+r}")
    a(f"v_add_u32 v5, {UL+1024}, v5")
    a("v_cvt_pk_bf16_f32 v12, v12, v13")
    a("v_cvt_pk_bf16_f32 v13, v14, v15")
    a("ds_write_b64 v5, v[12:13]")
    a("s_waitcnt lgkmcnt(0)")
    a("s_barrier")
    a("s_endpgm")
    a.label("moe_dn")
    a("v_lshrrev_b32 v6, 2, v1")
    a("v_mul_u32_u24 v6, 1280, v6")
    a("v_and_b32 v8, 3, v1")
    a("v_lshl_add_u32 v6, v8, 3, v6")
    a("s_sub_u32 s27, s24, 2")
    a("s_mul_i32 s31, s27, 640")
    a("s_add_u32 s31, s31, 40960")
    a("v_add_u32 v6, s31, v6")
    a("v_mul_u32_u24 v10, 5120, v7")
    a("v_lshl_add_u32 v10, v4, 2, v10")
    a("s_mul_i32 s34, s27, 1280")
    a("s_and_b32 s31, s26, 3")
    a("s_mul_i32 s31, s31, 20480")
    a("s_add_u32 s34, s34, s31")
    a(f"s_add_u32 s34, s34, {PART_OFF}")
    a("v_lshlrev_b32 v5, 3, v1")
    a(f"v_add_u32 v5, {UL+1024}, v5")
    a("s_setprio 0")
    a("s_waitcnt vmcnt(0)")
    a("s_barrier")
    for k in range(20):
        a(f"ds_read_b64_tr_b16 {vr(16+2*k,2)}, v6 offset:{k*32}")
        if k == 13: a("s_waitcnt lgkmcnt(4)")
    a("s_barrier")
    a("s_barrier")
    a("ds_read_b64 v[12:13], v5")
    a("s_waitcnt lgkmcnt(0)")
    stamp(a, 2)
    a("s_setprio 3")
    dreg = lambda k: 56 + 4 * k if k < 18 else 16 + 4 * (k - 18)
    for k in range(20):
        a(f"v_mfma_f32_16x16x16_bf16 {vr(dreg(k),4)}, v[12:13], {vr(16+2*k,2)}, 0")
    a("s_setprio 0")
    for k in range(20):
        a(f"buffer_atomic_add_f32 v{dreg(k)}, v10, s[20:23], s34 offen offset:{k*64}")
        a(f"buffer_atomic_add_f32 v{dreg(k)+1}, v10, s[20:23], s34 offen offset:{2560+k*64}")
        if 2*k+2 > APACE and k < 19: a(f"s_waitcnt vmcnt({APACE})")
    a(f"v_mov_b32 v2, {MOE_CNT}")
    a("v_mov_b32 v3, 1")
    a("s_mov_b64 exec, 1")
    a("s_waitcnt vmcnt(0)")
    a("global_atomic_add v2, v3, s[10:11]")
    stamp_end(a, 1, 2)
    a.label("k2_exit")
    a("s_endpgm")

def gen():
    a = Asm()
    a.raw(f".globl {NAME}\n.p2align 8\n.type {NAME},@function")
    a.label(NAME)
    stamp(a, 0)
    a("s_load_dwordx2 s[10:11], s[0:1], 80")
    a("v_lshrrev_b32 v2, 6, v0")
    a("v_and_b32 v1, 63, v0")
    a(f"s_mov_b32 s54, {f32(2.0**-64)}")
    a("v_readfirstlane_b32 s24, v2")
    a("s_cmp_ge_u32 s2, 256")
    a("s_cbranch_scc1 k2_other")
    attention(a)
    a.label("k2_other")
    a("s_setprio 3")
    a(f"s_cmp_ge_u32 s2, {GRID}")
    a("s_cbranch_scc1 k2_exit")
    moe(a)
    return a
```
